```python
import torch

def _softmax(x, axis=-1):
    return torch.softmax(x, dim=axis)
def _gelu(x):
    return torch.nn.functional.gelu(x, approximate="tanh")
def _silu(x):
    return torch.nn.functional.silu(x)
def _sigmoid(x):
    return torch.sigmoid(x)
def _layernorm(x, axis=-1, eps=1e-5):
    m = x.mean(dim=axis, keepdim=True)
    v = x.var(dim=axis, keepdim=True, unbiased=False)
    return (x - m) / torch.sqrt(v + eps)
def _scatter_add(tgt, idx, src, axis=0):
    return tgt.clone().index_add_(axis, idx, src)
def _segment_sum(src, seg, n):
    out = torch.zeros((n,) + src.shape[1:], dtype=src.dtype)
    return out.index_add_(0, seg, src)
def _pad(x, pw):
    flat = tuple(v for pair in reversed(pw) for v in pair)
    return torch.nn.functional.pad(x, flat)

kernel_name = 'parallel_sum__ssm_conv_s5__glu_gated_glu__prompt'

def setup_inputs():

    _w = (lambda a: (lambda t: t.to(torch.bfloat16) if t.is_floating_point() else t)(torch.as_tensor(a)))
    def _A_setup():
        B, S, D = 1, 2048, 1024
        P = D
        Lambda_re = -0.5 * (lambda _x: torch.exp(torch.as_tensor(_x)))((lambda *s: torch.randn(*s, dtype=torch.bfloat16) * 0.8)(P))
        Lambda_im = (lambda *s: torch.randn(*s, dtype=torch.bfloat16) * 0.8)(P) * 1.0
        B_re = (lambda *s: torch.randn(*s, dtype=torch.bfloat16) * 0.8)(P, D) * (D ** -0.5)
        B_im = (lambda *s: torch.randn(*s, dtype=torch.bfloat16) * 0.8)(P, D) * (D ** -0.5)
        C_re = (lambda *s: torch.randn(*s, dtype=torch.bfloat16) * 0.8)(D, P) * (P ** -0.5)
        C_im = (lambda *s: torch.randn(*s, dtype=torch.bfloat16) * 0.8)(D, P) * (P ** -0.5)
        log_dt = (lambda *s: torch.randn(*s, dtype=torch.bfloat16) * 0.8)(P) * 0.3 - 2.0
        Dskip = (lambda *s: torch.randn(*s, dtype=torch.bfloat16) * 0.8)(D)
        return {
            "x": _w((lambda *s: torch.randn(*s, dtype=torch.bfloat16) * 0.05)(B, S, D)),
            "Lambda_re": _w(Lambda_re),
            "Lambda_im": _w(Lambda_im),
            "B_re": _w(B_re),
            "B_im": _w(B_im),
            "C_re": _w(C_re),
            "C_im": _w(C_im),
            "log_dt": _w(log_dt),
            "Dskip": _w(Dskip),
        }
    _A_in = _A_setup()

    def _B_setup():
        B, S, D, F = 1, 2048, 1024, 3584
        return {
            "x": _w((lambda *s: torch.randn(*s, dtype=torch.bfloat16) * 0.05)(B, S, D)),
            "w_gate": _w((lambda *s: torch.randn(*s, dtype=torch.bfloat16) * 0.05)(D, F)),
            "w_up": _w((lambda *s: torch.randn(*s, dtype=torch.bfloat16) * 0.05)(D, F)),
            "w_down": _w((lambda *s: torch.randn(*s, dtype=torch.bfloat16) * 0.05)(F, D)),
        }
    _B_in = _B_setup()

    return {
        "A_x": _A_in["x"],
        "A_Lambda_re": _A_in["Lambda_re"],
        "A_Lambda_im": _A_in["Lambda_im"],
        "A_B_re": _A_in["B_re"],
        "A_B_im": _A_in["B_im"],
        "A_C_re": _A_in["C_re"],
        "A_C_im": _A_in["C_im"],
        "A_log_dt": _A_in["log_dt"],
        "A_Dskip": _A_in["Dskip"],
        "B_x": _B_in["x"],
        "B_w_gate": _B_in["w_gate"],
        "B_w_up": _B_in["w_up"],
        "B_w_down": _B_in["w_down"],
    }

def reference(A_x, A_Lambda_re, A_Lambda_im, A_B_re, A_B_im, A_C_re, A_C_im, A_log_dt, A_Dskip, B_x, B_w_gate, B_w_up, B_w_down):
    def _A_ref(x, Lambda_re, Lambda_im, B_re, B_im, C_re, C_im, log_dt, Dskip):
        Bsz, L, H = x.shape
        Lam = Lambda_re + 1j * Lambda_im
        Bmat = B_re + 1j * B_im
        Cmat = C_re + 1j * C_im
        dt = torch.exp(log_dt)
        Lam_bar = torch.exp(dt * Lam)
        B_bar = ((Lam_bar - 1.0) / Lam)[:, None] * Bmat
        Bu = torch.einsum("bld,pd->blp", x + 0j, B_bar)
        h = torch.zeros_like(Bu[:, 0, :])
        hs = []
        for t in range(L):
            h = Lam_bar[None, :] * h + Bu[:, t, :]
            hs.append(h)
        hseq = torch.stack(hs, 1)
        y = 2.0 * torch.einsum("blp,dp->bld", hseq, Cmat).real + x * Dskip[None, None, :]
        return y

    def _B_ref(x, w_gate, w_up, w_down):
        g = torch.einsum("bsd,df->bsf", x, w_gate)
        u = torch.einsum("bsd,df->bsf", x, w_up)
        h = _sigmoid(g) * u
        return torch.einsum("bsf,fd->bsd", h, w_down)

    x = A_x
    xn = _layernorm(x, axis=-1)
    return x + _A_ref(xn, A_Lambda_re, A_Lambda_im, A_B_re, A_B_im, A_C_re, A_C_im, A_log_dt, A_Dskip) + _B_ref(xn, B_w_gate, B_w_up, B_w_down)
```

```python
NAME = "parallel_sum__ssm_conv_s5__glu_gated_glu__prompt"

XN_OFF = 0x0000000; XN_SZ = 0x400000
H_OFF  = 0x0400000; H_SZ  = 0xE00000
HS_OFF = 0x1200000; HS_SZ = 0x800000
EX_OFF = 0x1A00000; EX_SZ = 0x20000
FL_OFF = 0x1A20000; FL_SZ = 0x2000
XB_OFF = 0x1B00000; XB_SZ = 0x800000
TAG = 0x5AFEC0DE

class Asm:
    def __init__(self):
        self.lines = []
        self.nlab = 0
    def __call__(self, s):
        for l in s.strip("\n").split("\n"):
            l = l.strip()
            if l:
                self.lines.append("    " + l)
    def label(self, l):
        self.lines.append(l + ":")
    def newlabel(self, p="L"):
        self.nlab += 1
        return f"{p}_{self.nlab}"
    def raw(self, s):
        self.lines.append(s)
    def text(self):
        return "\n".join(self.lines) + "\n"

def kernel_begin(a, name):
    a.raw(f".globl {name}")
    a.raw(".p2align 8")
    a.raw(f".type {name},@function")
    a.raw(f"{name}:")

def kernel_desc(name, vgprs, sgprs=102, accum=None):
    if accum is None:
        accum = (vgprs + 3) // 4 * 4
    return f""".p2align 6
.amdhsa_kernel {name}
  .amdhsa_next_free_vgpr {vgprs}
  .amdhsa_next_free_sgpr {sgprs}
  .amdhsa_accum_offset {accum}
  .amdhsa_group_segment_fixed_size 0
  .amdhsa_kernarg_size 128
  .amdhsa_user_sgpr_count 2
  .amdhsa_user_sgpr_kernarg_segment_ptr 1
  .amdhsa_system_sgpr_workgroup_id_x 1
.end_amdhsa_kernel
"""

def srd(a, s, base_lo, base_hi, size, off=0):
    if off:
        a(f"s_add_u32 s{s}, s{base_lo}, 0x{off:x}")
        a(f"s_addc_u32 s{s+1}, s{base_hi}, 0")
    else:
        a(f"s_mov_b32 s{s}, s{base_lo}")
        a(f"s_mov_b32 s{s+1}, s{base_hi}")
    a(f"s_mov_b32 s{s+2}, 0x{size:x}")
    a(f"s_mov_b32 s{s+3}, 0x00020000")

def vr(b, n=1):
    return f"v{b}" if n == 1 else f"v[{b}:{b+n-1}]"
def sr(b, n=1):
    return f"s{b}" if n == 1 else f"s[{b}:{b+n-1}]"


PROF_OFF = 0x4000000
class Prof:
    def __init__(self, a, on, kidx, regs, tmp):
        self.a, self.on, self.kidx, self.regs, self.tmp = a, on, kidx, regs, tmp
    def stamp(self, i, real=False):
        if not self.on: return
        a = self.a
        a(f"s_{'memrealtime' if real else 'memtime'} s[{self.tmp}:{self.tmp+1}]")
        a("s_waitcnt lgkmcnt(0)")
        a(f"s_mov_b32 s{self.regs[i]}, s{self.tmp}")
    def flush(self, ws_lo, ws_hi, srd_at, wave_sgpr, va, vb):
        if not self.on: return
        a = self.a
        srd(a, srd_at, ws_lo, ws_hi, 0x40000, PROF_OFF + self.kidx * 0x40000)
        a(f"s_lshl_b32 s{self.tmp}, s2, 3")
        a(f"s_add_u32 s{self.tmp}, s{self.tmp}, s{wave_sgpr}")
        a(f"s_lshl_b32 s{self.tmp}, s{self.tmp}, 6")
        a(f"v_mov_b32 v{va}, 0")
        a("s_mov_b64 exec, 1")
        for i, r in enumerate(self.regs):
            a(f"v_mov_b32 v{vb}, s{r}")
            a(f"buffer_store_dword v{vb}, v{va}, s[{srd_at}:{srd_at+3}], s{self.tmp} offen offset:{4*i}")
            a("s_nop 1")
        a("s_mov_b64 exec, -1")
```

```python
NAME = "parallel_sum__ssm_conv_s5__glu_gated_glu__prompt"

XN_OFF = 0x0000000; XN_SZ = 0x400000
ACT_OFF = 0x0400000; ACT_SZ = 0x1600000
EX_OFF = 0x1A00000; EX_SZ = 0x20000
FL_OFF = 0x1A20000; FL_SZ = 0x2000
GB_OFF = EX_OFF + EX_SZ
XB_OFF = 0x1B00000; XB_SZ = 0xC00000
TAG = 0x5AFEC0DE

class Asm:
    def __init__(self):
        self.lines = []
        self.nlab = 0
    def __call__(self, s):
        for l in s.strip("\n").split("\n"):
            l = l.strip()
            if not l:
                continue
            if l.endswith(":") and " " not in l:
                self.lines.append(l)
            else:
                self.lines.append("    " + l)
    def label(self, l):
        self.lines.append(l + ":")
    def newlabel(self, p="L"):
        self.nlab += 1
        return f"{p}_{self.nlab}"
    def raw(self, s):
        self.lines.append(s)
    def emit(self, lines):
        for l in lines:
            self(l)
    def text(self):
        return "\n".join(self.lines) + "\n"

def kernel_begin(a, name):
    a.raw(f".globl {name}")
    a.raw(".p2align 8")
    a.raw(f".type {name},@function")
    a.raw(f"{name}:")

def kernel_desc(name, vgprs, sgprs=102, accum=None):
    if accum is None:
        accum = (vgprs + 3) // 4 * 4
    return f""".p2align 6
.amdhsa_kernel {name}
  .amdhsa_next_free_vgpr {vgprs}
  .amdhsa_next_free_sgpr {sgprs}
  .amdhsa_accum_offset {accum}
  .amdhsa_group_segment_fixed_size 0
  .amdhsa_kernarg_size 128
  .amdhsa_user_sgpr_count 2
  .amdhsa_user_sgpr_kernarg_segment_ptr 1
  .amdhsa_system_sgpr_workgroup_id_x 1
.end_amdhsa_kernel
"""

def srd(a, s, base_lo, base_hi, size, off=0):
    if off:
        a(f"s_add_u32 s{s}, s{base_lo}, 0x{off:x}")
        a(f"s_addc_u32 s{s+1}, s{base_hi}, 0")
    else:
        a(f"s_mov_b32 s{s}, s{base_lo}")
        a(f"s_mov_b32 s{s+1}, s{base_hi}")
    a(f"s_mov_b32 s{s+2}, 0x{size:x}")
    a(f"s_mov_b32 s{s+3}, 0x00020000")

def vr(b, n=1):
    return f"v{b}" if n == 1 else f"v[{b}:{b+n-1}]"
def sr(b, n=1):
    return f"s{b}" if n == 1 else f"s[{b}:{b+n-1}]"

PROF_OFF = 0x4000000
class Prof:
    def __init__(self, a, on, kidx, regs, tmp):
        self.a, self.on, self.kidx, self.regs, self.tmp = a, on, kidx, regs, tmp
    def stamp(self, i, real=False):
        if not self.on: return
        a = self.a
        a(f"s_{'memrealtime' if real else 'memtime'} s[{self.tmp}:{self.tmp+1}]")
        a("s_waitcnt lgkmcnt(0)")
        a(f"s_mov_b32 s{self.regs[i]}, s{self.tmp}")
    def flush(self, ws_lo, ws_hi, srd_at, wave_sgpr, va, vb):
        if not self.on: return
        a = self.a
        srd(a, srd_at, ws_lo, ws_hi, 0x40000, PROF_OFF + self.kidx * 0x40000)
        a(f"s_lshl_b32 s{self.tmp}, s2, 3")
        a(f"s_add_u32 s{self.tmp}, s{self.tmp}, s{wave_sgpr}")
        a(f"s_lshl_b32 s{self.tmp}, s{self.tmp}, 6")
        a(f"v_mov_b32 v{va}, 0")
        a("s_mov_b64 exec, 1")
        for i, r in enumerate(self.regs):
            a(f"v_mov_b32 v{vb}, s{r}")
            a(f"buffer_store_dword v{vb}, v{va}, s[{srd_at}:{srd_at+3}], s{self.tmp} offen offset:{4*i}")
            a("s_nop 1")
        a("s_mov_b64 exec, -1")
```

```python
from common import *

K1 = "ssm_ln_kernel"
K1_LDS = 2560

def gen_k1(a):
    kernel_begin(a, K1)
    a("""
    s_cmp_ge_u32 s2, 256
    s_cbranch_scc1 K1_END
    s_load_dwordx2 s[4:5], s[0:1], 0
    s_load_dwordx2 s[6:7], s[0:1], 120
    v_and_b32 v1, 63, v0
    v_lshrrev_b32 v2, 6, v0
    v_and_b32 v3, 7, v1                 ; r
    v_lshrrev_b32 v4, 3, v1             ; part
    v_lshlrev_b32 v5, 5, v2
    v_add_u32 v5, v5, v4
    s_lshl_b32 s3, s2, 3
    v_add_u32 v6, s3, v3
    s_lshr_b32 s20, s2, 2
    s_lshl_b32 s20, s20, 5
    s_and_b32 s21, s2, 1
    s_lshl_b32 s21, s21, 4
    s_add_u32 s20, s20, s21
    s_and_b32 s21, s2, 2
    s_lshl_b32 s21, s21, 1
    s_add_u32 s20, s20, s21
    v_lshrrev_b32 v7, 2, v3
    v_and_b32 v8, 3, v3
    v_lshl_add_u32 v7, v7, 3, v8
    v_add_u32 v7, s20, v7               ; row
    v_lshlrev_b32 v7, 11, v7
    v_lshl_add_u32 v7, v5, 4, v7
    v_lshlrev_b32 v8, 15, v5
    v_lshl_add_u32 v8, v6, 4, v8
    v_mul_u32_u24 v9, 144, v3
    v_lshl_add_u32 v10, v2, 3, v4       ; w*8+part
    v_lshl_add_u32 v10, v10, 2, v9
    s_waitcnt lgkmcnt(0)
    """)
    srd(a, 8, 4, 5, 0x400000)
    srd(a, 12, 6, 7, XN_SZ, XN_OFF)
    srd(a, 16, 6, 7, EX_SZ, EX_OFF)
    for j in range(4):
        a(f"buffer_load_dwordx4 v[{16+4*j}:{19+4*j}], v7, s[8:11], 0 offen offset:{128*j}")
    a("""
    v_cmp_gt_u32 vcc, 32, v0
    s_and_saveexec_b64 s[20:21], vcc
    s_cbranch_execz K1_NOCLR
    s_lshl_b32 s22, s2, 9
    s_and_b32 s23, s2, 7
    s_lshl_b32 s23, s23, 1
    v_lshrrev_b32 v12, 4, v0
    v_add_u32 v12, s23, v12             ; row
    v_cmp_lt_u32 vcc, 6, v12
    v_lshlrev_b32 v11, 4, v0
    s_nop 1
    v_cndmask_b32 v12, 0, -1, vcc
    v_cndmask_b32 v13, 0, -1, vcc
    v_cndmask_b32 v14, 0, -1, vcc
    v_cndmask_b32 v15, 0, -1, vcc
    buffer_store_dwordx4 v[12:15], v11, s[16:19], s22 offen
    """)
    a.label("K1_NOCLR")
    a("s_mov_b64 exec, s[20:21]")
    a("s_waitcnt vmcnt(0)")
    for d in range(16):
        a(f"v_lshlrev_b32 v{32+2*d}, 16, v{16+d}")
        a(f"v_and_b32 v{33+2*d}, 0xffff0000, v{16+d}")
    for q in range(4):
        a(f"v_add_f32 v{64+q}, v{32+q}, v{36+q}")
    for d in range(8, 32, 4):
        for q in range(4):
            a(f"v_add_f32 v{64+q}, v{64+q}, v{32+d+q}")
    a("v_add_f32 v64, v64, v65")
    a("v_add_f32 v66, v66, v67")
    a("v_add_f32 v64, v64, v66")
    a("ds_write_b32 v10, v64")
    a("s_waitcnt lgkmcnt(0)")
    a("s_barrier")
    def reduce32(off, dst):
        for q in range(8):
            a(f"ds_read_b128 v[{68+4*q}:{71+4*q}], v9 offset:{off+16*q}")
        a("s_waitcnt lgkmcnt(0)")
        for n in (16, 8, 4, 2, 1):
            for q in range(n):
                a(f"v_add_f32 v{68+q}, v{68+q}, v{68+n+q}")
        a(f"v_mul_f32 v{dst}, 0x3a800000, v68")
    reduce32(0, 100)
    for d in range(32):
        a(f"v_sub_f32 v{68+d}, v{32+d}, v100")
    for q in range(4):
        a(f"v_mul_f32 v{64+q}, v{68+q}, v{68+q}")
    for d in range(4, 32, 4):
        for q in range(4):
            a(f"v_fmac_f32 v{64+q}, v{68+d+q}, v{68+d+q}")
    a("v_add_f32 v64, v64, v65")
    a("v_add_f32 v66, v66, v67")
    a("v_add_f32 v64, v64, v66")
    a("ds_write_b32 v10, v64 offset:1152")
    a("s_waitcnt lgkmcnt(0)")
    a("s_barrier")
    reduce32(1152, 101)
    a("""
    v_cvt_pk_bf16_f32 v102, v100, v101
    v_lshlrev_b32 v100, 16, v102
    v_and_b32 v101, 0xffff0000, v102
    v_add_f32 v101, 0x3727c5ac, v101        ; + 1e-5
    v_cvt_pk_bf16_f32 v101, v101, v101
    v_and_b32 v101, 0xffff0000, v101
    v_sqrt_f32 v101, v101
    s_nop 0
    v_cvt_pk_bf16_f32 v101, v101, v101
    v_and_b32 v101, 0xffff0000, v101
    v_rcp_f32 v101, v101
    s_nop 0
    """)
    for d in range(16):
        x0, x1 = 32 + 2*d, 33 + 2*d
        a(f"v_sub_f32 v{x0}, v{x0}, v100")
        a(f"v_sub_f32 v{x1}, v{x1}, v100")
        a(f"v_cvt_pk_bf16_f32 v{x0}, v{x0}, v{x1}")
        a(f"v_and_b32 v{x1}, 0xffff0000, v{x0}")
        a(f"v_lshlrev_b32 v{x0}, 16, v{x0}")
        a(f"v_mul_f32 v{x0}, v{x0}, v101")
        a(f"v_mul_f32 v{x1}, v{x1}, v101")
        a(f"v_cvt_pk_bf16_f32 v{16+d}, v{x0}, v{x1}")
    for j in range(4):
        a(f"s_mov_b32 s23, {8*32768*j}")
        a(f"buffer_store_dwordx4 v[{16+4*j}:{19+4*j}], v8, s[12:15], s23 offen")
    a.label("K1_END")
    a("s_endpgm")
    return 104
```

```python
from common import *
from stream import Stream

K2 = "ssm_gemm1_kernel"
SLOT = 21504
NSLOT = 6
SCR_W = NSLOT * SLOT
TABLE = SCR_W + 8 * 1792
K2_LDS = TABLE + 15 * 256

V_XO = 1
V_GA, V_SA0, V_SA1, V_D1 = 2, 3, 4, 5
Q0 = 2
GA2 = [6, 7, 8, 9]
V_D0, V_D2, V_ST, V_P16, V_SW, V_TB = 10, 11, 12, 13, 14, 15
LAM, TH, A1, CF, A8, A32 = 16, 18, 20, 24, 28, 32
V_D0B = 36
XR = 40
NXR = 6
WR = 88
NWR = 6
def SRE(b): return 112 + 8 * b
def SIM(b): return 128 + 8 * b
def PG(j): return 144 + 16 * j
def PU(j): return PG(j) + 8
T1 = 192
def xr(n, tb): return XR + 8 * (n % NXR) + 4 * tb
def wr(i): return WR + 4 * (i % NWR)

S_XN, S_G, S_U, S_D0, S_D1, S_D2, S_ACT, S_EXR, S_EXW, S_XB, S_P0, S_P1, S_P2 = range(8, 60, 4)
S_W, S_RB, S_CG, S_TW = 3, 4, 5, 6
S_X, S_O01, S_O2, S_M0, S_M1, S_M2, S_ST, S_SS, S_ER, S_EW, S_XBO, S_O96, S_CNT, S_T = range(76, 90)

L2E = "0x3fb8aa3b"
def f32(x):
    import struct
    return "0x%08x" % struct.unpack("<I", struct.pack("<f", x))[0]

def quad_mac(d, A, s):
    o = []
    for b in (0, 1):
        o.append(f"v_fma_f32 v{d+2*b}, v{A+2*b}, v{s+2*b}, v{d+2*b}")
        o.append(f"v_fma_f32 v{d+2*b+1}, v{A+2*b}, v{s+2*b+1}, v{d+2*b+1}")
    for b in (0, 1):
        o.append(f"v_fma_f32 v{d+2*b}, -v{A+2*b+1}, v{s+2*b+1}, v{d+2*b}")
        o.append(f"v_fma_f32 v{d+2*b+1}, v{A+2*b+1}, v{s+2*b}, v{d+2*b+1}")
    return o

def power(d, n, t):
    o = []
    for b in (0, 1):
        o.append(f"v_mul_f32 v{t+3*b}, {n}, v{LAM+b}")
        o.append(f"v_mul_f32 v{t+3*b+1}, {n}, v{TH+b}")
    for b in (0, 1):
        o.append(f"v_exp_f32 v{t+3*b}, v{t+3*b}")
        o.append(f"v_fract_f32 v{t+3*b+1}, v{t+3*b+1}")
    for b in (0, 1):
        o.append(f"v_cos_f32 v{t+3*b+2}, v{t+3*b+1}")
        o.append(f"v_sin_f32 v{t+3*b+1}, v{t+3*b+1}")
    for b in (0, 1):
        o.append(f"v_mul_f32 v{d+2*b}, v{t+3*b}, v{t+3*b+2}")
        o.append(f"v_mul_f32 v{d+2*b+1}, v{t+3*b}, v{t+3*b+1}")
    return o

def pack_store(O, d0, d1, soff_expr, flags):
    o = [f"v_cvt_pk_bf16_f32 v{O}, v{d0}, v{d0+1}",
         f"v_cvt_pk_bf16_f32 v{O+1}, v{d0+2}, v{d0+3}",
         f"v_cvt_pk_bf16_f32 v{O+2}, v{d1}, v{d1+1}",
         f"v_cvt_pk_bf16_f32 v{O+3}, v{d1+2}, v{d1+3}",
         soff_expr,
         f"v_permlane16_swap_b32 v{O}, v{O+2}",
         f"v_permlane16_swap_b32 v{O+1}, v{O+3}",
         f"buffer_store_dwordx4 {vr(O,4)}, v{V_ST}, s[{S_ACT}:{S_ACT+3}], s{S_T} offen {flags}".rstrip()]
    return o

def glu(j, flags):
    G = [PG(j) + r for r in range(8)]; U = [PU(j) + r for r in range(8)]
    o = []
    o += [f"v_mul_f32 v{g}, 0xbfb8aa3b, v{g}" for g in G]
    o += [f"v_exp_f32 v{g}, v{g}" for g in G]
    o += [f"v_add_f32 v{g}, 1.0, v{g}" for g in G]
    o += [f"v_rcp_f32 v{g}, v{g}" for g in G]
    o += [f"v_mul_f32 v{g}, v{g}, v{u}" for g, u in zip(G, U)]
    o += pack_store(PU(j), PG(j), PG(j) + 4, f"s_add_u32 s{S_T}, s{S_ST}, {j*65536}", flags)
    return o

def gen_k2(a, store_flags="", prof=False, opts=None):
    opts = opts or {}
    flags = store_flags.replace("+", " ")
    RATE2 = float(opts.get("rate2", 1.5))
    RATE3 = float(opts.get("rate3", 3))
    NOEPI = int(opts.get("noepi", 0))
    POLLFIRST = int(opts.get("pollfirst", 1))
    NT1 = int(opts.get("nt1", 2))
    kernel_begin(a, K2)
    P = Prof(a, prof, 1, list(range(90, 100)), 100)
    a("""
    s_cmp_ge_u32 s2, 256
    s_cbranch_scc1 K2_END
    """)
    P.stamp(0, real=True)
    P.stamp(1)
    a(f"""
    s_load_dwordx4 s[72:75], s[0:1], 80     ; w_gate, w_up
    s_load_dwordx2 s[70:71], s[0:1], 120    ; ws
    s_load_dwordx4 s[64:67], s[0:1], 24
    s_load_dwordx4 s[60:63], s[0:1], 8
    s_load_dwordx2 s[68:69], s[0:1], 56     ; log_dt
    v_lshrrev_b32 v240, 6, v0
    v_and_b32 v0, 63, v0                    ; lane
    v_readfirstlane_b32 s{S_W}, v240         ; wave
    s_and_b32 s7, s2, 7                     ; xcd
    s_lshr_b32 s{S_CG}, s2, 3
    s_and_b32 s{S_RB}, s{S_CG}, 7
    s_lshr_b32 s{S_CG}, s{S_CG}, 3
    s_lshl_b32 s7, s7, 2
    s_add_u32 s{S_CG}, s{S_CG}, s7
    s_lshl_b32 s{S_TW}, s{S_RB}, 12         ; 256*rb*16
    s_lshl_b32 s7, s{S_W}, 9                ; 32*w*16
    s_add_u32 s{S_TW}, s{S_TW}, s7          ; tw*16
    s_mov_b32 s{S_X}, s{S_TW}
    s_mul_i32 s{S_O01}, s{S_CG}, 224
    s_add_u32 s{S_O96}, s{S_O01}, 96
    s_lshl_b32 s{S_O2}, s{S_CG}, 16
    s_lshl_b32 s{S_M0}, s{S_W}, 10
    s_add_u32 s{S_M1}, s{S_M0}, 8192
    s_add_u32 s{S_M2}, s{S_M0}, 12288
    s_cmp_lt_u32 s{S_W}, 4
    s_cselect_b32 s{S_M1}, s{S_M1}, 20480
    ; ---- DMA lane offsets.  GLU type: q = 64 i' + lane, rho = q / 6, ch = q % 6, k = swap23(rho)
    s_sub_u32 s7, s{S_W}, 6
    s_cmp_lt_u32 s{S_W}, 6
    s_cselect_b32 s7, s{S_W}, s7
    s_lshl_b32 s7, s7, 6                    ; 64 i' (u=0)
    s_lshl_b32 s{S_T}, s{S_W}, 6
    s_add_u32 s{S_T}, s{S_T}, 128           ; 64 i' (u=1)
    v_add_u32 v241, s7, v0
    v_add_u32 v242, s{S_T}, v0
    """)
    for (q, d) in ((241, V_D0), (242, V_D1)):
        a(f"""
        v_mul_u32_u24 v243, 10923, v{q}
        v_lshrrev_b32 v243, 16, v243              ; rho
        v_mul_u32_u24 v244, 6, v243
        v_sub_u32 v244, v{q}, v244                ; ch
        v_and_b32 v245, 0x33, v243
        v_and_b32 v246, 4, v243
        v_lshl_or_b32 v245, v246, 1, v245
        v_and_b32 v246, 8, v243
        v_lshrrev_b32 v246, 1, v246
        v_or_b32 v245, v245, v246                  ; k
        v_mul_u32_u24 v245, 7168, v245
        v_lshl_add_u32 v{d}, v244, 4, v245
        """)
    a(f"""
    s_and_b32 s7, s{S_W}, 3
    s_lshl_b32 s7, s7, 3
    v_lshrrev_b32 v243, 3, v0
    v_add_u32 v243, s7, v243                  ; row
    v_lshrrev_b32 v244, 1, v243
    v_xor_b32 v244, v244, v0
    v_and_b32 v244, 7, v244
    v_lshlrev_b32 v244, 4, v244
    v_lshl_add_u32 v{V_D2}, v243, 11, v244
    ; X: (l>>4)*32768 + (l&15)*16
    v_lshrrev_b32 v243, 4, v0                ; g
    v_and_b32 v244, 15, v0                   ; n
    v_lshlrev_b32 v245, 4, v244
    v_lshl_add_u32 v{V_XO}, v243, 15, v245
    s_waitcnt lgkmcnt(0)
    """)
    srd(a, S_XN, 70, 71, XN_SZ, XN_OFF)
    a(f"""
    s_cmp_lt_u32 s{S_W}, 6
    s_cselect_b32 s{S_D0}, s72, s74
    s_cselect_b32 s{S_D0+1}, s73, s75
    s_mov_b32 s{S_D0+2}, 0x700000
    s_mov_b32 s{S_D0+3}, 0x00020000
    s_cmp_lt_u32 s{S_W}, 4
    s_mov_b32 s{S_D1}, s74
    s_mov_b32 s{S_D1+1}, s75
    s_cselect_b32 s{S_D1+2}, 0x700000, 0
    s_mov_b32 s{S_D1+3}, 0x00020000
    s_cselect_b32 s{S_D2}, s64, s66
    s_cselect_b32 s{S_D2+1}, s65, s67
    s_mov_b32 s{S_D2+2}, 0x200000
    s_mov_b32 s{S_D2+3}, 0x00020000
    """)
    a(f"s_mov_b32 s{S_CNT}, 0")
    st = Stream(a)
    def dma(s):
        slot = (s % NSLOT) * SLOT
        g = []
        if s < 16:
            g.append([f"s_add_u32 m0, s{S_M0}, {slot}", "s_nop 0", (f"buffer_load_dwordx4 v{V_D0}, s[{S_D0}:{S_D0+3}], s{S_O01} offen lds", ("D", s, 0))])
            g.append([f"s_add_u32 m0, s{S_M1}, {slot}", "s_nop 0", (f"buffer_load_dwordx4 v{V_D1}, s[{S_D1}:{S_D1+3}], s{S_O01} offen lds", ("D", s, 1)),
                      f"s_add_u32 s{S_O01}, s{S_O01}, 458752"])
            g.append([f"s_add_u32 m0, s{S_M2}, {slot}", "s_nop 0", (f"buffer_load_dwordx4 v{V_D2}, s[{S_D2}:{S_D2+3}], s{S_O2} offen lds", ("D", s, 2)),
                      f"s_add_u32 s{S_O2}, s{S_O2}, 128"])
        else:
            pre = [f"s_mov_b32 s{S_O01}, s{S_O96}"] if s == 16 else []
            g.append(pre + [f"s_add_u32 m0, s{S_M0}, {slot}", "s_nop 0", (f"buffer_load_dwordx4 v{V_D0B}, s[{S_G}:{S_G+3}], s{S_O01} offen lds", ("D", s, 0))])
            g.append([f"s_add_u32 m0, s{S_M0}, {slot+8192}", "s_nop 0", (f"buffer_load_dwordx4 v{V_D0B}, s[{S_U}:{S_U+3}], s{S_O01} offen lds", ("D", s, 1)),
                      f"s_add_u32 s{S_O01}, s{S_O01}, 458752"])
        return g
    def dtags(s): return [("D", s, u) for u in range(3 if s < 16 else 2)]
    def xload(n):
        g = [(f"buffer_load_dwordx4 {vr(xr(n,0),4)}, v{V_XO}, s[{S_XN}:{S_XN+3}], s{S_X} offen", ("X", n, 0)),
             (f"buffer_load_dwordx4 {vr(xr(n,1),4)}, v{V_XO}, s[{S_XN}:{S_XN+3}], s{S_X} offen offset:256", ("X", n, 1))]
        if n == 31: g.append(f"s_mov_b32 s{S_X}, s{S_TW}")
        else: g.append(f"s_add_u32 s{S_X}, s{S_X}, 131072")
        return [g]
    def emit_group(g):
        for x in g:
            if isinstance(x, tuple): st.ins(x[0], x[1])
            elif x.endswith(":"): a.label(x[:-1])
            else: st.ins(x)
    for grp in dma(0): emit_group(grp)
    for n in (0, 1):
        for grp in xload(n): emit_group(grp)
    for grp in dma(1): emit_group(grp)
    for n in (2, 3):
        for grp in xload(n): emit_group(grp)
    for grp in dma(2): emit_group(grp)
    for n in (4, 5):
        for grp in xload(n): emit_group(grp)
    for s in (3, 4, 5):
        for grp in dma(s): emit_group(grp)
    P.stamp(2)
    srd(a, S_G, 72, 73, 0x700000)
    srd(a, S_U, 74, 75, 0x700000)
    srd(a, S_ACT, 70, 71, ACT_SZ, ACT_OFF)
    srd(a, S_EXR, 70, 71, EX_SZ, EX_OFF)
    srd(a, S_EXW, 70, 71, EX_SZ, EX_OFF)
    a(f"""
    s_cmp_eq_u32 s{S_W}, 7
    s_cselect_b32 s{S_EXW+2}, 0x{EX_SZ:x}, 0
    """)
    srd(a, S_XB, 70, 71, XB_SZ, XB_OFF)
    srd(a, S_P0, 60, 61, 2048)
    srd(a, S_P1, 62, 63, 2048)
    srd(a, S_P2, 68, 69, 2048)
    a(f"""
    v_lshrrev_b32 v246, 2, v0
    v_and_b32 v246, 3, v246                   ; r
    v_and_b32 v247, 3, v0                    ; c
    v_and_b32 v248, 1, v243
    v_lshl_add_u32 v248, v248, 2, v246
    v_lshrrev_b32 v249, 1, v243
    v_lshl_add_u32 v248, v249, 4, v248
    v_mul_u32_u24 v248, 96, v248
    v_lshl_add_u32 v{V_GA}, v247, 3, v248
    ; S address: 12288 + n*128 + ((g ^ (n>>1))*16)
    v_lshrrev_b32 v248, 1, v244
    v_xor_b32 v248, v248, v243
    v_lshlrev_b32 v248, 4, v248
    v_lshl_add_u32 v248, v244, 7, v248
    v_add_u32 v{V_SA0}, 12288, v248
    v_xor_b32 v{V_SA1}, 64, v{V_SA0}
    v_lshlrev_b32 v250, 1, v244
    s_lshl_b32 s7, s{S_CG}, 6
    """)
    PL = T1
    for i, sp in enumerate((S_P0, S_P1, S_P2)):
        for b in (0, 1):
            st.ins(f"buffer_load_ushort v{PL+2*i+b}, v250, s[{sp}:{sp+3}], s7 offen offset:{32*b}", ("PL", i, b))
    F1 = []
    def I(q, lst):
        for x in lst: q.append(("i", x))
    t = T1 + 8
    I(F1, [
        f"v_lshrrev_b32 v{t}, 4, v0",
        f"v_lshrrev_b32 v{t+1}, 2, v0",
        f"v_and_b32 v{t+1}, 3, v{t+1}",
        f"v_and_b32 v{t+2}, 3, v0",
        f"v_lshl_add_u32 v{t+3}, v{t}, 3, v{t+1}",
        f"v_lshlrev_b32 v{t+3}, 7, v{t+3}",
        f"v_lshl_add_u32 v{t+3}, v{t+2}, 3, v{t+3}",
        f"v_lshrrev_b32 v{t+4}, 1, v{t+1}",
        f"v_and_b32 v{t+5}, 1, v{t}",
        f"v_lshl_or_b32 v{t+4}, v{t+5}, 1, v{t+4}",
    ])
    for w in range(4):
        I(F1, [f"v_xor_b32 v{t+5}, {w}, v{t+4}", f"v_lshl_add_u32 v{GA2[w]}, v{t+5}, 5, v{t+3}"])
    I(F1, [
        f"s_lshl_b32 s7, s{S_W}, 3",
        f"v_lshrrev_b32 v{t+6}, 3, v0",
        f"v_add_u32 v{t+6}, s7, v{t+6}",
        f"v_mul_u32_u24 v{t+6}, 7168, v{t+6}",
        f"s_and_b32 s7, s{S_W}, 1",
        f"s_lshl_b32 s7, s7, 1",
        f"v_and_b32 v{t+7}, 1, v{t}",
        f"v_or_b32 v{t+7}, s7, v{t+7}",
        f"v_lshrrev_b32 v{t+8}, 1, v0",
        f"v_and_b32 v{t+8}, 3, v{t+8}",
        f"v_xor_b32 v{t+7}, v{t+7}, v{t+8}",
        f"v_lshl_add_u32 v{t+6}, v{t+7}, 5, v{t+6}",
        f"v_and_b32 v{t+8}, 1, v0",
        f"v_lshl_add_u32 v{V_D0B}, v{t+8}, 4, v{t+6}",
        f"v_and_b32 v{t+2}, 15, v0",
        f"v_lshrrev_b32 v{t+6}, 2, v{t+2}",
        f"v_lshlrev_b32 v{t+6}, 3, v{t+6}",
        f"v_lshl_add_u32 v{t+6}, v{t+5-5+0}, 0, v{t+6}" if False else f"v_and_b32 v{t+7}, 1, v{t}",
        f"v_lshl_add_u32 v{t+6}, v{t+7}, 2, v{t+6}",
        f"v_and_b32 v{t+7}, 3, v{t+2}",
        f"v_add_u32 v{t+6}, v{t+6}, v{t+7}",
        f"v_lshlrev_b32 v{t+6}, 4, v{t+6}",
        f"v_lshrrev_b32 v{t+7}, 1, v{t}",
        f"v_lshl_add_u32 v{V_ST}, v{t+7}, 15, v{t+6}",
        f"v_lshlrev_b32 v{V_P16}, 4, v{t+2}",
        f"s_mul_i32 s7, s{S_W}, 1792",
        f"s_add_u32 s7, s7, {SCR_W}",
        f"v_lshl_add_u32 v{V_SW}, v{t}, 8, v{V_P16}",
        f"v_add_u32 v{V_SW}, s7, v{V_SW}",
        f"s_lshl_b32 s7, s{S_W}, 8",
        f"s_add_u32 s7, s7, {TABLE}",
        f"v_add_u32 v{V_TB}, s7, v{V_P16}",
        f"s_mul_i32 s{S_ST}, s{S_CG}, {14*32768}",
        f"s_add_u32 s{S_ST}, s{S_ST}, s{S_TW}",
        f"s_lshl_b32 s{S_SS}, s{S_CG}, 17",
        f"s_add_u32 s{S_SS}, s{S_SS}, s{S_TW}",
        f"s_add_u32 s{S_SS}, s{S_SS}, {448*32768}",
        f"s_lshl_b32 s{S_ER}, s{S_CG}, 12",
        f"s_lshl_b32 s7, s{S_RB}, 8",
        f"s_add_u32 s{S_ER}, s{S_ER}, s7",
        f"s_add_u32 s{S_EW}, s{S_ER}, {7*256}",
        f"s_lshl_b32 s{S_XBO}, s2, 15",
        f"s_lshl_b32 s7, s{S_W}, 12",
        f"s_add_u32 s{S_XBO}, s{S_XBO}, s7",
        f"v_mov_b32 v{t+12}, 0", f"v_mov_b32 v{t+13}, 0", f"v_mov_b32 v{t+14}, 0", f"v_mov_b32 v{t+15}, 0",
        f"ds_write_b128 v{V_SW}, {vr(t+12,4)}",
        f"ds_write_b128 v{V_TB}, {vr(t+12,4)}",
        f"v_mov_b32 v{t+16}, -1", f"v_mov_b32 v{t+17}, -1", f"v_mov_b32 v{t+18}, -1", f"v_mov_b32 v{t+19}, -1",
        f"v_lshlrev_b32 v{t+20}, 4, v0",
    ])
    for k in range(4):
        I(F1, [f"buffer_store_dwordx4 {vr(t+16,4)}, v{t+20}, s[{S_XB}:{S_XB+3}], s{S_XBO} offen offset:{k*1024}"])
    F1.append(("need", [("PL", i, b) for i in range(3) for b in (0, 1)]))
    u = T1 + 32
    for b in (0, 1):
        lre, lim, dt = PL + b, PL + 2 + b, PL + 4 + b
        q = u + 8 * b
        I(F1, [
            f"v_lshlrev_b32 v{lre}, 16, v{lre}",
            f"v_lshlrev_b32 v{lim}, 16, v{lim}",
            f"v_lshlrev_b32 v{dt}, 16, v{dt}",
            f"v_mul_f32 v{dt}, {L2E}, v{dt}",
            f"v_exp_f32 v{dt}, v{dt}",
            f"v_cvt_pk_bf16_f32 v{dt}, v{dt}, v{dt}",
            f"v_and_b32 v{dt}, 0xffff0000, v{dt}",
            f"v_mul_f32 v{q}, v{dt}, v{lre}",
            f"v_mul_f32 v{q+1}, v{dt}, v{lim}",
            f"v_mul_f32 v{LAM+b}, {L2E}, v{q}",
            f"v_mul_f32 v{TH+b}, 0x3e22f983, v{q+1}",
        ])
    I(F1, power(A1, "1.0", u + 16))
    for b in (0, 1):
        lre, lim = PL + b, PL + 2 + b
        ar, ai = A1 + 2 * b, A1 + 2 * b + 1
        q = u + 8 * b
        I(F1, [
            f"v_add_f32 v{q}, -1.0, v{ar}",
            f"v_mul_f32 v{q+1}, v{lre}, v{lre}",
            f"v_fmac_f32 v{q+1}, v{lim}, v{lim}",
            f"v_rcp_f32 v{q+1}, v{q+1}",
            f"v_mul_f32 v{q+2}, v{q}, v{lre}",
            f"v_fmac_f32 v{q+2}, v{ai}, v{lim}",
            f"v_mul_f32 v{q+3}, v{ai}, v{lre}",
            f"v_fma_f32 v{q+3}, -v{q}, v{lim}, v{q+3}",
            f"v_add_f32 v{q+1}, v{q+1}, v{q+1}",
            f"v_mul_f32 v{CF+2*b}, v{q+2}, v{q+1}",
            f"v_mul_f32 v{CF+2*b+1}, v{q+3}, v{q+1}",
        ])
    I(F1, power(A8, "0x41000000", u + 16))
    I(F1, power(A32, "0x42000000", u + 16))

    F2 = []
    R0, R1, R2 = PG(0), PG(1), PG(2)
    I(F2, glu(0, flags))
    F2.append(("atS",))
    cur = [(SRE(b), SIM(b)) for b in (0, 1)]
    for j in range(1, 8):
        d = R0 if (j & 1) else R0 + 4
        for b in (0, 1):
            F2.append(("i", f"v_fma_f32 v{d+2*b}, v{A1+2*b}, v{cur[b][0]}, v{SRE(b)+j}"))
            F2.append(("i", f"v_fma_f32 v{d+2*b+1}, v{A1+2*b}, v{cur[b][1]}, v{SIM(b)+j}"))
        for b in (0, 1):
            F2.append(("i", f"v_fma_f32 v{d+2*b}, -v{A1+2*b+1}, v{cur[b][1]}, v{d+2*b}"))
            F2.append(("i", f"v_fma_f32 v{d+2*b+1}, v{A1+2*b+1}, v{cur[b][0]}, v{d+2*b+1}"))
        cur = [(d + 2 * b, d + 2 * b + 1) for b in (0, 1)]
    I(F2, [f"ds_write_b128 v{V_SW}, {vr(R0,4)} offset:768"])
    for k in range(3):
        F2.append(("t", f"ds_read_b128 {vr(R0+4+4*k,4)}, v{V_SW} offset:{256*k}", ("SW", k)))
    F2.append(("gapn", 3))
    F2.append(("need", [("SW", 2)]))
    I(F2, quad_mac(R0 + 8, A8, R0 + 4))
    I(F2, quad_mac(R0 + 12, A8, R0 + 8))
    I(F2, quad_mac(R0, A8, R0 + 12))
    F2.append(("g", ["s_mov_b32 exec_lo, 0", "s_mov_b32 exec_hi, 0xffff0000",
                     (f"ds_write_b128 v{V_TB}, {vr(R0,4)} offset:{7*256}", "TW"), "s_mov_b64 exec, -1"]))
    F2.append(("mark", "TW"))
    F2.append(("at1",))
    I(F2, glu(1, flags))
    F2.append(("afterbar", "TW"))
    rows = [R1, R1 + 4, R1 + 8, R1 + 12, R0 + 4, R0 + 8, Q0]
    for k in range(7):
        F2.append(("t", f"ds_read_b128 {vr(rows[k],4)}, v{V_TB} offset:{256*k}", ("TR", k)))
    F2.append(("gapn", 2))
    for k in range(1, 7):
        F2.append(("need", [("TR", k - 1), ("TR", k)]))
        I(F2, quad_mac(rows[k], A32, rows[k-1]))
    I(F2, quad_mac(R0, A32, Q0))
    I(F2, [f"s_mov_b32 s7, 0xfffffffe"])
    I(F2, [f"v_min_u32 v{R0+r}, s7, v{R0+r}" for r in range(4)])
    F2.append(("g", ["s_mov_b32 exec_lo, 0", "s_mov_b32 exec_hi, 0xffff0000",
                     f"buffer_store_dwordx4 {vr(R0,4)}, v{V_P16}, s[{S_EXW}:{S_EXW+3}], s{S_EW} offen sc1", "s_mov_b64 exec, -1"]))
    F2.append(("stamp", 4))
    I(F2, [f"v_lshrrev_b32 v{R1+12}, 4, v0", f"v_lshlrev_b32 v{R1+12}, 3, v{R1+12}", f"v_cvt_f32_u32 v{R1+13}, v{R1+12}"])
    I(F2, power(R1, f"v{R1+13}", R1 + 4))
    I(F2, quad_mac(R0 + 12, R1, Q0))
    I(F2, [f"s_lshl_b32 s7, s{S_W}, 5", f"v_add_u32 v{V_D0}, s7, v{R1+12}", f"v_cvt_f32_u32 v{V_D0}, v{V_D0}"])
    F2.append(("at", int(opts.get("pollat", 0))))
    prow = [R1, R1 + 4, R1 + 8, R1 + 12, R0, R0 + 4, R0 + 8]
    def poll_loads(tagged):
        o = []
        for k in range(7):
            s = f"buffer_load_dwordx4 {vr(prow[k],4)}, v{V_P16}, s[{S_EXR}:{S_EXR+3}], s{S_ER} offen offset:{256*k} sc1"
            o.append((s, ("PR", k)) if tagged else s)
        return o
    if POLLFIRST:
        for x in poll_loads(True): F2.append(("t", x[0], x[1]))
    I(F2, glu(2, flags))
    I(F2, power(R2, "0x43800000", R2 + 8))
    I(F2, power(R2 + 4, f"v{V_D0}", R2 + 8))
    if not POLLFIRST:
        for x in poll_loads(True): F2.append(("t", x[0], x[1]))
    F2.append(("gapn", int(opts.get("pollgap", 0))))
    F2.append(("need", [("PR", 6)]))
    def maxchain():
        m = V_D2
        regs = [r + i for r in prow for i in range(4)]
        o = [f"v_max3_u32 v{m}, v{regs[0]}, v{regs[1]}, v{regs[2]}"]
        for k in range(3, 27, 2):
            o.append(f"v_max3_u32 v{m}, v{m}, v{regs[k]}, v{regs[k+1]}")
        o.append(f"v_max_u32 v{m}, v{m}, v{regs[27]}")
        o.append(f"v_cmp_eq_u32 vcc, -1, v{m}")
        return o
    I(F2, maxchain())
    F2.append(("g", ["s_nop 3", "s_cmp_eq_u64 vcc, 0", "s_cbranch_scc0 K2_SLOW", "K2_BACK:"]))
    for k in range(1, 7):
        I(F2, quad_mac(prow[k], R2, prow[k-1]))
    I(F2, quad_mac(R0 + 12, R2 + 4, R0 + 8))
    H = [R0 + 12, R2 + 8]
    TT = R2 + 12
    for j in range(8):
        s_, d = H[j & 1], H[(j + 1) & 1]
        for b in (0, 1):
            F2.append(("i", f"v_fma_f32 v{d+2*b}, v{A1+2*b}, v{s_+2*b}, v{SRE(b)+j}"))
            F2.append(("i", f"v_fma_f32 v{d+2*b+1}, v{A1+2*b}, v{s_+2*b+1}, v{SIM(b)+j}"))
        for b in (0, 1):
            F2.append(("i", f"v_fma_f32 v{d+2*b}, -v{A1+2*b+1}, v{s_+2*b+1}, v{d+2*b}"))
            F2.append(("i", f"v_fma_f32 v{d+2*b+1}, v{A1+2*b+1}, v{s_+2*b}, v{d+2*b+1}"))
        for b in (0, 1):
            F2.append(("i", f"v_mul_f32 v{TT+2*b}, v{CF+2*b+1}, v{d+2*b+1}"))
            F2.append(("i", f"v_mul_f32 v{TT+2*b+1}, v{CF+2*b+1}, v{d+2*b}"))
        for b in (0, 1):
            F2.append(("i", f"v_fma_f32 v{SRE(b)+j}, v{CF+2*b}, v{d+2*b}, -v{TT+2*b}"))
            F2.append(("i", f"v_fma_f32 v{SIM(b)+j}, -v{CF+2*b}, v{d+2*b+1}, -v{TT+2*b+1}"))
    SEL = R1
    I(F2, [
        f"v_and_b32 v{R1+8}, 15, v0",
        f"v_lshrrev_b32 v{R1+9}, 2, v{R1+8}",
        f"v_lshrrev_b32 v{R1+10}, 4, v0",
        f"v_and_b32 v{R1+11}, 1, v0",
        f"v_lshlrev_b32 v{R1+11}, 4, v{R1+11}",
        f"v_mov_b32 v{R1+12}, 0x3f80",
        f"v_lshlrev_b32 v{R1+12}, v{R1+11}, v{R1+12}",
        f"v_cmp_eq_u32 vcc, v{R1+9}, v{R1+10}",
        f"v_mov_b32 v{SEL}, 0", f"v_mov_b32 v{SEL+1}, 0",
        f"v_cndmask_b32 v{R1+12}, 0, v{R1+12}, vcc",
        f"v_and_b32 v{R1+13}, 2, v0",
        f"v_cmp_eq_u32 vcc, 0, v{R1+13}",
        f"v_mov_b32 v{SEL+4}, 0", f"v_mov_b32 v{SEL+5}, 0",
        f"v_cndmask_b32 v{SEL+2}, 0, v{R1+12}, vcc",
        f"v_cndmask_b32 v{SEL+3}, v{R1+12}, 0, vcc",
    ])
    outs = [(SRE(0), 0), (SRE(1), 65536), (SIM(0), 4194304), (SIM(1), 4194304 + 65536)]
    for k, (X, off) in enumerate(outs):
        for q in range(4):
            F2.append(("i", f"v_cvt_pk_bf16_f32 v{X+q}, v{X+2*q}, v{X+2*q+1}"))
    for k, (X, off) in enumerate(outs):
        d1 = R1 + 8 + 4 * (k & 1)
        F2.append(("i", f"v_mfma_f32_16x16x32_bf16 {vr(X+4,4)}, {vr(X,4)}, {vr(SEL+2,4)}, 0"))
        F2.append(("i", f"v_mfma_f32_16x16x32_bf16 {vr(d1,4)}, {vr(X,4)}, {vr(SEL,4)}, 0"))
        if k >= 1:
            Xp, offp = outs[k-1]
            I(F2, pack_store(Xp, Xp + 4, R1 + 8 + 4 * ((k - 1) & 1), f"s_add_u32 s{S_T}, s{S_SS}, {offp}", flags))
        else:
            F2.append(("gapn", 3))
    F2.append(("gapn", 3))
    Xp, offp = outs[3]
    I(F2, pack_store(Xp, Xp + 4, R1 + 12, f"s_add_u32 s{S_T}, s{S_SS}, {offp}", flags))
    if NOEPI:
        F2 = []

    pairs = []
    def mm(d, A, B, first):
        return f"v_mfma_f32_16x16x32_bf16 {vr(d,4)}, {vr(A,4)}, {vr(B,4)}, {'0' if first else vr(d,4)}"
    def add_pair(n, kind, idx):
        s = n // 2; h = n & 1
        slot = (s % NSLOT) * SLOT
        first = (n % 32 == 0)
        if kind == "S":
            im, b = idx
            rd = [("ds_read_b128", (V_SA0, V_SA1)[h], slot, im * 4096 + b * 2048, 0, 4)]
            D = SIM(b) if im else SRE(b)
        elif kind == "W1":
            j, up = idx
            o = up * 6144 + h * 3072 + j * 32
            rd = [("ds_read_b64_tr_b16", V_GA, slot, o, 0, 2), ("ds_read_b64_tr_b16", V_GA, slot, o + 768, 2, 2)]
            D = PU(j) if up else PG(j)
        else:
            j, up = idx
            o = up * 8192 + h * 4096
            rd = [("ds_read_b64_tr_b16", GA2[j-3], slot, o, 0, 2), ("ds_read_b64_tr_b16", GA2[j-3], slot, o + 512, 2, 2)]
            D = PU(j) if up else PG(j)
        pairs.append(dict(n=n, stage=s, kind=kind, rd=rd, D=D, first=first, idx=idx))
    def add_S(n):
        for im in (0, 1):
            for b in (0, 1): add_pair(n, "S", (im, b))
    for n in range(32 - NT1):
        add_S(n)
        for j in range(3):
            for up in (0, 1): add_pair(n, "W1", (j, up))
    for n in range(32 - NT1, 32):
        for up in (0, 1): add_pair(n, "W1", (0, up))
    F2START = len(pairs) + (1 if NT1 else 0)
    for n in range(32 - NT1, 32): add_S(n)
    SDONE = len(pairs) + 1
    for j in (1, 2):
        for n in range(32 - NT1, 32):
            for up in (0, 1): add_pair(n, "W1", (j, up))
    if NT1 == 0: F2START = SDONE = len(pairs) + 1
    P1END = len(pairs)
    NTAIL = int(opts.get("ntail", 4))
    for n in range(32, 64 - NTAIL):
        for j in range(3, 7):
            for up in (0, 1): add_pair(n, "W2", (j, up))
    tail0 = len(pairs)
    for j in range(3, 7):
        for n in range(64 - NTAIL, 64):
            for up in (0, 1): add_pair(n, "W2", (j, up))
    NP = len(pairs)
    F3 = []
    for j in range(3, 6):
        F3.append(("at", tail0 + (j - 2) * 2 * NTAIL + 1))
        I(F3, glu(j, flags))

    base = {}
    state = dict(bar=-1, marks={}, nbar=0)
    hq = []
    pend = []
    def barrier_for(stage):
        while state["bar"] < stage:
            s = state["bar"] + 1
            st.need(*(dtags(s) + pend))
            pend.clear()
            st.ins("s_barrier")
            state["bar"] = s; state["nbar"] += 1
            if s >= 2 and s + 4 < 32:
                hq.extend(dma(s + 4))
    def read_ins(k):
        p = pairs[k]
        barrier_for(p["stage"])
        o = []
        for (op, areg, slot, off, ro, cnt) in p["rd"]:
            cur = base.get(areg, 0)
            rel = slot + off - cur
            if rel < 0 or rel > 65535 - 1024:
                delta = slot - cur
                o.append((f"v_add_u32 v{areg}, {delta & 0xffffffff}, v{areg}" if delta >= 0 else f"v_subrev_u32 v{areg}, {-delta}, v{areg}", None))
                base[areg] = slot
                rel = off
            o.append((f"{op} {vr(wr(k)+ro,cnt)}, v{areg} offset:{rel}", ("W", k, ro)))
        return o
    def wtags(k): return [("W", k, r[4]) for r in pairs[k]["rd"]]
    fq = dict(q=F1, pos=0, credit=0.0, hold=0)
    def run_fillers(i, budget):
        used = 0
        while hq and used < max(budget, 1) + 1:
            g = hq.pop(0); emit_group(g); used += 1
        q = fq["q"]
        while fq["pos"] < len(q) and used < budget:
            it = q[fq["pos"]]
            k = it[0]
            if k == "i": st.ins(it[1]); used += 1
            elif k == "t": st.ins(it[1], it[2]); used += 1
            elif k == "g": emit_group(it[1]); used += 2
            elif k == "need": st.need(*it[1])
            elif k == "mark": pend.append(it[1]); state["marks"][it[1]] = state["nbar"]
            elif k == "afterbar":
                if state["nbar"] <= state["marks"][it[1]]: return
            elif k == "at":
                if i < it[1]: return
            elif k == "atS":
                if i < SDONE: return
            elif k == "at1":
                if i < P1END + 1: return
            elif k == "gapn":
                if fq["hold"] < it[1]:
                    fq["hold"] += 1; return
                fq["hold"] = 0
            elif k == "label": a.label(it[1])
            elif k == "stamp": P.stamp(it[1])
            fq["pos"] += 1
    def flush_fillers():
        while hq or fq["pos"] < len(fq["q"]):
            before = (len(hq), fq["pos"], fq["hold"])
            run_fillers(10**9, 1000)
            if (len(hq), fq["pos"], fq["hold"]) == before:
                raise RuntimeError("filler stuck %r" % (fq["q"][fq["pos"]],))
            if fq["hold"]: st.ins("s_nop 3")
    for k in range(NWR - 1):
        for ins, tag in read_ins(k): st.ins(ins, tag)
    P.stamp(3)
    acc_credit = 0.0
    last_use = {}
    for i, p in enumerate(pairs): last_use[p["n"]] = i
    xat = {}
    for m in range(NXR, 64): xat.setdefault(last_use[m - NXR] + 1, []).append(m)
    for i in range(NP):
        p = pairs[i]
        if i == F2START:
            flush_fillers()
            fq.update(q=F2, pos=0, hold=0)
        if i == P1END:
            P.stamp(5)
        if i == tail0:
            if fq["pos"] < len(fq["q"]): print("K2: %d scan fillers left at tail" % (len(fq["q"]) - fq["pos"]))
            flush_fillers()
            fq.update(q=F3, pos=0, hold=0)
        rate = 1.0 if i < F2START else (RATE2 if i < tail0 else RATE3)
        n = p["n"]
        tg = wtags(i) + [("X", n, 0), ("X", n, 1)]
        if i % 2 == 0 and i + 1 < NP:
            tg += wtags(i + 1)
        st.need(*tg)
        rd = read_ins(i + NWR - 1) if i + NWR - 1 < NP else []
        g1 = []; g2 = []
        seen = 0
        for x in rd:
            if x[1] is None: (g1 if seen == 0 else g2).append(x)
            else:
                (g1 if seen == 0 else g2).append(x); seen += 1
        W, D = wr(i), p["D"]
        for tb in (0, 1):
            X = xr(n, tb - 0)
            if p["kind"] == "S": st.ins(mm(D + 4 * tb, X, W, p["first"]))
            else: st.ins(mm(D + 4 * tb, W, X, p["first"]))
            for ins, tag in (g1 if tb == 0 else g2): st.ins(ins, tag)
            if tb == 0:
                for m in xat.get(i, []): hq.extend(xload(m))
            acc_credit += rate
            bud = int(acc_credit); acc_credit -= bud
            run_fillers(i, bud)
    a("s_nop 7"); st.n += 8
    P.stamp(6)
    flush_fillers()
    for x in glu(6, flags): st.ins(x)
    print("K2: nops inserted", st.nops, "slots", st.n)
    P.stamp(7)
    if P.on:
        a(f"s_mov_b32 s{P.regs[8]}, s{S_CNT}")
        a("s_waitcnt vmcnt(0)")
    P.stamp(9, real=True)
    P.flush(70, 71, 60, S_W, 40, 41)
    a("s_endpgm")
    a.label("K2_SLOW")
    a(f"s_mov_b32 s{S_CNT}, 0")
    a.label("K2_SLOWL")
    for x in poll_loads(False): a(x)
    a("s_waitcnt vmcnt(0)")
    for x in maxchain(): a(x)
    a(f"""
    s_add_u32 s{S_CNT}, s{S_CNT}, 1
    s_nop 3
    s_cmp_eq_u64 vcc, 0
    s_cbranch_scc1 K2_BACK
    s_cmp_lt_u32 s{S_CNT}, 100000
    s_cbranch_scc1 K2_SLOWL
    s_branch K2_BACK
    """)
    a.label("K2_END")
    a("s_endpgm")
    return 256
```

```python
from common import *

K3 = "ssm_gemm2_kernel"
SLOT = 32768
NSLOT = 5
K3_LDS = NSLOT * SLOT

V_VOFF = 1
G_AD = 2
C_AD = 10
V_OUT = 14
V_XB = 15
TR = 16
VR = 48
ACC = 112
TMP = 176
V_BX, V_BN, V_BD = 216, 217, 218
NV = 220
def tf(b): return TR + 4 * b
def vf(s, tb): return VR + 8 * s + 4 * tb
def acc(b, tb): return ACC + 4 * (2 * b + tb)

S_WD, S_CRE, S_CIM, S_ACT, S_X, S_XN, S_D, S_XB, S_FL, S_OUT = 8, 12, 16, 20, 24, 28, 32, 36, 40, 44
S_T0, S_D0, S_V, S_CUR, S_DEL, S_CNT, S_PS, S_PM = 64, 65, 66, 67, 68, 69, 70, 71
S_XBO, S_XBP, S_XO1, S_FP, S_OS = 72, 73, 74, 75, 76

NOT = False
WRAP = 0
PACE = 0
TFL = ''
def t_read(kind, b, st):
    if kind == "G":
        return [f"ds_read_b64_tr_b16 {vr(tf(b),2)}, v{G_AD+b} offset:{st*8192}",
                f"ds_read_b64_tr_b16 {vr(tf(b)+2,2)}, v{G_AD+b} offset:{st*8192+1024}"]
    return [f"ds_read_b128 {vr(tf(b),4)}, v{C_AD+st} offset:{(b ^ 4)*4096}"]

def body(a, kind, nxt, opt, loop=False):
    nov = opt.get("nov")
    per = {"G": 2, "C": 1, None: 0}
    extra_vm = 0
    base_q = list(opt["base_loads"]) if nxt is None else []
    for sg in range(2):
        nk = kind if sg == 0 else nxt
        last_stage = (sg == 1 and nxt is None)
        fill = {}
        def put(st, b, g, ins):
            fill.setdefault((st, b, g), []).append(ins)
        for st in range(4):
            n = sg * 4 + st
            pv = (n - 1) % 8
            if not nov and (nxt is not None or n == 0):
                put(st, 1, 1, f"buffer_load_dwordx4 {vr(vf(pv,0),4)}, v{V_VOFF}, s[{S_ACT}:{S_ACT+3}], s{S_V} offen {opt['vfl']}")
                put(st, 2, 1, f"buffer_load_dwordx4 {vr(vf(pv,1),4)}, v{V_VOFF}, s[{S_ACT}:{S_ACT+3}], s{S_V} offen offset:{opt['voff2']} {opt['vfl']}")
                if opt.get("wrap"):
                    put(st, 2, 2, f"s_add_u32 s78, s78, 131072")
                    put(st, 3, 1, f"s_and_b32 s78, s78, 0x{opt['wrap']*4*131072-1:x}")
                    put(st, 3, 2, f"s_add_u32 s{S_V}, s77, s78")
                else:
                    put(st, 2, 2, f"s_add_u32 s{S_V}, s{S_V}, 131072")
            elif nxt is None:
                for slot in ((1, 1), (2, 1), (3, 1), (4, 1), (5, 1), (6, 1)):
                    while base_q and not base_q[0].startswith("buffer"):
                        put(st, slot[0], slot[1], base_q.pop(0))
                    if base_q:
                        put(st, slot[0], slot[1], base_q.pop(0))
        if not last_stage:
            put(0, 0, 1, f"s_cmp_eq_u32 s{S_CUR}, {(NSLOT-1)*SLOT}")
            put(0, 0, 2, f"s_cselect_b32 s{S_DEL}, s81, s80")
            put(1, 4, 1, f"s_add_u32 s{S_CUR}, s{S_CUR}, s{S_DEL}")
            if kind == "G" and nk == "G":
                for r, pos in enumerate([(2,3,1), (2,4,1), (2,4,2), (2,5,1), (2,6,1), (2,7,1), (3,3,1), (3,4,1)]):
                    put(*pos, f"v_add_u32 v{G_AD+r}, s{S_DEL}, v{G_AD+r}")
            if kind == "G" and nk == "C":
                for r, pos in enumerate([(2,4,1), (2,4,2), (2,5,1), (2,6,1)]):
                    put(*pos, f"v_add_u32 v{C_AD+r}, s{S_CUR}, v{C_AD+r}")
            if kind == "C":
                for st in range(4):
                    put(st, 4, 1, f"v_add_u32 v{C_AD+st}, s{S_DEL}, v{C_AD+st}")
            if opt.get("pace"):
                for st in range(4): put(st, 0, 2, "s_barrier")
            else:
                put(3, 0, 2, "s_barrier")
        if loop and sg == 1:
            put(3, 5, 1, f"s_sub_u32 s{S_CNT}, s{S_CNT}, 1")
            put(3, 6, 1, f"s_cmp_lg_u32 s{S_CNT}, 0")
        for st in range(4):
            n = sg * 4 + st
            nxk = kind if st < 3 else nk
            nxst = st + 1 if st < 3 else 0
            for b in range(8):
                if b % 2 == 0:
                    pc, pn = per[kind], per[nxk]
                    lg = {0: 5 * pc, 2: 4 * pc + pn, 4: 2 * pc + 3 * pn, 6: 5 * pn}[b]
                    w = f"lgkmcnt({min(lg,15)})"
                    if b == 0 and not nov:
                        if nxt is not None or n == 0:
                            vm = 12
                        else:
                            vm = 2 * (7 - n) + extra_vm
                        w = f"vmcnt({min(vm,63)}) " + w
                    a("s_waitcnt " + w)
                if b == 0:
                    rd = t_read(kind, 7, st)
                elif nxk is not None:
                    rd = t_read(nxk, b - 1, nxst)
                else:
                    rd = []
                g1 = rd[:1] + fill.get((st, b, 1), []); g2 = rd[1:] + fill.get((st, b, 2), [])
                for ins in g1 + g2:
                    if ins.startswith("buffer_load_dwordx2"): extra_vm += 1
                A, C0, C1 = tf(b), acc(b, 0), acc(b, 1)
                if opt["nomfma"]:
                    g1 = [x for x in g1 if not x.startswith("ds_read")]; g2 = [x for x in g2 if not x.startswith("ds_read")]
                    a.emit(g1); a.emit(g2)
                    continue
                a(f"v_mfma_f32_16x16x32_bf16 {vr(C0,4)}, {vr(A,4)}, {vr(vf(n,0),4)}, {vr(C0,4)}")
                a.emit(g1)
                a(f"v_mfma_f32_16x16x32_bf16 {vr(C1,4)}, {vr(A,4)}, {vr(vf(n,1),4)}, {vr(C1,4)}")
                a.emit(g2)
    if nxt is None:
        assert not base_q, base_q

def prod_issue(a, kind, paced=False):
    srdn = {"G": S_WD, "R": S_CRE, "I": S_CIM}[kind]
    vb = 16 if kind == "G" else 24
    for j in range(8):
        if paced and PACE and j in (2, 4, 6):
            a("s_barrier")
        if NOT: continue
        if j == 0:
            a(f"s_mov_b32 m0, s{S_PM}")
            a("s_nop 0")
        if j == 4:
            a(f"s_add_u32 m0, s{S_PM}, 4096")
            a("s_nop 0")
        a(f"buffer_load_dwordx4 v{vb+j}, s[{srdn}:{srdn+3}], s{S_PS} offen offset:{(j&3)*1024} {TFL} lds")
    if WRAP:
        inc = 262144 if kind == 'G' else 256
        a(f"s_add_u32 s82, s82, {inc}")
        a(f"s_and_b32 s82, s82, 0x{WRAP*inc-1:x}")
        a(f"s_add_u32 s{S_PS}, s83, s82")
    else:
        a(f"s_add_u32 s{S_PS}, s{S_PS}, {262144 if kind == 'G' else 256}")
    a(f"s_add_u32 s{S_PM}, s{S_PM}, {SLOT}")
    a(f"s_cmp_ge_u32 s{S_PM}, {NSLOT*SLOT}")
    a(f"s_cselect_b32 s7, {NSLOT*SLOT}, 0")
    a(f"s_sub_u32 s{S_PM}, s{S_PM}, s7")

def prod_loop(a, kind, n):
    if n == 0: return
    l = a.newlabel("K3_PL")
    a(f"s_mov_b32 s{S_CNT}, {n}")
    a.label(l)
    a("s_waitcnt vmcnt(16)")
    a("s_barrier")
    prod_issue(a, kind, True)
    a(f"s_sub_u32 s{S_CNT}, s{S_CNT}, 1")
    a(f"s_cmp_lg_u32 s{S_CNT}, 0")
    a(f"s_cbranch_scc1 {l}")

def cons_loop(a, kind, n, opt):
    if n == 0: return
    l = a.newlabel("K3_CL")
    a(f"s_mov_b32 s{S_CNT}, {n}")
    a.label(l)
    body(a, kind, kind, opt, loop=True)
    a(f"s_cbranch_scc1 {l}")

def gen_k3(a, out_flags="", prof=False, opts=None):
    opts = opts or {}
    opt = {"nov": int(opts.get("nov", 0))}
    global NOT, WRAP, PACE, TFL
    TFL = opts.get("tfl", "").replace("+", " ")
    opt["vfl"] = opts.get("vfl", "").replace("+", " ")
    opt["nomfma"] = int(opts.get("nomfma", 0))
    opt["vlin"] = int(opts.get("vlin", 0))
    opt["voff2"] = 1024 if opt["vlin"] else 256
    PACE = int(opts.get("pace", 0))
    opt["pace"] = PACE
    WRAP = int(opts.get("wrap", 0))
    opt["wrap"] = WRAP
    NOT = bool(int(opts.get("not", 0)))
    kernel_begin(a, K3)
    P = Prof(a, prof, 2, list(range(84, 100)), 100)
    a("""
    s_cmp_ge_u32 s2, 256
    s_cbranch_scc1 K3_END
    """)
    P.stamp(0, real=True)
    P.stamp(1)
    a(f"""
    s_load_dwordx2 s[48:49], s[0:1], 96     ; w_down
    s_load_dwordx4 s[52:55], s[0:1], 40
    s_load_dwordx2 s[56:57], s[0:1], 120    ; ws
    s_load_dwordx2 s[58:59], s[0:1], 0      ; x
    s_load_dwordx2 s[60:61], s[0:1], 64     ; Dskip
    s_load_dwordx2 s[62:63], s[0:1], 104    ; out
    v_lshrrev_b32 v16, 6, v0
    v_and_b32 v0, 63, v0
    v_readfirstlane_b32 s3, v16             ; wave
    s_and_b32 s7, s2, 7                     ; xcd
    s_lshr_b32 s77, s2, 3                   ; j
    s_and_b32 s6, s7, 1                     ; hf
    s_lshr_b32 s78, s7, 1
    s_and_b32 s78, s78, 1                   ; nh
    s_lshr_b32 s79, s7, 2                   ; mh
    s_and_b32 s4, s77, 7
    s_lshl_b32 s79, s79, 3
    s_add_u32 s4, s4, s79
    s_lshr_b32 s5, s77, 3
    s_lshl_b32 s78, s78, 2
    s_add_u32 s5, s5, s78
    s_lshl_b32 s{S_T0}, s4, 7               ; t0
    s_lshl_b32 s{S_D0}, s5, 7               ; d0
    s_mov_b32 s80, {SLOT}
    s_mov_b32 s81, {-(NSLOT-1)*SLOT}
    s_mov_b32 s{S_FP}, 0xfffffffe
    v_and_b32 v17, 15, v0                   ; n
    v_lshrrev_b32 v18, 4, v0                ; g
    s_cmp_lt_u32 s3, 4
    s_cbranch_scc0 K3_PROD
    """)
    a(f"""
    v_lshlrev_b32 v19, 4, v17
    v_lshl_add_u32 v{V_VOFF}, v18, 15, v19          ; g*32768 + n*16
    s_lshl_b32 s77, s3, 5
    s_add_u32 s77, s77, s{S_T0}                     ; tw = t0 + 32w
    s_mul_i32 s{S_V}, s6, {352*32768}
    s_lshl_b32 s7, s77, 4
    s_add_u32 s{S_V}, s{S_V}, s7
    s_waitcnt lgkmcnt(0)
    """)
    if opt["vlin"]:
        a(f"v_lshlrev_b32 v{V_VOFF}, 4, v0")
        a(f"s_mul_i32 s{S_V}, s6, {352*32768}")
        a("s_lshl_b32 s7, s77, 6")
        a(f"s_add_u32 s{S_V}, s{S_V}, s7")
    srd(a, S_ACT, 56, 57, ACT_SZ, ACT_OFF)
    for n in range(7):
        a(f"buffer_load_dwordx4 {vr(vf(n,0),4)}, v{V_VOFF}, s[{S_ACT}:{S_ACT+3}], s{S_V} offen")
        a(f"buffer_load_dwordx4 {vr(vf(n,1),4)}, v{V_VOFF}, s[{S_ACT}:{S_ACT+3}], s{S_V} offen offset:256")
        a(f"s_add_u32 s{S_V}, s{S_V}, 131072")
    a(f"""
    v_lshlrev_b32 v20, 11, v17
    v_lshl_add_u32 v{V_BX}, v18, 3, v20             ; x: n*2048 + g*8
    v_lshrrev_b32 v21, 2, v17
    v_and_b32 v21, 1, v21
    v_lshlrev_b32 v21, 2, v21                       ; 4*((n>>2)&1)
    v_lshrrev_b32 v22, 3, v17
    v_add_u32 v21, v21, v22                         ; + (n>>3)
    v_and_b32 v22, 3, v17
    v_lshl_add_u32 v21, v21, 2, v22                 ; 16((n>>2)&1) + 4(n>>3) + (n&3)
    v_lshlrev_b32 v21, 4, v21
    v_lshrrev_b32 v22, 1, v18
    v_lshl_add_u32 v21, v22, 15, v21
    v_and_b32 v22, 1, v18
    v_lshl_add_u32 v{V_BN}, v22, 3, v21
    v_lshlrev_b32 v{V_BD}, 3, v18                   ; D: g*8
    s_lshl_b32 s78, s6, 6
    s_add_u32 s78, s78, s{S_D0}
    s_lshl_b32 s79, s77, 11
    s_lshl_b32 s7, s78, 1
    s_add_u32 s79, s79, s7
    s_add_u32 s{S_XO1}, s79, 32768
    s_lshl_b32 s82, s78, 12                         ; (dk/8)*32768
    s_lshl_b32 s7, s77, 4
    s_add_u32 s82, s82, s7
    s_lshl_b32 s83, s78, 1                          ; D soffset
    s_lshl_b32 s{S_OS}, s77, 12
    s_lshl_b32 s7, s78, 2
    s_add_u32 s{S_OS}, s{S_OS}, s7
    """)
    srd(a, S_X, 58, 59, 0x400000)
    srd(a, S_XN, 56, 57, XN_SZ, XN_OFF)
    srd(a, S_D, 60, 61, 2048)
    X0, N0, D0 = TMP, TMP + 16, TMP + 32
    bl = []
    for i in range(4):
        bl.append(f"buffer_load_dwordx2 {vr(X0+4*i,2)}, v{V_BX}, s[{S_X}:{S_X+3}], s79 offen offset:{32*i}")
        bl.append(f"buffer_load_dwordx2 {vr(X0+4*i+2,2)}, v{V_BX}, s[{S_X}:{S_X+3}], s{S_XO1} offen offset:{32*i}")
    for i in range(4):
        bl.append(f"buffer_load_dwordx2 {vr(N0+4*i,2)}, v{V_BN}, s[{S_XN}:{S_XN+3}], s82 offen")
        bl.append(f"buffer_load_dwordx2 {vr(N0+4*i+2,2)}, v{V_BN}, s[{S_XN}:{S_XN+3}], s82 offen offset:128")
        bl.append(f"buffer_load_dwordx2 {vr(D0+2*i,2)}, v{V_BD}, s[{S_D}:{S_D+3}], s83 offen offset:{32*i}")
        if i < 3: bl.append(f"s_add_u32 s82, s82, 65536")
    opt["base_loads"] = bl
    srd(a, S_XB, 56, 57, XB_SZ, XB_OFF)
    srd(a, S_OUT, 62, 63, 0x800000)
    a(f"""
    v_lshrrev_b32 v23, 2, v0
    v_and_b32 v23, 3, v23                   ; r
    v_and_b32 v24, 3, v0                    ; c
    v_lshl_add_u32 v25, v18, 3, v23         ; 8g + r
    v_lshlrev_b32 v25, 8, v25
    v_lshl_add_u32 v25, v24, 3, v25         ; + 8c
    v_and_b32 v26, 1, v18
    v_lshl_add_u32 v26, v26, 2, v23         ; f = r | (g&1)<<2
    s_lshl_b32 s7, s6, 2
    v_xor_b32 v26, s7, v26                  ; f ^ 4hf
    """)
    for b in range(8):
        a(f"v_xor_b32 v27, {b}, v26")
        a(f"v_lshl_add_u32 v{G_AD+b}, v27, 5, v25")
    a("v_xor_b32 v27, v18, v17")
    a("v_lshlrev_b32 v28, 8, v17")
    for st in range(4):
        a(f"v_xor_b32 v29, {4*st}, v27")
        a(f"v_lshl_add_u32 v{C_AD+st}, v29, 4, v28")
    a(f"""
    v_lshlrev_b32 v{V_OUT}, 12, v17
    v_lshl_add_u32 v{V_OUT}, v18, 4, v{V_OUT}        ; n*4096 + g*16
    v_lshlrev_b32 v{V_XB}, 4, v0
    s_lshl_b32 s7, s2, 2
    s_add_u32 s7, s7, s3                    ; wg*4 + w
    s_lshl_b32 s{S_XBO}, s7, 13
    s_xor_b32 s{S_XBP}, s{S_XBO}, {1 << 15}
    s_mov_b32 s{S_CUR}, 0
    """)
    for b in range(8):
        for tb in range(2):
            for r in range(4):
                a(f"v_mov_b32 v{acc(b,tb)+r}, 0")
    P.stamp(2)
    if WRAP:
        a(f"s_mov_b32 s77, s{S_V}")
        a("s_mov_b32 s78, 0")
    a("s_barrier")
    P.stamp(3)
    for b in range(7):
        a.emit(t_read("G", b, 0))
    a("s_cmp_eq_u32 s6, 0")
    a("s_cbranch_scc0 K3_H1")
    cons_loop(a, "G", 10, opt)
    body(a, "G", None, opt)
    a("s_branch K3_EPI")
    a.label("K3_H1")
    cons_loop(a, "G", 2, opt)
    body(a, "G", "C", opt)
    cons_loop(a, "C", 7, opt)
    body(a, "C", None, opt)
    a.label("K3_EPI")
    a("s_nop 15")
    P.stamp(4)
    a(f"s_add_u32 s7, s{S_XBO}, 4096")
    for i in range(4):
        for tb in range(2):
            k = 2*i + tb
            for r in range(4):
                a(f"v_min_u32 v{acc(4+i,tb)+r}, 0xfffffffe, v{acc(4+i,tb)+r}" if False else f"v_min_u32 v{acc(4+i,tb)+r}, s{S_FP}, v{acc(4+i,tb)+r}")
            a(f"buffer_store_dwordx4 {vr(acc(4+i,tb),4)}, v{V_XB}, s[{S_XB}:{S_XB+3}], s{S_XBO if k < 4 else 7} offen offset:{(k&3)*1024} sc1")
    def ploads():
        a(f"s_add_u32 s7, s{S_XBP}, 4096")
        for k in range(8):
            a(f"buffer_load_dwordx4 {vr(VR+4*k,4)}, v{V_XB}, s[{S_XB}:{S_XB+3}], s{S_XBP if k < 4 else 7} offen offset:{(k&3)*1024} sc1")
    a("s_waitcnt vmcnt(8)")
    T = G_AD
    for i in range(4):
        a(f"v_lshlrev_b32 v{T}, 16, v{D0+2*i}")
        a(f"v_and_b32 v{T+1}, 0xffff0000, v{D0+2*i}")
        a(f"v_lshlrev_b32 v{T+2}, 16, v{D0+2*i+1}")
        a(f"v_and_b32 v{T+3}, 0xffff0000, v{D0+2*i+1}")
        for tb in range(2):
            nn = N0 + 4*i + 2*tb; xx = X0 + 4*i + 2*tb; o = acc(i, tb)
            a(f"v_lshlrev_b32 v{T+4}, 16, v{nn}")
            a(f"v_and_b32 v{T+5}, 0xffff0000, v{nn}")
            a(f"v_lshlrev_b32 v{T+6}, 16, v{nn+1}")
            a(f"v_and_b32 v{T+7}, 0xffff0000, v{nn+1}")
            for q in range(4):
                a(f"v_mul_f32 v{T+4+q}, v{T+4+q}, v{T+q}")
            a(f"v_cvt_pk_bf16_f32 v{T+4}, v{T+4}, v{T+5}")
            a(f"v_cvt_pk_bf16_f32 v{T+6}, v{T+6}, v{T+7}")
            a(f"v_lshlrev_b32 v{nn}, 16, v{xx}")
            a(f"v_and_b32 v{nn+1}, 0xffff0000, v{xx}")
            a(f"v_lshlrev_b32 v{xx}, 16, v{xx+1}")
            a(f"v_and_b32 v{xx+1}, 0xffff0000, v{xx+1}")
            a(f"v_lshlrev_b32 v{T+5}, 16, v{T+4}")
            a(f"v_and_b32 v{T+4}, 0xffff0000, v{T+4}")
            a(f"v_lshlrev_b32 v{T+7}, 16, v{T+6}")
            a(f"v_and_b32 v{T+6}, 0xffff0000, v{T+6}")
            a(f"v_add_f32 v{nn}, v{nn}, v{T+5}")
            a(f"v_add_f32 v{nn+1}, v{nn+1}, v{T+4}")
            a(f"v_add_f32 v{xx}, v{xx}, v{T+7}")
            a(f"v_add_f32 v{xx+1}, v{xx+1}, v{T+6}")
            a(f"v_add_f32 v{o}, v{o}, v{nn}")
            a(f"v_add_f32 v{o+1}, v{o+1}, v{nn+1}")
            a(f"v_add_f32 v{o+2}, v{o+2}, v{xx}")
            a(f"v_add_f32 v{o+3}, v{o+3}, v{xx+1}")
    P.stamp(5)
    lp = a.newlabel("K3_POLL"); ok = a.newlabel("K3_POK")
    a(f"s_mov_b32 s{S_CNT}, 0")
    a.label(lp)
    ploads()
    a("s_waitcnt vmcnt(0)")
    m = T
    a(f"v_max3_u32 v{m}, v{VR}, v{VR+1}, v{VR+2}")
    for k in range(3, 31, 2):
        a(f"v_max3_u32 v{m}, v{m}, v{VR+k}, v{VR+k+1}")
    a(f"v_max_u32 v{m}, v{m}, v{VR+31}")
    a(f"""
    v_cmp_eq_u32 vcc, -1, v{m}
    s_add_u32 s{S_CNT}, s{S_CNT}, 1
    s_cbranch_vccz {ok}
    s_cmp_lt_u32 s{S_CNT}, 100000
    s_cbranch_scc1 {lp}
    """)
    a.label(ok)
    P.stamp(6)
    if P.on:
        a(f"s_mov_b32 s{P.regs[9]}, s{S_CNT}")
    a(f"s_add_u32 s7, s{S_OS}, 65536")
    for i in range(4):
        for tb in range(2):
            k = 2*i + tb
            for r in range(4):
                a(f"v_add_f32 v{acc(i,tb)+r}, v{acc(i,tb)+r}, v{VR+4*k+r}")
            a(f"buffer_store_dwordx4 {vr(acc(i,tb),4)}, v{V_OUT}, s[{S_OUT}:{S_OUT+3}], s{S_OS if tb == 0 else 7} offen offset:{64*i} {out_flags}")
    P.stamp(7)
    if P.on:
        a("s_waitcnt vmcnt(0)")
    P.stamp(8)
    P.stamp(10, real=True)
    P.flush(56, 57, 48, 3, 9, 10)
    a("s_endpgm")
    a.label("K3_PROD")
    a(f"""
    s_sub_u32 s77, s3, 4                    ; pw
    v_and_b32 v19, 15, v0                   ; p
    v_lshrrev_b32 v20, 1, v19               ; window
    v_and_b32 v21, 1, v19                   ; half
    v_lshlrev_b32 v21, 4, v21
    v_lshl_add_u32 v21, v18, 11, v21
    v_xor_b32 v22, v20, v18
    v_xor_b32 v23, 4, v22
    v_lshl_add_u32 v22, v22, 5, v21
    v_lshl_add_u32 v23, v23, 5, v21
    """)
    for j in range(8):
        src = 22 if ((j >> 1) & 1) == 0 else 23
        a(f"v_add_u32 v{16+j+16}, {8192*j - 1024*(j&3)}, v{src}")
    a("v_xor_b32 v22, v19, v18")
    a("v_lshlrev_b32 v21, 11, v18")
    for j in range(8):
        a(f"v_xor_b32 v23, {4*(j&3)}, v22")
        a(f"v_lshl_add_u32 v23, v23, 4, v21")
        a(f"v_add_u32 v{24+j+16}, {8192*j - 1024*(j&3)}, v23")
    for j in range(16):
        a(f"v_mov_b32 v{16+j}, v{32+j}")
    a(f"""
    s_lshl_b32 s{S_PM}, s77, 13             ; pw*8192
    s_mul_i32 s{S_PS}, s6, 2816
    s_lshl_b32 s7, s77, 5
    s_add_u32 s{S_PS}, s{S_PS}, s7
    s_lshl_b32 s{S_PS}, s{S_PS}, 11
    s_lshl_b32 s7, s{S_D0}, 1
    s_add_u32 s{S_PS}, s{S_PS}, s7
    s_lshl_b32 s79, s77, 5
    s_add_u32 s79, s79, s{S_D0}
    s_lshl_b32 s79, s79, 11
    s_waitcnt lgkmcnt(0)
    """)
    srd(a, S_WD, 48, 49, 0x700000)
    srd(a, S_CRE, 52, 53, 0x200000)
    srd(a, S_CIM, 54, 55, 0x200000)
    P.stamp(11)
    if WRAP:
        a(f"s_mov_b32 s83, s{S_PS}")
        a("s_mov_b32 s82, 0")
    for _ in range(2):
        prod_issue(a, "G")
    a("s_waitcnt vmcnt(8)")
    P.stamp(2)
    a("s_barrier")
    if PACE:
        prod_issue(a, "G", True)
        prod_issue(a, "G")
    else:
        for _ in range(2):
            prod_issue(a, "G")
    a("s_cmp_eq_u32 s6, 0")
    a("s_cbranch_scc0 K3_PH1")
    prod_loop(a, "G", 18)
    a("s_branch K3_PTAIL")
    a.label("K3_PH1")
    prod_loop(a, "G", 2)
    a(f"s_mov_b32 s{S_PS}, s79")
    if WRAP:
        a(f"s_mov_b32 s83, s79")
        a("s_mov_b32 s82, 0")
    prod_loop(a, "R", 8)
    a(f"s_mov_b32 s{S_PS}, s79")
    prod_loop(a, "I", 8)
    a.label("K3_PTAIL")
    for vm in (16, 8, 0):
        a(f"s_waitcnt vmcnt({vm})")
        a("s_barrier")
        if PACE and vm:
            for _ in range(3): a("s_barrier")
    P.stamp(4)
    P.stamp(10, real=True)
    P.flush(56, 57, 48, 3, 9, 10)
    a.label("K3_END")
    a("s_endpgm")
    return NV
```

```python
import re
RX = re.compile(r"v\[(\d+):(\d+)\]|\bv(\d+)\b")
TRANS = ("v_exp_f32", "v_rcp_f32", "v_sin_f32", "v_cos_f32", "v_sqrt_f32", "v_log_f32", "v_rsq_f32")

def regs_of(tok):
    out = []
    for m in RX.finditer(tok):
        if m.group(1) is not None:
            out += list(range(int(m.group(1)), int(m.group(2)) + 1))
        else:
            out.append(int(m.group(3)))
    return out

class Stream:
    def __init__(self, a):
        self.a = a
        self.n = 0
        self.lw = {}
        self.cr = {}
        self.sd = {}
        self.sw = {}
        self.lq = 0; self.vq = 0
        self.ld = 0; self.vd = 0
        self.tags = {}
        self.nops = 0
    def pad(self, k):
        if k <= 0: return
        self.a(f"s_nop {k-1}")
        self.n += k
        self.nops += 1
    def classify(self, s):
        op = s.split()[0]
        rest = s[len(op):].split(";")[0]
        ops = [o.strip() for o in rest.split(",")]
        if op.startswith("v_mfma"):
            return "mfma", regs_of(ops[0]), regs_of(",".join(ops[1:3])), regs_of(ops[3])
        if op.startswith("v_permlane"):
            r = regs_of(ops[0]) + regs_of(ops[1])
            return "perm", r, r, []
        if op.startswith("v_cmp"):
            return "vcmp", [], regs_of(",".join(ops[1:])), []
        if op.startswith("v_"):
            kind = "trans" if op.split("_e")[0] in TRANS else "valu"
            src = regs_of(",".join(ops[1:]))
            if op.startswith(("v_fmac", "v_mac")): src += regs_of(ops[0])
            return kind, regs_of(ops[0]), src, []
        if op.startswith("ds_read"):
            return "ldsr", regs_of(ops[0]), regs_of(ops[1]), []
        if op.startswith("ds_write"):
            return "ldsw", [], regs_of(rest), []
        if op.startswith("buffer_load"):
            if " lds" in s:
                return "dma", [], regs_of(ops[0]), []
            return "vld", regs_of(ops[0]), regs_of(ops[1]), []
        if op.startswith("buffer_store"):
            return "vst", [], regs_of(",".join(ops[:2])), []
        return "salu", [], [], []
    def ins(self, s, tag=None):
        kind, dst, src, srcc = self.classify(s)
        need = 0
        def dist(slot, ws):
            return ws - (self.n - slot - 1)
        for r in src + srcc:
            if r in self.lw:
                slot, wk = self.lw[r]
                ws = 0
                if wk == "mfma":
                    if kind == "mfma" and r in srcc: ws = 0
                    else: ws = 8
                elif wk in ("valu", "trans", "perm"):
                    if kind == "mfma" or kind == "perm": ws = 2
                    elif wk == "trans" and kind in ("valu", "vcmp", "vst", "ldsw", "ldsr", "vld", "dma"): ws = 1
                need = max(need, dist(slot, ws))
        for r in dst:
            if r in self.lw and self.lw[r][1] == "mfma" and kind != "mfma":
                need = max(need, dist(self.lw[r][0], 8))
            if r in self.cr and kind in ("valu", "trans", "perm"):
                need = max(need, dist(self.cr[r], 3))
            if r in self.sd:
                need = max(need, dist(self.sd[r], 2))
        if "vcc" in s and kind in ("valu", "trans") and "vcc" in self.sw:
            need = max(need, dist(self.sw["vcc"], 2))
        if kind == "dma" and "m0" in self.sw:
            need = max(need, dist(self.sw["m0"], 1))
        self.pad(need)
        self.a(s)
        for r in dst: self.lw[r] = (self.n, kind)
        for r in srcc: self.cr[r] = self.n
        if kind == "vst" and "x4" in s.split()[0]:
            for r in regs_of(s.split(",")[0]): self.sd[r] = self.n
        if kind == "vcmp": self.sw["vcc"] = self.n
        if kind == "salu" and re.match(r"s_\w+ m0,", s): self.sw["m0"] = self.n
        if kind in ("ldsr", "ldsw"):
            self.lq += 1
            if tag is not None: self.tags[tag] = ("l", self.lq)
        elif kind in ("vld", "vst", "dma"):
            self.vq += 1
            if tag is not None: self.tags[tag] = ("v", self.vq)
        if s.startswith("s_nop"):
            self.n += int(s.split()[1]) + 1
        else:
            self.n += 1
        return kind
    def need(self, *tags):
        lq = max([self.tags[t][1] for t in tags if self.tags[t][0] == "l"] + [0])
        vq = max([self.tags[t][1] for t in tags if self.tags[t][0] == "v"] + [0])
        w = []
        if vq > self.vd:
            c = min(self.vq - vq, 63)
            w.append(f"vmcnt({c})"); self.vd = self.vq - c
        if lq > self.ld:
            c = min(self.lq - lq, 15)
            w.append(f"lgkmcnt({c})"); self.ld = self.lq - c
        if w:
            self.a("s_waitcnt " + " ".join(w)); self.n += 1
    def drain(self, vm=True, lg=True):
        w = []
        if vm: w.append("vmcnt(0)"); self.vd = self.vq
        if lg: w.append("lgkmcnt(0)"); self.ld = self.lq
        self.a("s_waitcnt " + " ".join(w)); self.n += 1
```

```python
import sys
from common import *
import k1, k3

def build(path, opts):
    a = Asm()
    hdr = open("cdna_kernels/" + NAME + ".s.ref").read().split("; Override launch geometry")[0]
    head = hdr
    global k3
    if int(opts.get("k3v", 1)) == 2:
        import k3b as k3
    only = opts.get("only", "123")
    prof = bool(int(opts.get("prof", 0)))
    descs = []
    if "2" in only:
        import k2
    if "1" in only:
        head += f"; @launch kernel={k1.K1} grid=(256,1,1) block=(256,1,1) lds={k1.K1_LDS}\n"
    if "2" in only:
        head += f"; @launch kernel={k2.K2} grid=(256,1,1) block=(512,1,1) lds={k2.K2_LDS}\n"
    if "3" in only:
        head += f"; @launch kernel={k3.K3} grid=(256,1,1) block=(512,1,1) lds={k3.K3_LDS}\n"
    a.raw(head.rstrip("\n"))
    a.raw('.amdgcn_target "amdgcn-amd-amdhsa--gfx950"')
    a.raw(".text")
    if "1" in only:
        descs.append(kernel_desc(k1.K1, k1.gen_k1(a, prof=prof, opts=opts)))
    if "2" in only:
        descs.append(kernel_desc(k2.K2, k2.gen_k2(a, store_flags=opts.get("k2st", ""), prof=prof, opts=opts)))
    if "3" in only:
        descs.append(kernel_desc(k3.K3, k3.gen_k3(a, out_flags=opts.get("k3st", ""), prof=prof, opts=opts)))
    a.raw('.section .rodata,"a"')
    for d in descs:
        a.raw(d)
    open(path, "w").write(a.text())

if __name__ == "__main__":
    path = sys.argv[1] if len(sys.argv) > 1 else "cdna_kernels/" + NAME + ".s"
    opts = dict(kv.split("=") for kv in sys.argv[2:])
    build(path, opts)
    print("wrote", path)
```

```python
from common import *

K1 = "ssm_ln_kernel"
K1_LDS = 2560
TK = {24: (88, 89), 32: (90, 91), 40: (92, 93), 48: (94, 95), 80: (96, 97), 88: (98, 99), 96: (24, 25), 104: (26, 27), 120: (6, 7)}

def gen_k1(a, prof=False, opts=None):
    opts = opts or {}
    kernel_begin(a, K1)
    P = Prof(a, prof, 0, list(range(40, 50)), 50)
    a("""
    s_cmp_ge_u32 s2, 256
    s_cbranch_scc1 K1_END
    """)
    P.stamp(0, real=True)
    P.stamp(1)
    a("""
    s_load_dwordx2 s[4:5], s[0:1], 0
    s_load_dwordx2 s[6:7], s[0:1], 120
    s_load_dwordx8 s[88:95], s[0:1], 24
    s_load_dwordx4 s[96:99], s[0:1], 80
    s_load_dwordx4 s[24:27], s[0:1], 96
    v_and_b32 v1, 63, v0
    v_lshrrev_b32 v2, 6, v0
    v_and_b32 v3, 7, v1                 ; r
    v_lshrrev_b32 v4, 3, v1             ; part
    v_lshlrev_b32 v5, 5, v2
    v_add_u32 v5, v5, v4
    s_lshl_b32 s3, s2, 3
    v_add_u32 v6, s3, v3
    s_lshr_b32 s20, s2, 2
    s_lshl_b32 s20, s20, 5
    s_and_b32 s21, s2, 1
    s_lshl_b32 s21, s21, 4
    s_add_u32 s20, s20, s21
    s_and_b32 s21, s2, 2
    s_lshl_b32 s21, s21, 1
    s_add_u32 s20, s20, s21
    v_lshrrev_b32 v7, 2, v3
    v_and_b32 v8, 3, v3
    v_lshl_add_u32 v7, v7, 3, v8
    v_add_u32 v7, s20, v7               ; row
    v_lshlrev_b32 v7, 11, v7
    v_lshl_add_u32 v7, v5, 4, v7
    v_lshlrev_b32 v8, 15, v5
    v_lshl_add_u32 v8, v6, 4, v8
    v_mul_u32_u24 v9, 144, v3
    v_lshl_add_u32 v10, v2, 3, v4       ; w*8+part
    v_lshl_add_u32 v10, v10, 2, v9
    s_waitcnt lgkmcnt(0)
    """)
    srd(a, 8, 4, 5, 0x400000)
    srd(a, 12, 6, 7, XN_SZ, XN_OFF)
    srd(a, 16, 6, 7, EX_SZ, EX_OFF)
    for j in range(4):
        a(f"buffer_load_dwordx4 v[{16+4*j}:{19+4*j}], v7, s[8:11], 0 offen offset:{128*j}")
    TOUCH = int(opts.get("touch", 0))
    ntouch = 0
    if TOUCH:
        a(f"""
        s_lshr_b32 s3, s2, 3
        v_lshl_add_u32 v110, v0, 5, s3
        v_mul_u32_u24 v110, {TOUCH}, v110
        """)
        lst = [(80, 0x700000), (88, 0x700000), (24, 0x200000), (32, 0x200000), (96, 0x700000), (40, 0x200000), (48, 0x200000), (120, 0x2300000), (104, 0x800000)]
        sel = opts.get("tsel", "012345678")
        for i, (ko, size) in enumerate(lst):
            if str(i) not in sel: continue
            b = 52 + 4 * i
            lo, hi = TK[ko]
            srd(a, b, lo, hi, size)
            for rep in range((size + 8192 * TOUCH - 1) // (8192 * TOUCH)):
                a(f"s_mov_b32 s23, {rep * 8192 * TOUCH}")
                a(f"buffer_load_dword v{111 + (ntouch & 7)}, v110, s[{b}:{b+3}], s23 offen")
                ntouch += 1
    PF = opts.get("pf", "")
    if PF:
        LS = int(opts.get("pfs", 128))
        per = max(1, 0x800000 // (65536 * LS))
        a(f"""
        s_lshl_b32 s3, s2, 8
        v_add_u32 v110, s3, v0
        v_mul_u32_u24 v110, {LS}, v110
        s_lshr_b32 s3, s2, 2
        s_lshl_b32 s3, s3, 8
        v_add_u32 v109, s3, v0
        v_mul_u32_u24 v109, {LS}, v109
        """)
        for i, c in enumerate(PF):
            b = 52 + 4 * i
            if c in "gud":
                lo, hi = TK[{"g": 80, "u": 88, "d": 96}[c]]
                srd(a, b, lo, hi, 0x700000)
                for rep in range(per):
                    a(f"s_mov_b32 s23, {rep * 65536 * LS}")
                    a(f"buffer_load_dword v{111 + (ntouch & 7)}, v110, s[{b}:{b+3}], s23 offen")
                    ntouch += 1
            elif c == "s":
                a(f"""
                s_and_b32 s3, s2, 3
                s_cmp_lt_u32 s3, 2
                s_cselect_b32 s20, s88, s92
                s_cselect_b32 s21, s89, s93
                s_cselect_b32 s22, s90, s94
                s_cselect_b32 s23, s91, s95
                s_and_b32 s3, s2, 1
                s_cmp_eq_u32 s3, 0
                s_cselect_b32 s{b}, s20, s22
                s_cselect_b32 s{b+1}, s21, s23
                s_mov_b32 s{b+2}, 0x200000
                s_mov_b32 s{b+3}, 0x00020000
                """)
                for rep in range(per):
                    a(f"s_mov_b32 s23, {rep * 16384 * LS}")
                    a(f"buffer_load_dword v{111 + (ntouch & 7)}, v109, s[{b}:{b+3}], s23 offen")
                    ntouch += 1
            elif c == "b":
                a(f"""
                s_lshr_b32 s3, s2, 1
                s_lshl_b32 s3, s3, 8
                v_add_u32 v108, s3, v0
                v_mul_u32_u24 v108, {LS}, v108
                s_and_b32 s3, s2, 1
                s_cmp_eq_u32 s3, 0
                s_cselect_b32 s{b}, s88, s90
                s_cselect_b32 s{b+1}, s89, s91
                s_mov_b32 s{b+2}, 0x200000
                s_mov_b32 s{b+3}, 0x00020000
                """)
                for rep in range(per):
                    a(f"s_mov_b32 s23, {rep * 32768 * LS}")
                    a(f"buffer_load_dword v{111 + (ntouch & 7)}, v108, s[{b}:{b+3}], s23 offen")
                    ntouch += 1
    if int(opts.get("pf1", 0)):
        R1 = int(opts.get("pf1rows", 256))
        a(f"""
        v_readfirstlane_b32 s3, v2
        v_lshlrev_b32 v110, 8, v1
        v_add_u32 v110, s2, v110
        v_lshlrev_b32 v110, 7, v110
        s_cmp_lt_u32 s3, 2
        s_cselect_b32 s20, s96, s88
        s_cselect_b32 s21, s97, s89
        s_cselect_b32 s22, s98, s90
        s_cselect_b32 s23, s99, s91
        s_mov_b32 s54, {R1 * 7168}
        s_cselect_b32 s54, s54, 0x200000
        s_and_b32 s3, s3, 1
        s_cmp_eq_u32 s3, 0
        s_cselect_b32 s52, s20, s22
        s_cselect_b32 s53, s21, s23
        s_mov_b32 s55, 0x00020000
        buffer_load_dword v111, v110, s[52:55], 0 offen
        """)
        ntouch += 1
    a(f"s_waitcnt vmcnt({ntouch})")
    for d in range(16):
        a(f"v_lshlrev_b32 v{32+2*d}, 16, v{16+d}")
        a(f"v_and_b32 v{33+2*d}, 0xffff0000, v{16+d}")
    for q in range(4):
        a(f"v_add_f32 v{64+q}, v{32+q}, v{36+q}")
    for d in range(8, 32, 4):
        for q in range(4):
            a(f"v_add_f32 v{64+q}, v{64+q}, v{32+d+q}")
    a("v_add_f32 v64, v64, v65")
    a("v_add_f32 v66, v66, v67")
    a("v_add_f32 v64, v64, v66")
    a("ds_write_b32 v10, v64")
    a("s_waitcnt lgkmcnt(0)")
    a("s_barrier")
    def reduce32(off, dst):
        for q in range(8):
            a(f"ds_read_b128 v[{68+4*q}:{71+4*q}], v9 offset:{off+16*q}")
        a("s_waitcnt lgkmcnt(0)")
        for n in (16, 8, 4, 2, 1):
            for q in range(n):
                a(f"v_add_f32 v{68+q}, v{68+q}, v{68+n+q}")
        a(f"v_mul_f32 v{dst}, 0x3a800000, v68")
    reduce32(0, 100)
    for d in range(32):
        a(f"v_sub_f32 v{68+d}, v{32+d}, v100")
    for q in range(4):
        a(f"v_mul_f32 v{64+q}, v{68+q}, v{68+q}")
    for d in range(4, 32, 4):
        for q in range(4):
            a(f"v_fmac_f32 v{64+q}, v{68+d+q}, v{68+d+q}")
    a("v_add_f32 v64, v64, v65")
    a("v_add_f32 v66, v66, v67")
    a("v_add_f32 v64, v64, v66")
    a("ds_write_b32 v10, v64 offset:1152")
    a("s_waitcnt lgkmcnt(0)")
    a("s_barrier")
    reduce32(1152, 101)
    a("""
    v_cvt_pk_bf16_f32 v102, v100, v101
    v_lshlrev_b32 v100, 16, v102
    v_and_b32 v101, 0xffff0000, v102
    v_add_f32 v101, 0x3727c5ac, v101        ; + 1e-5
    v_cvt_pk_bf16_f32 v101, v101, v101
    v_and_b32 v101, 0xffff0000, v101
    v_sqrt_f32 v101, v101
    s_nop 0
    v_cvt_pk_bf16_f32 v101, v101, v101
    v_and_b32 v101, 0xffff0000, v101
    v_rcp_f32 v101, v101
    s_nop 0
    """)
    for d in range(16):
        x0, x1 = 32 + 2*d, 33 + 2*d
        a(f"v_sub_f32 v{x0}, v{x0}, v100")
        a(f"v_sub_f32 v{x1}, v{x1}, v100")
        a(f"v_cvt_pk_bf16_f32 v{x0}, v{x0}, v{x1}")
        a(f"v_and_b32 v{x1}, 0xffff0000, v{x0}")
        a(f"v_lshlrev_b32 v{x0}, 16, v{x0}")
        a(f"v_mul_f32 v{x0}, v{x0}, v101")
        a(f"v_mul_f32 v{x1}, v{x1}, v101")
        a(f"v_cvt_pk_bf16_f32 v{16+d}, v{x0}, v{x1}")
    for j in range(4):
        a(f"s_mov_b32 s23, {8*32768*j}")
        a(f"buffer_store_dwordx4 v[{16+4*j}:{19+4*j}], v8, s[12:15], s23 offen")
    a("""
    v_cmp_gt_u32 vcc, 32, v0
    s_and_saveexec_b64 s[20:21], vcc
    s_cbranch_execz K1_NOCLR
    s_lshl_b32 s22, s2, 9
    s_and_b32 s23, s2, 7
    s_lshl_b32 s23, s23, 1
    v_lshrrev_b32 v12, 4, v0
    v_add_u32 v12, s23, v12             ; row
    v_cmp_lt_u32 vcc, 6, v12
    v_lshlrev_b32 v11, 4, v0
    s_nop 1
    v_cndmask_b32 v12, 0, -1, vcc
    v_cndmask_b32 v13, 0, -1, vcc
    v_cndmask_b32 v14, 0, -1, vcc
    v_cndmask_b32 v15, 0, -1, vcc
    buffer_store_dwordx4 v[12:15], v11, s[16:19], s22 offen
    """)
    a.label("K1_NOCLR")
    a("s_mov_b64 exec, s[20:21]")
    if P.on:
        a("s_waitcnt vmcnt(0)")
        a("v_lshrrev_b32 v2, 6, v0")
        a("s_nop 1")
        a("v_readfirstlane_b32 s3, v2")
    P.stamp(9, real=True)
    P.flush(6, 7, 28, 3, 70, 71)
    a.label("K1_END")
    a("s_endpgm")
    return 120
```

```python
from common import *
from stream import Stream

K2 = "ssm_gemm1_kernel"
SLOT = 21504
NSLOT = 6
SCR_W = NSLOT * SLOT
TABLE = SCR_W + 8 * 1792
K2_LDS = TABLE + 15 * 256

V_XO = 1
V_GA, V_SA0, V_SA1, V_D1 = 2, 3, 4, 5
Q0 = 2
GA2 = [6, 7, 8, 9]
V_D0, V_D2, V_ST, V_P16, V_SW, V_TB = 10, 11, 12, 13, 14, 15
LAM, TH, A1, CF, A8, A32 = 16, 18, 20, 24, 28, 32
V_D0B = 36
XR = 40
NXR = 6
WR = 88
NWR = 6
def SRE(b): return 112 + 8 * b
def SIM(b): return 128 + 8 * b
def PG(j): return 144 + 16 * j
def PU(j): return PG(j) + 8
T1 = 192
def xr(n, tb): return XR + 8 * (n % NXR) + 4 * tb
def wr(i): return WR + 4 * (i % NWR)

S_XN, S_G, S_U, S_D0, S_D1, S_D2, S_ACT, S_EXR, S_EXW, S_XB, S_P0, S_P1, S_P2 = range(8, 60, 4)
S_W, S_RB, S_CG, S_TW = 3, 4, 5, 6
S_X, S_O01, S_O2, S_M0, S_M1, S_M2, S_ST, S_SS, S_ER, S_EW, S_XBO, S_O96, S_CNT, S_T = range(76, 90)

L2E = "0x3fb8aa3b"
def f32(x):
    import struct
    return "0x%08x" % struct.unpack("<I", struct.pack("<f", x))[0]

def quad_mac(d, A, s):
    o = []
    for b in (0, 1):
        o.append(f"v_fma_f32 v{d+2*b}, v{A+2*b}, v{s+2*b}, v{d+2*b}")
        o.append(f"v_fma_f32 v{d+2*b+1}, v{A+2*b}, v{s+2*b+1}, v{d+2*b+1}")
    for b in (0, 1):
        o.append(f"v_fma_f32 v{d+2*b}, -v{A+2*b+1}, v{s+2*b+1}, v{d+2*b}")
        o.append(f"v_fma_f32 v{d+2*b+1}, v{A+2*b+1}, v{s+2*b}, v{d+2*b+1}")
    return o

def power(d, n, t):
    o = []
    for b in (0, 1):
        o.append(f"v_mul_f32 v{t+3*b}, {n}, v{LAM+b}")
        o.append(f"v_mul_f32 v{t+3*b+1}, {n}, v{TH+b}")
    for b in (0, 1):
        o.append(f"v_exp_f32 v{t+3*b}, v{t+3*b}")
        o.append(f"v_fract_f32 v{t+3*b+1}, v{t+3*b+1}")
    for b in (0, 1):
        o.append(f"v_cos_f32 v{t+3*b+2}, v{t+3*b+1}")
        o.append(f"v_sin_f32 v{t+3*b+1}, v{t+3*b+1}")
    for b in (0, 1):
        o.append(f"v_mul_f32 v{d+2*b}, v{t+3*b}, v{t+3*b+2}")
        o.append(f"v_mul_f32 v{d+2*b+1}, v{t+3*b}, v{t+3*b+1}")
    return o

def pack_store(O, d0, d1, soff_expr, flags):
    o = [f"v_cvt_pk_bf16_f32 v{O}, v{d0}, v{d0+1}",
         f"v_cvt_pk_bf16_f32 v{O+1}, v{d0+2}, v{d0+3}",
         f"v_cvt_pk_bf16_f32 v{O+2}, v{d1}, v{d1+1}",
         f"v_cvt_pk_bf16_f32 v{O+3}, v{d1+2}, v{d1+3}",
         soff_expr,
         f"v_permlane16_swap_b32 v{O}, v{O+2}",
         f"v_permlane16_swap_b32 v{O+1}, v{O+3}",
         f"buffer_store_dwordx4 {vr(O,4)}, v{V_ST}, s[{S_ACT}:{S_ACT+3}], s{S_T} offen {flags}".rstrip()]
    return o

def glu(j, flags):
    G = [PG(j) + r for r in range(8)]; U = [PU(j) + r for r in range(8)]
    o = []
    o += [f"v_mul_f32 v{g}, 0xbfb8aa3b, v{g}" for g in G]
    o += [f"v_exp_f32 v{g}, v{g}" for g in G]
    o += [f"v_add_f32 v{g}, 1.0, v{g}" for g in G]
    o += [f"v_rcp_f32 v{g}, v{g}" for g in G]
    o += [f"v_mul_f32 v{g}, v{g}, v{u}" for g, u in zip(G, U)]
    o += pack_store(PU(j), PG(j), PG(j) + 4, f"s_add_u32 s{S_T}, s{S_ST}, {j*65536}", flags)
    return o

def gen_k2(a, store_flags="", prof=False, opts=None):
    opts = opts or {}
    flags = store_flags.replace("+", " ")
    RATE2 = float(opts.get("rate2", 1.5))
    RATE3 = float(opts.get("rate3", 3))
    NOEPI = int(opts.get("noepi", 0))
    POLLFIRST = int(opts.get("pollfirst", 1))
    NT1 = int(opts.get("nt1", 2))
    kernel_begin(a, K2)
    P = Prof(a, prof, 1, list(range(90, 100)), 100)
    a("""
    s_cmp_ge_u32 s2, 256
    s_cbranch_scc1 K2_END
    """)
    P.stamp(0, real=True)
    P.stamp(1)
    a(f"""
    s_load_dwordx4 s[72:75], s[0:1], 80     ; w_gate, w_up
    s_load_dwordx2 s[70:71], s[0:1], 120    ; ws
    s_load_dwordx4 s[64:67], s[0:1], 24
    s_load_dwordx4 s[60:63], s[0:1], 8
    s_load_dwordx2 s[68:69], s[0:1], 56     ; log_dt
    s_load_dwordx2 s[82:83], s[0:1], 96     ; w_down
    s_load_dwordx4 s[84:87], s[0:1], 40
    v_lshrrev_b32 v240, 6, v0
    v_and_b32 v0, 63, v0                    ; lane
    v_readfirstlane_b32 s{S_W}, v240         ; wave
    s_and_b32 s7, s2, 7                     ; xcd
    s_lshr_b32 s{S_CG}, s2, 3
    s_and_b32 s{S_RB}, s{S_CG}, 7
    s_lshr_b32 s{S_CG}, s{S_CG}, 3
    s_lshl_b32 s7, s7, 2
    s_add_u32 s{S_CG}, s{S_CG}, s7
    s_lshl_b32 s{S_TW}, s{S_RB}, 12         ; 256*rb*16
    s_lshl_b32 s7, s{S_W}, 9                ; 32*w*16
    s_add_u32 s{S_TW}, s{S_TW}, s7          ; tw*16
    s_mov_b32 s{S_X}, s{S_TW}
    s_mul_i32 s{S_O01}, s{S_CG}, 224
    s_lshl_b32 s{S_O2}, s{S_CG}, 16
    s_lshl_b32 s{S_M0}, s{S_W}, 10
    s_add_u32 s{S_M1}, s{S_M0}, 8192
    s_add_u32 s{S_M2}, s{S_M0}, 12288
    s_cmp_lt_u32 s{S_W}, 4
    s_cselect_b32 s{S_M1}, s{S_M1}, 20480
    ; ---- DMA lane offsets.  GLU type: q = 64 i' + lane, rho = q / 6, ch = q % 6, k = swap23(rho)
    s_sub_u32 s7, s{S_W}, 6
    s_cmp_lt_u32 s{S_W}, 6
    s_cselect_b32 s7, s{S_W}, s7
    s_lshl_b32 s7, s7, 6                    ; 64 i' (u=0)
    s_lshl_b32 s{S_T}, s{S_W}, 6
    s_add_u32 s{S_T}, s{S_T}, 128           ; 64 i' (u=1)
    v_add_u32 v241, s7, v0
    v_add_u32 v242, s{S_T}, v0
    """)
    for (q, d) in ((241, V_D0), (242, V_D1)):
        a(f"""
        v_mul_u32_u24 v243, 10923, v{q}
        v_lshrrev_b32 v243, 16, v243              ; rho
        v_mul_u32_u24 v244, 6, v243
        v_sub_u32 v244, v{q}, v244                ; ch
        v_and_b32 v245, 0x33, v243
        v_and_b32 v246, 4, v243
        v_lshl_or_b32 v245, v246, 1, v245
        v_and_b32 v246, 8, v243
        v_lshrrev_b32 v246, 1, v246
        v_or_b32 v245, v245, v246                  ; k
        v_mul_u32_u24 v245, 7168, v245
        v_lshl_add_u32 v{d}, v244, 4, v245
        """)
    a(f"""
    s_and_b32 s7, s{S_W}, 3
    s_lshl_b32 s7, s7, 3
    v_lshrrev_b32 v243, 3, v0
    v_add_u32 v243, s7, v243                  ; row
    v_lshrrev_b32 v244, 1, v243
    v_xor_b32 v244, v244, v0
    v_and_b32 v244, 7, v244
    v_lshlrev_b32 v244, 4, v244
    v_lshl_add_u32 v{V_D2}, v243, 11, v244
    ; X: (l>>4)*32768 + (l&15)*16
    v_lshrrev_b32 v243, 4, v0                ; g
    v_and_b32 v244, 15, v0                   ; n
    v_lshlrev_b32 v245, 4, v244
    v_lshl_add_u32 v{V_XO}, v243, 15, v245
    s_waitcnt lgkmcnt(0)
    """)
    srd(a, S_XN, 70, 71, XN_SZ, XN_OFF)
    a(f"""
    s_cmp_lt_u32 s{S_W}, 6
    s_cselect_b32 s{S_D0}, s72, s74
    s_cselect_b32 s{S_D0+1}, s73, s75
    s_mov_b32 s{S_D0+2}, 0x700000
    s_mov_b32 s{S_D0+3}, 0x00020000
    s_cmp_lt_u32 s{S_W}, 4
    s_mov_b32 s{S_D1}, s74
    s_mov_b32 s{S_D1+1}, s75
    s_cselect_b32 s{S_D1+2}, 0x700000, 0
    s_mov_b32 s{S_D1+3}, 0x00020000
    s_cselect_b32 s{S_D2}, s64, s66
    s_cselect_b32 s{S_D2+1}, s65, s67
    s_mov_b32 s{S_D2+2}, 0x200000
    s_mov_b32 s{S_D2+3}, 0x00020000
    """)
    a(f"s_mov_b32 s{S_CNT}, 0")
    st = Stream(a)
    def dma(s):
        slot = (s % NSLOT) * SLOT
        g = []
        if s < 16:
            g.append([f"s_add_u32 m0, s{S_M0}, {slot}", "s_nop 0", (f"buffer_load_dwordx4 v{V_D0}, s[{S_D0}:{S_D0+3}], s{S_O01} offen lds", ("D", s, 0))])
            g.append([f"s_add_u32 m0, s{S_M1}, {slot}", "s_nop 0", (f"buffer_load_dwordx4 v{V_D1}, s[{S_D1}:{S_D1+3}], s{S_O01} offen lds", ("D", s, 1)),
                      f"s_add_u32 s{S_O01}, s{S_O01}, 458752"])
            g.append([f"s_add_u32 m0, s{S_M2}, {slot}", "s_nop 0", (f"buffer_load_dwordx4 v{V_D2}, s[{S_D2}:{S_D2+3}], s{S_O2} offen lds", ("D", s, 2)),
                      f"s_add_u32 s{S_O2}, s{S_O2}, 128"])
        else:
            pre = [f"s_mov_b32 s{S_O01}, s{S_O96}"] if s == 16 else []
            g.append(pre + [f"s_add_u32 m0, s{S_M0}, {slot}", "s_nop 0", (f"buffer_load_dwordx4 v{V_D0B}, s[{S_G}:{S_G+3}], s{S_O01} offen lds", ("D", s, 0))])
            g.append([f"s_add_u32 m0, s{S_M0}, {slot+8192}", "s_nop 0", (f"buffer_load_dwordx4 v{V_D0B}, s[{S_U}:{S_U+3}], s{S_O01} offen lds", ("D", s, 1)),
                      f"s_add_u32 s{S_O01}, s{S_O01}, 458752"])
        if int(opts.get("dfix", 0)):
            g = [[x for x in grp if not (isinstance(x, str) and (x.startswith(f"s_add_u32 s{S_O01},") or x.startswith(f"s_add_u32 s{S_O2},")))] for grp in g]
        return g
    def dtags(s): return [("D", s, u) for u in range(3 if s < 16 else 2)]
    def xload(n):
        g = [(f"buffer_load_dwordx4 {vr(xr(n,0),4)}, v{V_XO}, s[{S_XN}:{S_XN+3}], s{S_X} offen", ("X", n, 0)),
             (f"buffer_load_dwordx4 {vr(xr(n,1),4)}, v{V_XO}, s[{S_XN}:{S_XN+3}], s{S_X} offen offset:256", ("X", n, 1))]
        if n == 31: g.append(f"s_mov_b32 s{S_X}, s{S_TW}")
        elif not int(opts.get("xfix", 0)): g.append(f"s_add_u32 s{S_X}, s{S_X}, 131072")
        return [g]
    def emit_group(g):
        for x in g:
            if isinstance(x, tuple): st.ins(x[0], x[1])
            elif x.endswith(":"): a.label(x[:-1])
            else: st.ins(x)
    for grp in dma(0): emit_group(grp)
    for n in (0, 1):
        for grp in xload(n): emit_group(grp)
    for grp in dma(1): emit_group(grp)
    for n in (2, 3):
        for grp in xload(n): emit_group(grp)
    for grp in dma(2): emit_group(grp)
    for n in (4, 5):
        for grp in xload(n): emit_group(grp)
    for s in (3, 4, 5):
        for grp in dma(s): emit_group(grp)
    P.stamp(2)
    srd(a, S_G, 72, 73, 0x700000)
    srd(a, S_U, 74, 75, 0x700000)
    srd(a, S_ACT, 70, 71, ACT_SZ, ACT_OFF)
    srd(a, S_EXR, 70, 71, EX_SZ, EX_OFF)
    srd(a, S_EXW, 70, 71, EX_SZ, EX_OFF)
    a(f"""
    s_cmp_eq_u32 s{S_W}, 7
    s_cselect_b32 s{S_EXW+2}, 0x{EX_SZ:x}, 0
    """)
    srd(a, S_XB, 70, 71, XB_SZ, XB_OFF)
    srd(a, S_P0, 60, 61, 2048)
    srd(a, S_P1, 62, 63, 2048)
    srd(a, S_P2, 68, 69, 2048)
    PF3 = int(opts.get("pf3", -1)); NPF3 = int(opts.get("npf3", 1)); PF3D = int(opts.get("pf3d", 50))
    PF2A = int(opts.get("pf2a", -1)); PF2B = int(opts.get("pf2b", -1)); PFR = int(opts.get("pf1rows", 256))
    a(f"""
    s_lshl_b32 s7, s2, 2
    s_add_u32 s7, s7, s{S_W}
    s_mov_b32 s62, 0x700000
    s_cmp_lt_u32 s{S_W}, 4
    s_cselect_b32 s60, s82, s84
    s_cselect_b32 s61, s83, s85
    s_cselect_b32 s62, s62, 0x200000
    s_cselect_b32 s68, s7, s2
    s_lshl_b32 s68, s68, 13
    s_cmp_eq_u32 s{S_W}, 5
    s_cselect_b32 s60, s86, s60
    s_cselect_b32 s61, s87, s61
    s_cmp_lt_u32 s{S_W}, 6
    s_cselect_b32 s62, s62, 0
    s_mov_b32 s63, 0x00020000
    s_mul_i32 s{S_O96}, s{S_CG}, 224
    s_add_u32 s{S_O96}, s{S_O96}, 96
    v_and_b32 v254, {64 // NPF3 - 1}, v0
    v_lshlrev_b32 v254, 7, v254
    ; warm-up of this launch's later weight rows: 4 rows x 14 lines of w_gate (even waves) / w_up (odd waves)
    s_and_b32 s7, s{S_W}, 1
    s_cmp_eq_u32 s7, 0
    s_cselect_b32 s64, s72, s74
    s_cselect_b32 s65, s73, s75
    s_mov_b32 s66, 0x700000
    s_mov_b32 s67, 0x00020000
    s_lshr_b32 s7, s2, 3
    s_lshl_b32 s7, s7, 2
    s_lshr_b32 s69, s{S_W}, 1
    s_add_u32 s69, s69, s7
    s_lshl_b32 s69, s69, 2
    s_add_u32 s69, s69, {PFR}
    s_mul_i32 s69, s69, 7168
    s_and_b32 s7, s2, 7
    s_mul_i32 s7, s7, 1792
    s_add_u32 s69, s69, s7
    v_and_b32 v253, 15, v0
    v_min_u32 v253, 13, v253
    v_lshlrev_b32 v253, 7, v253
    v_lshrrev_b32 v252, 4, v0
    v_mul_u32_u24 v252, 7168, v252
    v_add_u32 v253, v253, v252
    """)
    a(f"""
    v_lshrrev_b32 v246, 2, v0
    v_and_b32 v246, 3, v246                   ; r
    v_and_b32 v247, 3, v0                    ; c
    v_and_b32 v248, 1, v243
    v_lshl_add_u32 v248, v248, 2, v246
    v_lshrrev_b32 v249, 1, v243
    v_lshl_add_u32 v248, v249, 4, v248
    v_mul_u32_u24 v248, 96, v248
    v_lshl_add_u32 v{V_GA}, v247, 3, v248
    ; S address: 12288 + n*128 + ((g ^ (n>>1))*16)
    v_lshrrev_b32 v248, 1, v244
    v_xor_b32 v248, v248, v243
    v_lshlrev_b32 v248, 4, v248
    v_lshl_add_u32 v248, v244, 7, v248
    v_add_u32 v{V_SA0}, 12288, v248
    v_xor_b32 v{V_SA1}, 64, v{V_SA0}
    v_lshlrev_b32 v250, 1, v244
    s_lshl_b32 s7, s{S_CG}, 6
    """)
    PL = T1
    for i, sp in enumerate((S_P0, S_P1, S_P2)):
        for b in (0, 1):
            st.ins(f"buffer_load_ushort v{PL+2*i+b}, v250, s[{sp}:{sp+3}], s7 offen offset:{32*b}", ("PL", i, b))
    F1 = []
    def I(q, lst):
        for x in lst: q.append(("i", x))
    t = T1 + 8
    I(F1, [
        f"v_lshrrev_b32 v{t}, 4, v0",
        f"v_lshrrev_b32 v{t+1}, 2, v0",
        f"v_and_b32 v{t+1}, 3, v{t+1}",
        f"v_and_b32 v{t+2}, 3, v0",
        f"v_lshl_add_u32 v{t+3}, v{t}, 3, v{t+1}",
        f"v_lshlrev_b32 v{t+3}, 7, v{t+3}",
        f"v_lshl_add_u32 v{t+3}, v{t+2}, 3, v{t+3}",
        f"v_lshrrev_b32 v{t+4}, 1, v{t+1}",
        f"v_and_b32 v{t+5}, 1, v{t}",
        f"v_lshl_or_b32 v{t+4}, v{t+5}, 1, v{t+4}",
    ])
    for w in range(4):
        I(F1, [f"v_xor_b32 v{t+5}, {w}, v{t+4}", f"v_lshl_add_u32 v{GA2[w]}, v{t+5}, 5, v{t+3}"])
    I(F1, [
        f"s_lshl_b32 s7, s{S_W}, 3",
        f"v_lshrrev_b32 v{t+6}, 3, v0",
        f"v_add_u32 v{t+6}, s7, v{t+6}",
        f"v_mul_u32_u24 v{t+6}, 7168, v{t+6}",
        f"s_and_b32 s7, s{S_W}, 1",
        f"s_lshl_b32 s7, s7, 1",
        f"v_and_b32 v{t+7}, 1, v{t}",
        f"v_or_b32 v{t+7}, s7, v{t+7}",
        f"v_lshrrev_b32 v{t+8}, 1, v0",
        f"v_and_b32 v{t+8}, 3, v{t+8}",
        f"v_xor_b32 v{t+7}, v{t+7}, v{t+8}",
        f"v_lshl_add_u32 v{t+6}, v{t+7}, 5, v{t+6}",
        f"v_and_b32 v{t+8}, 1, v0",
        f"v_lshl_add_u32 v{V_D0B}, v{t+8}, 4, v{t+6}",
        f"v_and_b32 v{t+2}, 15, v0",
        f"v_lshrrev_b32 v{t+6}, 2, v{t+2}",
        f"v_lshlrev_b32 v{t+6}, 3, v{t+6}",
        f"v_lshl_add_u32 v{t+6}, v{t+5-5+0}, 0, v{t+6}" if False else f"v_and_b32 v{t+7}, 1, v{t}",
        f"v_lshl_add_u32 v{t+6}, v{t+7}, 2, v{t+6}",
        f"v_and_b32 v{t+7}, 3, v{t+2}",
        f"v_add_u32 v{t+6}, v{t+6}, v{t+7}",
        f"v_lshlrev_b32 v{t+6}, 4, v{t+6}",
        f"v_lshrrev_b32 v{t+7}, 1, v{t}",
        f"v_lshl_add_u32 v{V_ST}, v{t+7}, 15, v{t+6}",
        f"v_lshlrev_b32 v{V_P16}, 4, v{t+2}",
        f"s_mul_i32 s7, s{S_W}, 1792",
        f"s_add_u32 s7, s7, {SCR_W}",
        f"v_lshl_add_u32 v{V_SW}, v{t}, 8, v{V_P16}",
        f"v_add_u32 v{V_SW}, s7, v{V_SW}",
        f"s_lshl_b32 s7, s{S_W}, 8",
        f"s_add_u32 s7, s7, {TABLE}",
        f"v_add_u32 v{V_TB}, s7, v{V_P16}",
        f"s_mul_i32 s{S_ST}, s{S_CG}, {14*32768}",
        f"s_add_u32 s{S_ST}, s{S_ST}, s{S_TW}",
        f"s_lshl_b32 s{S_SS}, s{S_CG}, 17",
        f"s_add_u32 s{S_SS}, s{S_SS}, s{S_TW}",
        f"s_add_u32 s{S_SS}, s{S_SS}, {448*32768}",
        f"s_lshl_b32 s{S_ER}, s{S_CG}, 12",
        f"s_lshl_b32 s7, s{S_RB}, 8",
        f"s_add_u32 s{S_ER}, s{S_ER}, s7",
        f"s_add_u32 s{S_EW}, s{S_ER}, {7*256}",
        f"s_lshl_b32 s{S_XBO}, s2, 15",
        f"s_lshl_b32 s7, s{S_W}, 12",
        f"s_add_u32 s{S_XBO}, s{S_XBO}, s7",
        f"v_mov_b32 v{t+12}, 0", f"v_mov_b32 v{t+13}, 0", f"v_mov_b32 v{t+14}, 0", f"v_mov_b32 v{t+15}, 0",
        f"ds_write_b128 v{V_SW}, {vr(t+12,4)}",
        f"ds_write_b128 v{V_TB}, {vr(t+12,4)}",
        f"v_mov_b32 v{t+16}, -1", f"v_mov_b32 v{t+17}, -1", f"v_mov_b32 v{t+18}, -1", f"v_mov_b32 v{t+19}, -1",
        f"v_lshlrev_b32 v{t+20}, 4, v0",
    ])
    for k in range(4):
        I(F1, [f"buffer_store_dwordx4 {vr(t+16,4)}, v{t+20}, s[{S_XB}:{S_XB+3}], s{S_XBO} offen offset:{k*1024}"])
    F1.append(("need", [("PL", i, b) for i in range(3) for b in (0, 1)]))
    u = T1 + 32
    for b in (0, 1):
        lre, lim, dt = PL + b, PL + 2 + b, PL + 4 + b
        q = u + 8 * b
        I(F1, [
            f"v_lshlrev_b32 v{lre}, 16, v{lre}",
            f"v_lshlrev_b32 v{lim}, 16, v{lim}",
            f"v_lshlrev_b32 v{dt}, 16, v{dt}",
            f"v_mul_f32 v{dt}, {L2E}, v{dt}",
            f"v_exp_f32 v{dt}, v{dt}",
            f"v_cvt_pk_bf16_f32 v{dt}, v{dt}, v{dt}",
            f"v_and_b32 v{dt}, 0xffff0000, v{dt}",
            f"v_mul_f32 v{q}, v{dt}, v{lre}",
            f"v_mul_f32 v{q+1}, v{dt}, v{lim}",
            f"v_mul_f32 v{LAM+b}, {L2E}, v{q}",
            f"v_mul_f32 v{TH+b}, 0x3e22f983, v{q+1}",
        ])
    I(F1, power(A1, "1.0", u + 16))
    for b in (0, 1):
        lre, lim = PL + b, PL + 2 + b
        ar, ai = A1 + 2 * b, A1 + 2 * b + 1
        q = u + 8 * b
        I(F1, [
            f"v_add_f32 v{q}, -1.0, v{ar}",
            f"v_mul_f32 v{q+1}, v{lre}, v{lre}",
            f"v_fmac_f32 v{q+1}, v{lim}, v{lim}",
            f"v_rcp_f32 v{q+1}, v{q+1}",
            f"v_mul_f32 v{q+2}, v{q}, v{lre}",
            f"v_fmac_f32 v{q+2}, v{ai}, v{lim}",
            f"v_mul_f32 v{q+3}, v{ai}, v{lre}",
            f"v_fma_f32 v{q+3}, -v{q}, v{lim}, v{q+3}",
            f"v_add_f32 v{q+1}, v{q+1}, v{q+1}",
            f"v_mul_f32 v{CF+2*b}, v{q+2}, v{q+1}",
            f"v_mul_f32 v{CF+2*b+1}, v{q+3}, v{q+1}",
        ])
    I(F1, power(A8, "0x41000000", u + 16))
    I(F1, power(A32, "0x42000000", u + 16))

    F2 = []
    R0, R1, R2 = PG(0), PG(1), PG(2)
    I(F2, glu(0, flags))
    F2.append(("atS",))
    cur = [(SRE(b), SIM(b)) for b in (0, 1)]
    for j in range(1, 8):
        d = R0 if (j & 1) else R0 + 4
        for b in (0, 1):
            F2.append(("i", f"v_fma_f32 v{d+2*b}, v{A1+2*b}, v{cur[b][0]}, v{SRE(b)+j}"))
            F2.append(("i", f"v_fma_f32 v{d+2*b+1}, v{A1+2*b}, v{cur[b][1]}, v{SIM(b)+j}"))
        for b in (0, 1):
            F2.append(("i", f"v_fma_f32 v{d+2*b}, -v{A1+2*b+1}, v{cur[b][1]}, v{d+2*b}"))
            F2.append(("i", f"v_fma_f32 v{d+2*b+1}, v{A1+2*b+1}, v{cur[b][0]}, v{d+2*b+1}"))
        cur = [(d + 2 * b, d + 2 * b + 1) for b in (0, 1)]
    I(F2, [f"ds_write_b128 v{V_SW}, {vr(R0,4)} offset:768"])
    for k in range(3):
        F2.append(("t", f"ds_read_b128 {vr(R0+4+4*k,4)}, v{V_SW} offset:{256*k}", ("SW", k)))
    F2.append(("gapn", 3))
    F2.append(("need", [("SW", 2)]))
    I(F2, quad_mac(R0 + 8, A8, R0 + 4))
    I(F2, quad_mac(R0 + 12, A8, R0 + 8))
    I(F2, quad_mac(R0, A8, R0 + 12))
    F2.append(("g", ["s_mov_b32 exec_lo, 0", "s_mov_b32 exec_hi, 0xffff0000",
                     (f"ds_write_b128 v{V_TB}, {vr(R0,4)} offset:{7*256}", "TW"), "s_mov_b64 exec, -1"]))
    F2.append(("mark", "TW"))
    F2.append(("at1",))
    I(F2, glu(1, flags))
    F2.append(("afterbar", "TW"))
    rows = [R1, R1 + 4, R1 + 8, R1 + 12, R0 + 4, R0 + 8, Q0]
    for k in range(7):
        F2.append(("t", f"ds_read_b128 {vr(rows[k],4)}, v{V_TB} offset:{256*k}", ("TR", k)))
    F2.append(("gapn", 2))
    for k in range(1, 7):
        F2.append(("need", [("TR", k - 1), ("TR", k)]))
        I(F2, quad_mac(rows[k], A32, rows[k-1]))
    I(F2, quad_mac(R0, A32, Q0))
    I(F2, [f"s_mov_b32 s7, 0xfffffffe"])
    I(F2, [f"v_min_u32 v{R0+r}, s7, v{R0+r}" for r in range(4)])
    F2.append(("g", ["s_mov_b32 exec_lo, 0", "s_mov_b32 exec_hi, 0xffff0000",
                     f"buffer_store_dwordx4 {vr(R0,4)}, v{V_P16}, s[{S_EXW}:{S_EXW+3}], s{S_EW} offen sc1", "s_mov_b64 exec, -1"]))
    F2.append(("stamp", 4))
    I(F2, [f"v_lshrrev_b32 v{R1+12}, 4, v0", f"v_lshlrev_b32 v{R1+12}, 3, v{R1+12}", f"v_cvt_f32_u32 v{R1+13}, v{R1+12}"])
    I(F2, power(R1, f"v{R1+13}", R1 + 4))
    I(F2, quad_mac(R0 + 12, R1, Q0))
    I(F2, [f"s_lshl_b32 s7, s{S_W}, 5", f"v_add_u32 v{V_D0}, s7, v{R1+12}", f"v_cvt_f32_u32 v{V_D0}, v{V_D0}"])
    F2.append(("at", int(opts.get("pollat", 0))))
    prow = [R1, R1 + 4, R1 + 8, R1 + 12, R0, R0 + 4, R0 + 8]
    def poll_loads(tagged):
        o = []
        for k in range(7):
            s = f"buffer_load_dwordx4 {vr(prow[k],4)}, v{V_P16}, s[{S_EXR}:{S_EXR+3}], s{S_ER} offen offset:{256*k} sc1"
            o.append((s, ("PR", k)) if tagged else s)
        return o
    if POLLFIRST:
        for x in poll_loads(True): F2.append(("t", x[0], x[1]))
    I(F2, glu(2, flags))
    I(F2, power(R2, "0x43800000", R2 + 8))
    I(F2, power(R2 + 4, f"v{V_D0}", R2 + 8))
    if not POLLFIRST:
        for x in poll_loads(True): F2.append(("t", x[0], x[1]))
    F2.append(("gapn", int(opts.get("pollgap", 0))))
    F2.append(("need", [("PR", 6)]))
    def maxchain():
        m = V_D2
        regs = [r + i for r in prow for i in range(4)]
        o = [f"v_max3_u32 v{m}, v{regs[0]}, v{regs[1]}, v{regs[2]}"]
        for k in range(3, 27, 2):
            o.append(f"v_max3_u32 v{m}, v{m}, v{regs[k]}, v{regs[k+1]}")
        o.append(f"v_max_u32 v{m}, v{m}, v{regs[27]}")
        o.append(f"v_cmp_eq_u32 vcc, -1, v{m}")
        return o
    I(F2, maxchain())
    F2.append(("g", ["s_nop 3", "s_cmp_eq_u64 vcc, 0", "s_cbranch_scc0 K2_SLOW", "K2_BACK:"]))
    for k in range(1, 7):
        I(F2, quad_mac(prow[k], R2, prow[k-1]))
    I(F2, quad_mac(R0 + 12, R2 + 4, R0 + 8))
    H = [R0 + 12, R2 + 8]
    TT = R2 + 12
    for j in range(8):
        s_, d = H[j & 1], H[(j + 1) & 1]
        for b in (0, 1):
            F2.append(("i", f"v_fma_f32 v{d+2*b}, v{A1+2*b}, v{s_+2*b}, v{SRE(b)+j}"))
            F2.append(("i", f"v_fma_f32 v{d+2*b+1}, v{A1+2*b}, v{s_+2*b+1}, v{SIM(b)+j}"))
        for b in (0, 1):
            F2.append(("i", f"v_fma_f32 v{d+2*b}, -v{A1+2*b+1}, v{s_+2*b+1}, v{d+2*b}"))
            F2.append(("i", f"v_fma_f32 v{d+2*b+1}, v{A1+2*b+1}, v{s_+2*b}, v{d+2*b+1}"))
        for b in (0, 1):
            F2.append(("i", f"v_mul_f32 v{TT+2*b}, v{CF+2*b+1}, v{d+2*b+1}"))
            F2.append(("i", f"v_mul_f32 v{TT+2*b+1}, v{CF+2*b+1}, v{d+2*b}"))
        for b in (0, 1):
            F2.append(("i", f"v_fma_f32 v{SRE(b)+j}, v{CF+2*b}, v{d+2*b}, -v{TT+2*b}"))
            F2.append(("i", f"v_fma_f32 v{SIM(b)+j}, -v{CF+2*b}, v{d+2*b+1}, -v{TT+2*b+1}"))
    SEL = R1
    I(F2, [
        f"v_and_b32 v{R1+8}, 15, v0",
        f"v_lshrrev_b32 v{R1+9}, 2, v{R1+8}",
        f"v_lshrrev_b32 v{R1+10}, 4, v0",
        f"v_and_b32 v{R1+11}, 1, v0",
        f"v_lshlrev_b32 v{R1+11}, 4, v{R1+11}",
        f"v_mov_b32 v{R1+12}, 0x3f80",
        f"v_lshlrev_b32 v{R1+12}, v{R1+11}, v{R1+12}",
        f"v_cmp_eq_u32 vcc, v{R1+9}, v{R1+10}",
        f"v_mov_b32 v{SEL}, 0", f"v_mov_b32 v{SEL+1}, 0",
        f"v_cndmask_b32 v{R1+12}, 0, v{R1+12}, vcc",
        f"v_and_b32 v{R1+13}, 2, v0",
        f"v_cmp_eq_u32 vcc, 0, v{R1+13}",
        f"v_mov_b32 v{SEL+4}, 0", f"v_mov_b32 v{SEL+5}, 0",
        f"v_cndmask_b32 v{SEL+2}, 0, v{R1+12}, vcc",
        f"v_cndmask_b32 v{SEL+3}, v{R1+12}, 0, vcc",
    ])
    outs = [(SRE(0), 0), (SRE(1), 65536), (SIM(0), 4194304), (SIM(1), 4194304 + 65536)]
    for k, (X, off) in enumerate(outs):
        for q in range(4):
            F2.append(("i", f"v_cvt_pk_bf16_f32 v{X+q}, v{X+2*q}, v{X+2*q+1}"))
    for k, (X, off) in enumerate(outs):
        d1 = R1 + 8 + 4 * (k & 1)
        F2.append(("i", f"v_mfma_f32_16x16x32_bf16 {vr(X+4,4)}, {vr(X,4)}, {vr(SEL+2,4)}, 0"))
        F2.append(("i", f"v_mfma_f32_16x16x32_bf16 {vr(d1,4)}, {vr(X,4)}, {vr(SEL,4)}, 0"))
        if k >= 1:
            Xp, offp = outs[k-1]
            I(F2, pack_store(Xp, Xp + 4, R1 + 8 + 4 * ((k - 1) & 1), f"s_add_u32 s{S_T}, s{S_SS}, {offp}", flags))
        else:
            F2.append(("gapn", 3))
    F2.append(("gapn", 3))
    Xp, offp = outs[3]
    I(F2, pack_store(Xp, Xp + 4, R1 + 12, f"s_add_u32 s{S_T}, s{S_SS}, {offp}", flags))
    if NOEPI:
        F2 = [("label", "K2_BACK")]

    pairs = []
    def mm(d, A, B, first):
        return f"v_mfma_f32_16x16x32_bf16 {vr(d,4)}, {vr(A,4)}, {vr(B,4)}, {'0' if first else vr(d,4)}"
    def add_pair(n, kind, idx):
        s = n // 2; h = n & 1
        slot = (s % NSLOT) * SLOT
        first = (n % 32 == 0)
        if kind == "S":
            im, b = idx
            rd = [("ds_read_b128", (V_SA0, V_SA1)[h], slot, im * 4096 + b * 2048, 0, 4)]
            D = SIM(b) if im else SRE(b)
        elif kind == "W1":
            j, up = idx
            o = up * 6144 + h * 3072 + j * 32
            rd = [("ds_read_b64_tr_b16", V_GA, slot, o, 0, 2), ("ds_read_b64_tr_b16", V_GA, slot, o + 768, 2, 2)]
            D = PU(j) if up else PG(j)
        else:
            j, up = idx
            o = up * 8192 + h * 4096
            rd = [("ds_read_b64_tr_b16", GA2[j-3], slot, o, 0, 2), ("ds_read_b64_tr_b16", GA2[j-3], slot, o + 512, 2, 2)]
            D = PU(j) if up else PG(j)
        pairs.append(dict(n=n, stage=s, kind=kind, rd=rd, D=D, first=first, idx=idx))
    def add_S(n):
        for im in (0, 1):
            for b in (0, 1): add_pair(n, "S", (im, b))
    for n in range(32 - NT1):
        add_S(n)
        for j in range(3):
            for up in (0, 1): add_pair(n, "W1", (j, up))
    for n in range(32 - NT1, 32):
        for up in (0, 1): add_pair(n, "W1", (0, up))
    F2START = len(pairs) + (1 if NT1 else 0)
    for n in range(32 - NT1, 32): add_S(n)
    SDONE = len(pairs) + 1
    for j in (1, 2):
        for n in range(32 - NT1, 32):
            for up in (0, 1): add_pair(n, "W1", (j, up))
    if NT1 == 0: F2START = SDONE = len(pairs) + 1
    P1END = len(pairs)
    NTAIL = int(opts.get("ntail", 4))
    for n in range(32, 64 - NTAIL):
        for j in range(3, 7):
            for up in (0, 1): add_pair(n, "W2", (j, up))
    tail0 = len(pairs)
    for j in range(3, 7):
        for n in range(64 - NTAIL, 64):
            for up in (0, 1): add_pair(n, "W2", (j, up))
    NP = len(pairs)
    F3 = []
    for j in range(3, 6):
        F3.append(("at", tail0 + (j - 2) * 2 * NTAIL + 1))
        I(F3, glu(j, flags))

    base = {}
    state = dict(bar=-1, marks={}, nbar=0)
    hq = []
    pend = []
    def barrier_for(stage):
        while state["bar"] < stage:
            s = state["bar"] + 1
            st.need(*(dtags(s) + pend))
            pend.clear()
            st.ins("s_barrier")
            state["bar"] = s; state["nbar"] += 1
            if s >= 2 and s + 4 < 32:
                hq.extend(dma(s + 4))
    def read_ins(k):
        p = pairs[k]
        barrier_for(p["stage"])
        o = []
        for (op, areg, slot, off, ro, cnt) in p["rd"]:
            cur = base.get(areg, 0)
            rel = slot + off - cur
            if rel < 0 or rel > 65535 - 1024:
                delta = slot - cur
                o.append((f"v_add_u32 v{areg}, {delta & 0xffffffff}, v{areg}" if delta >= 0 else f"v_subrev_u32 v{areg}, {-delta}, v{areg}", None))
                base[areg] = slot
                rel = off
            o.append((f"{op} {vr(wr(k)+ro,cnt)}, v{areg} offset:{rel}", ("W", k, ro)))
        return o
    def wtags(k): return [("W", k, r[4]) for r in pairs[k]["rd"]]
    fq = dict(q=F1, pos=0, credit=0.0, hold=0)
    def run_fillers(i, budget):
        used = 0
        while hq and used < max(budget, 1) + 1:
            g = hq.pop(0); emit_group(g); used += 1
        q = fq["q"]
        while fq["pos"] < len(q) and used < budget:
            it = q[fq["pos"]]
            k = it[0]
            if k == "i": st.ins(it[1]); used += 1
            elif k == "t": st.ins(it[1], it[2]); used += 1
            elif k == "g": emit_group(it[1]); used += 2
            elif k == "need": st.need(*it[1])
            elif k == "mark": pend.append(it[1]); state["marks"][it[1]] = state["nbar"]
            elif k == "afterbar":
                if state["nbar"] <= state["marks"][it[1]]: return
            elif k == "at":
                if i < it[1]: return
            elif k == "atS":
                if i < SDONE: return
            elif k == "at1":
                if i < P1END + 1: return
            elif k == "gapn":
                if fq["hold"] < it[1]:
                    fq["hold"] += 1; return
                fq["hold"] = 0
            elif k == "label": a.label(it[1])
            elif k == "stamp": P.stamp(it[1])
            fq["pos"] += 1
    def flush_fillers():
        while hq or fq["pos"] < len(fq["q"]):
            before = (len(hq), fq["pos"], fq["hold"])
            run_fillers(10**9, 1000)
            if (len(hq), fq["pos"], fq["hold"]) == before:
                raise RuntimeError("filler stuck %r" % (fq["q"][fq["pos"]],))
            if fq["hold"]: st.ins("s_nop 3")
    for k in range(NWR - 1):
        for ins, tag in read_ins(k): st.ins(ins, tag)
    P.stamp(3)
    acc_credit = 0.0
    last_use = {}
    for i, p in enumerate(pairs): last_use[p["n"]] = i
    xat = {}
    for m in range(NXR, 64): xat.setdefault(last_use[m - NXR] + 1, []).append(m)
    for i in range(NP):
        p = pairs[i]
        if i == F2START:
            flush_fillers()
            fq.update(q=F2, pos=0, hold=0)
        if i == P1END:
            P.stamp(5)
        for q in range(NPF3):
            if PF3 >= 0 and i == PF3 + q * PF3D:
                hq.append([(f"buffer_load_dword v255, v254, s[60:63], s68 offen offset:{q * (64 // NPF3) * 128 if q * (64 // NPF3) * 128 < 4096 else 0}", ("PF", 3))] if q * (64 // NPF3) * 128 < 4096 else
                          [f"s_add_u32 s{S_T}, s68, {q * (64 // NPF3) * 128}", (f"buffer_load_dword v255, v254, s[60:63], s{S_T} offen", ("PF", 3))])
        if i == PF2A:
            hq.append([("buffer_load_dword v255, v253, s[64:67], s69 offen", ("PF", 1))])
        if i == PF2B:
            hq.append([f"s_add_u32 s69, s69, {512*7168}", ("buffer_load_dword v255, v253, s[64:67], s69 offen", ("PF", 2))])
        if i == P1END - 1:
            st.need(*[t for t in (("PF", 1), ("PF", 2), ("PF", 3)) if t in st.tags])
        if i == tail0:
            if fq["pos"] < len(fq["q"]): print("K2: %d scan fillers left at tail" % (len(fq["q"]) - fq["pos"]))
            flush_fillers()
            fq.update(q=F3, pos=0, hold=0)
        rate = 1.0 if i < F2START else (RATE2 if i < tail0 else RATE3)
        n = p["n"]
        tg = wtags(i) + [("X", n, 0), ("X", n, 1)]
        if i % 2 == 0 and i + 1 < NP:
            tg += wtags(i + 1)
        st.need(*tg)
        rd = read_ins(i + NWR - 1) if i + NWR - 1 < NP else []
        g1 = []; g2 = []
        seen = 0
        for x in rd:
            if x[1] is None: (g1 if seen == 0 else g2).append(x)
            else:
                (g1 if seen == 0 else g2).append(x); seen += 1
        W, D = wr(i), p["D"]
        for tb in (0, 1):
            X = xr(n, tb - 0)
            if p["kind"] == "S": st.ins(mm(D + 4 * tb, X, W, p["first"]))
            else: st.ins(mm(D + 4 * tb, W, X, p["first"]))
            for ins, tag in (g1 if tb == 0 else g2): st.ins(ins, tag)
            if tb == 0:
                for m in xat.get(i, []): hq.extend(xload(m))
            acc_credit += rate
            bud = int(acc_credit); acc_credit -= bud
            run_fillers(i, bud)
    a("s_nop 7"); st.n += 8
    P.stamp(6)
    flush_fillers()
    for x in glu(6, flags): st.ins(x)
    print("K2: nops inserted", st.nops, "slots", st.n)
    P.stamp(7)
    if P.on:
        a(f"s_mov_b32 s{P.regs[8]}, s{S_CNT}")
        a("s_waitcnt vmcnt(0)")
    P.stamp(9, real=True)
    P.flush(70, 71, 60, S_W, 40, 41)
    a("s_endpgm")
    a.label("K2_SLOW")
    a(f"s_mov_b32 s{S_CNT}, 0")
    a.label("K2_SLOWL")
    for x in poll_loads(False): a(x)
    a("s_waitcnt vmcnt(0)")
    for x in maxchain(): a(x)
    a(f"""
    s_add_u32 s{S_CNT}, s{S_CNT}, 1
    s_nop 3
    s_cmp_eq_u64 vcc, 0
    s_cbranch_scc1 K2_BACK
    s_cmp_lt_u32 s{S_CNT}, 100000
    s_cbranch_scc1 K2_SLOWL
    s_branch K2_BACK
    """)
    a.label("K2_END")
    a("s_endpgm")
    return 256
```

```python
from common import *

K1 = "ssm_ln_kernel"
K1_LDS = 2560
TK = {24: (88, 89), 32: (90, 91), 40: (92, 93), 48: (94, 95), 80: (96, 97), 88: (98, 99), 96: (24, 25), 104: (26, 27), 120: (6, 7)}

def gen_k1(a, prof=False, opts=None):
    opts = opts or {}
    kernel_begin(a, K1)
    P = Prof(a, prof, 0, list(range(40, 50)), 50)
    a("""
    s_cmp_ge_u32 s2, 256
    s_cbranch_scc1 K1_END
    """)
    P.stamp(0, real=True)
    P.stamp(1)
    a("""
    s_load_dwordx2 s[4:5], s[0:1], 0
    s_load_dwordx2 s[6:7], s[0:1], 120
    s_load_dwordx8 s[88:95], s[0:1], 24
    s_load_dwordx4 s[96:99], s[0:1], 80
    s_load_dwordx4 s[24:27], s[0:1], 96
    s_load_dwordx4 s[28:31], s[0:1], 8
    s_load_dwordx4 s[32:35], s[0:1], 56
    v_and_b32 v1, 63, v0
    v_lshrrev_b32 v2, 6, v0
    v_and_b32 v3, 7, v1                 ; r
    v_lshrrev_b32 v4, 3, v1             ; part
    v_lshlrev_b32 v5, 5, v2
    v_add_u32 v5, v5, v4
    s_lshl_b32 s3, s2, 3
    v_add_u32 v6, s3, v3
    s_lshr_b32 s20, s2, 2
    s_lshl_b32 s20, s20, 5
    s_and_b32 s21, s2, 1
    s_lshl_b32 s21, s21, 4
    s_add_u32 s20, s20, s21
    s_and_b32 s21, s2, 2
    s_lshl_b32 s21, s21, 1
    s_add_u32 s20, s20, s21
    v_lshrrev_b32 v7, 2, v3
    v_and_b32 v8, 3, v3
    v_lshl_add_u32 v7, v7, 3, v8
    v_add_u32 v7, s20, v7               ; row
    v_lshlrev_b32 v7, 11, v7
    v_lshl_add_u32 v7, v5, 4, v7
    v_lshlrev_b32 v8, 15, v5
    v_lshl_add_u32 v8, v6, 4, v8
    v_mul_u32_u24 v9, 144, v3
    v_lshl_add_u32 v10, v2, 3, v4       ; w*8+part
    v_lshl_add_u32 v10, v10, 2, v9
    s_waitcnt lgkmcnt(0)
    """)
    srd(a, 8, 4, 5, 0x400000)
    srd(a, 12, 6, 7, XN_SZ, XN_OFF)
    srd(a, 16, 6, 7, EX_SZ, EX_OFF)
    for j in range(4):
        a(f"buffer_load_dwordx4 v[{16+4*j}:{19+4*j}], v7, s[8:11], 0 offen offset:{128*j}")
    TOUCH = int(opts.get("touch", 0))
    ntouch = 0
    if TOUCH:
        a(f"""
        s_lshr_b32 s3, s2, 3
        v_lshl_add_u32 v110, v0, 5, s3
        v_mul_u32_u24 v110, {TOUCH}, v110
        """)
        lst = [(80, 0x700000), (88, 0x700000), (24, 0x200000), (32, 0x200000), (96, 0x700000), (40, 0x200000), (48, 0x200000), (120, 0x2300000), (104, 0x800000)]
        sel = opts.get("tsel", "012345678")
        for i, (ko, size) in enumerate(lst):
            if str(i) not in sel: continue
            b = 52 + 4 * i
            lo, hi = TK[ko]
            srd(a, b, lo, hi, size)
            for rep in range((size + 8192 * TOUCH - 1) // (8192 * TOUCH)):
                a(f"s_mov_b32 s23, {rep * 8192 * TOUCH}")
                a(f"buffer_load_dword v{111 + (ntouch & 7)}, v110, s[{b}:{b+3}], s23 offen")
                ntouch += 1
    PF = opts.get("pf", "")
    if PF:
        LS = int(opts.get("pfs", 128))
        per = max(1, 0x800000 // (65536 * LS))
        a(f"""
        s_lshl_b32 s3, s2, 8
        v_add_u32 v110, s3, v0
        v_mul_u32_u24 v110, {LS}, v110
        s_lshr_b32 s3, s2, 2
        s_lshl_b32 s3, s3, 8
        v_add_u32 v109, s3, v0
        v_mul_u32_u24 v109, {LS}, v109
        """)
        for i, c in enumerate(PF):
            b = 52 + 4 * i
            if c in "gud":
                lo, hi = TK[{"g": 80, "u": 88, "d": 96}[c]]
                srd(a, b, lo, hi, 0x700000)
                for rep in range(per):
                    a(f"s_mov_b32 s23, {rep * 65536 * LS}")
                    a(f"buffer_load_dword v{111 + (ntouch & 7)}, v110, s[{b}:{b+3}], s23 offen")
                    ntouch += 1
            elif c == "s":
                a(f"""
                s_and_b32 s3, s2, 3
                s_cmp_lt_u32 s3, 2
                s_cselect_b32 s20, s88, s92
                s_cselect_b32 s21, s89, s93
                s_cselect_b32 s22, s90, s94
                s_cselect_b32 s23, s91, s95
                s_and_b32 s3, s2, 1
                s_cmp_eq_u32 s3, 0
                s_cselect_b32 s{b}, s20, s22
                s_cselect_b32 s{b+1}, s21, s23
                s_mov_b32 s{b+2}, 0x200000
                s_mov_b32 s{b+3}, 0x00020000
                """)
                for rep in range(per):
                    a(f"s_mov_b32 s23, {rep * 16384 * LS}")
                    a(f"buffer_load_dword v{111 + (ntouch & 7)}, v109, s[{b}:{b+3}], s23 offen")
                    ntouch += 1
            elif c == "p":
                a(f"""
                s_cmp_eq_u32 s2, 1
                s_cselect_b32 s{b}, s30, s28
                s_cselect_b32 s{b+1}, s31, s29
                s_cmp_eq_u32 s2, 2
                s_cselect_b32 s{b}, s32, s{b}
                s_cselect_b32 s{b+1}, s33, s{b+1}
                s_cmp_eq_u32 s2, 3
                s_cselect_b32 s{b}, s34, s{b}
                s_cselect_b32 s{b+1}, s35, s{b+1}
                s_cmp_lt_u32 s2, 4
                s_cselect_b32 s{b+2}, 2048, 0
                s_mov_b32 s{b+3}, 0x00020000
                v_lshlrev_b32 v107, 7, v0
                buffer_load_dword v{111 + (ntouch & 7)}, v107, s[{b}:{b+3}], 0 offen
                """)
                ntouch += 1
            elif c == "b":
                a(f"""
                s_lshr_b32 s3, s2, 1
                s_lshl_b32 s3, s3, 8
                v_add_u32 v108, s3, v0
                v_mul_u32_u24 v108, {LS}, v108
                s_and_b32 s3, s2, 1
                s_cmp_eq_u32 s3, 0
                s_cselect_b32 s{b}, s88, s90
                s_cselect_b32 s{b+1}, s89, s91
                s_mov_b32 s{b+2}, 0x200000
                s_mov_b32 s{b+3}, 0x00020000
                """)
                for rep in range(per):
                    a(f"s_mov_b32 s23, {rep * 32768 * LS}")
                    a(f"buffer_load_dword v{111 + (ntouch & 7)}, v108, s[{b}:{b+3}], s23 offen")
                    ntouch += 1
    if int(opts.get("pf1", 0)):
        R1 = int(opts.get("pf1rows", 256))
        a(f"""
        v_readfirstlane_b32 s3, v2
        v_lshlrev_b32 v110, 8, v1
        v_add_u32 v110, s2, v110
        v_lshlrev_b32 v110, 7, v110
        s_cmp_lt_u32 s3, 2
        s_cselect_b32 s20, s96, s88
        s_cselect_b32 s21, s97, s89
        s_cselect_b32 s22, s98, s90
        s_cselect_b32 s23, s99, s91
        s_mov_b32 s54, {R1 * 7168}
        s_cselect_b32 s54, s54, 0x200000
        s_and_b32 s3, s3, 1
        s_cmp_eq_u32 s3, 0
        s_cselect_b32 s52, s20, s22
        s_cselect_b32 s53, s21, s23
        s_mov_b32 s55, 0x00020000
        buffer_load_dword v111, v110, s[52:55], 0 offen
        """)
        ntouch += 1
    a(f"s_waitcnt vmcnt({ntouch})")
    for d in range(16):
        a(f"v_lshlrev_b32 v{32+2*d}, 16, v{16+d}")
        a(f"v_and_b32 v{33+2*d}, 0xffff0000, v{16+d}")
    for q in range(4):
        a(f"v_add_f32 v{64+q}, v{32+q}, v{36+q}")
    for d in range(8, 32, 4):
        for q in range(4):
            a(f"v_add_f32 v{64+q}, v{64+q}, v{32+d+q}")
    a("v_add_f32 v64, v64, v65")
    a("v_add_f32 v66, v66, v67")
    a("v_add_f32 v64, v64, v66")
    a("ds_write_b32 v10, v64")
    a("s_waitcnt lgkmcnt(0)")
    a("s_barrier")
    def reduce32(off, dst):
        for q in range(8):
            a(f"ds_read_b128 v[{68+4*q}:{71+4*q}], v9 offset:{off+16*q}")
        a("s_waitcnt lgkmcnt(0)")
        for n in (16, 8, 4, 2, 1):
            for q in range(n):
                a(f"v_add_f32 v{68+q}, v{68+q}, v{68+n+q}")
        a(f"v_mul_f32 v{dst}, 0x3a800000, v68")
    reduce32(0, 100)
    for d in range(32):
        a(f"v_sub_f32 v{68+d}, v{32+d}, v100")
    for q in range(4):
        a(f"v_mul_f32 v{64+q}, v{68+q}, v{68+q}")
    for d in range(4, 32, 4):
        for q in range(4):
            a(f"v_fmac_f32 v{64+q}, v{68+d+q}, v{68+d+q}")
    a("v_add_f32 v64, v64, v65")
    a("v_add_f32 v66, v66, v67")
    a("v_add_f32 v64, v64, v66")
    a("ds_write_b32 v10, v64 offset:1152")
    a("s_waitcnt lgkmcnt(0)")
    a("s_barrier")
    reduce32(1152, 101)
    a("""
    v_cvt_pk_bf16_f32 v102, v100, v101
    v_lshlrev_b32 v100, 16, v102
    v_and_b32 v101, 0xffff0000, v102
    v_add_f32 v101, 0x3727c5ac, v101        ; + 1e-5
    v_cvt_pk_bf16_f32 v101, v101, v101
    v_and_b32 v101, 0xffff0000, v101
    v_sqrt_f32 v101, v101
    s_nop 0
    v_cvt_pk_bf16_f32 v101, v101, v101
    v_and_b32 v101, 0xffff0000, v101
    v_rcp_f32 v101, v101
    s_nop 0
    """)
    for d in range(16):
        x0, x1 = 32 + 2*d, 33 + 2*d
        a(f"v_sub_f32 v{x0}, v{x0}, v100")
        a(f"v_sub_f32 v{x1}, v{x1}, v100")
        a(f"v_cvt_pk_bf16_f32 v{x0}, v{x0}, v{x1}")
        a(f"v_and_b32 v{x1}, 0xffff0000, v{x0}")
        a(f"v_lshlrev_b32 v{x0}, 16, v{x0}")
        a(f"v_mul_f32 v{x0}, v{x0}, v101")
        a(f"v_mul_f32 v{x1}, v{x1}, v101")
        a(f"v_cvt_pk_bf16_f32 v{16+d}, v{x0}, v{x1}")
    for j in range(4):
        a(f"s_mov_b32 s23, {8*32768*j}")
        a(f"buffer_store_dwordx4 v[{16+4*j}:{19+4*j}], v8, s[12:15], s23 offen {(opts or {}).get('k1st','')}".rstrip())
    a("""
    v_cmp_gt_u32 vcc, 32, v0
    s_and_saveexec_b64 s[20:21], vcc
    s_cbranch_execz K1_NOCLR
    s_lshl_b32 s22, s2, 9
    s_and_b32 s23, s2, 7
    s_lshl_b32 s23, s23, 1
    v_lshrrev_b32 v12, 4, v0
    v_add_u32 v12, s23, v12             ; row
    v_cmp_lt_u32 vcc, 6, v12
    v_lshlrev_b32 v11, 4, v0
    s_nop 1
    v_cndmask_b32 v12, 0, -1, vcc
    v_cndmask_b32 v13, 0, -1, vcc
    v_cndmask_b32 v14, 0, -1, vcc
    v_cndmask_b32 v15, 0, -1, vcc
    buffer_store_dwordx4 v[12:15], v11, s[16:19], s22 offen
    """)
    a.label("K1_NOCLR")
    a("s_mov_b64 exec, s[20:21]")
    if P.on:
        a("s_waitcnt vmcnt(0)")
        a("v_lshrrev_b32 v2, 6, v0")
        a("s_nop 1")
        a("v_readfirstlane_b32 s3, v2")
    P.stamp(9, real=True)
    P.flush(6, 7, 36, 3, 70, 71)
    a.label("K1_END")
    a("s_endpgm")
    return 120
```

```python
from common import *
from stream import Stream

K2 = "ssm_gemm1_kernel"
SLOT = 21504
NSLOT = 6
SCR_W = NSLOT * SLOT
TABLE = SCR_W + 8 * 1792
K2_LDS = TABLE + 15 * 256

V_XO = 1
V_GA, V_SA0, V_SA1, V_D1 = 2, 3, 4, 5
Q0 = 2
GA2 = [6, 7, 8, 9]
V_D0, V_D2, V_ST, V_P16, V_SW, V_TB = 10, 11, 12, 13, 14, 15
LAM, TH, A1, CF, A8, A32 = 16, 18, 20, 24, 28, 32
V_D0B = 36
XR = 40
NXR = 6
WR = 88
NWR = 6
def SRE(b): return 112 + 8 * b
def SIM(b): return 128 + 8 * b
def PG(j): return 144 + 16 * j
def PU(j): return PG(j) + 8
T1 = 192
def xr(n, tb): return XR + 8 * (n % NXR) + 4 * tb
def wr(i): return WR + 4 * (i % NWR)

S_XN, S_G, S_U, S_D0, S_D1, S_D2, S_ACT, S_EXR, S_EXW, S_XB, S_P0, S_P1, S_P2 = range(8, 60, 4)
S_W, S_RB, S_CG, S_TW = 3, 4, 5, 6
S_X, S_O01, S_O2, S_M0, S_M1, S_M2, S_ST, S_SS, S_ER, S_EW, S_XBO, S_O96, S_CNT, S_T = range(76, 90)

L2E = "0x3fb8aa3b"
def f32(x):
    import struct
    return "0x%08x" % struct.unpack("<I", struct.pack("<f", x))[0]

def quad_mac(d, A, s):
    o = []
    for b in (0, 1):
        o.append(f"v_fma_f32 v{d+2*b}, v{A+2*b}, v{s+2*b}, v{d+2*b}")
        o.append(f"v_fma_f32 v{d+2*b+1}, v{A+2*b}, v{s+2*b+1}, v{d+2*b+1}")
    for b in (0, 1):
        o.append(f"v_fma_f32 v{d+2*b}, -v{A+2*b+1}, v{s+2*b+1}, v{d+2*b}")
        o.append(f"v_fma_f32 v{d+2*b+1}, v{A+2*b+1}, v{s+2*b}, v{d+2*b+1}")
    return o

def power(d, n, t):
    o = []
    for b in (0, 1):
        o.append(f"v_mul_f32 v{t+3*b}, {n}, v{LAM+b}")
        o.append(f"v_mul_f32 v{t+3*b+1}, {n}, v{TH+b}")
    for b in (0, 1):
        o.append(f"v_exp_f32 v{t+3*b}, v{t+3*b}")
        o.append(f"v_fract_f32 v{t+3*b+1}, v{t+3*b+1}")
    for b in (0, 1):
        o.append(f"v_cos_f32 v{t+3*b+2}, v{t+3*b+1}")
        o.append(f"v_sin_f32 v{t+3*b+1}, v{t+3*b+1}")
    for b in (0, 1):
        o.append(f"v_mul_f32 v{d+2*b}, v{t+3*b}, v{t+3*b+2}")
        o.append(f"v_mul_f32 v{d+2*b+1}, v{t+3*b}, v{t+3*b+1}")
    return o

def pack_store(O, d0, d1, soff_expr, flags):
    o = [f"v_cvt_pk_bf16_f32 v{O}, v{d0}, v{d0+1}",
         f"v_cvt_pk_bf16_f32 v{O+1}, v{d0+2}, v{d0+3}",
         f"v_cvt_pk_bf16_f32 v{O+2}, v{d1}, v{d1+1}",
         f"v_cvt_pk_bf16_f32 v{O+3}, v{d1+2}, v{d1+3}",
         soff_expr,
         f"v_permlane16_swap_b32 v{O}, v{O+2}",
         f"v_permlane16_swap_b32 v{O+1}, v{O+3}",
         f"buffer_store_dwordx4 {vr(O,4)}, v{V_ST}, s[{S_ACT}:{S_ACT+3}], s{S_T} offen {flags}".rstrip()]
    return o

def glu(j, flags):
    G = [PG(j) + r for r in range(8)]; U = [PU(j) + r for r in range(8)]
    o = []
    o += [f"v_mul_f32 v{g}, 0xbfb8aa3b, v{g}" for g in G]
    o += [f"v_exp_f32 v{g}, v{g}" for g in G]
    o += [f"v_add_f32 v{g}, 1.0, v{g}" for g in G]
    o += [f"v_rcp_f32 v{g}, v{g}" for g in G]
    o += [f"v_mul_f32 v{g}, v{g}, v{u}" for g, u in zip(G, U)]
    o += pack_store(PU(j), PG(j), PG(j) + 4, f"s_add_u32 s{S_T}, s{S_ST}, {j*65536}", flags)
    return o

def gen_k2(a, store_flags="", prof=False, opts=None):
    opts = opts or {}
    flags = store_flags.replace("+", " ")
    RATE2 = float(opts.get("rate2", 1.5))
    RATE3 = float(opts.get("rate3", 3))
    NOEPI = int(opts.get("noepi", 0))
    POLLFIRST = int(opts.get("pollfirst", 1))
    NT1 = int(opts.get("nt1", 2))
    kernel_begin(a, K2)
    P = Prof(a, prof, 1, list(range(90, 100)), 100)
    a("""
    s_cmp_ge_u32 s2, 256
    s_cbranch_scc1 K2_END
    """)
    P.stamp(0, real=True)
    P.stamp(1)
    a(f"""
    s_load_dwordx4 s[72:75], s[0:1], 80     ; w_gate, w_up
    s_load_dwordx2 s[70:71], s[0:1], 120    ; ws
    s_load_dwordx4 s[64:67], s[0:1], 24
    s_load_dwordx4 s[60:63], s[0:1], 8
    s_load_dwordx2 s[68:69], s[0:1], 56     ; log_dt
    s_load_dwordx2 s[82:83], s[0:1], 96     ; w_down
    s_load_dwordx4 s[84:87], s[0:1], 40
    v_lshrrev_b32 v240, 6, v0
    v_and_b32 v0, 63, v0                    ; lane
    v_readfirstlane_b32 s{S_W}, v240         ; wave
    s_and_b32 s7, s2, 7                     ; xcd
    s_lshr_b32 s{S_CG}, s2, 3
    s_and_b32 s{S_RB}, s{S_CG}, 7
    s_lshr_b32 s{S_CG}, s{S_CG}, 3
    s_lshl_b32 s7, s7, 2
    s_add_u32 s{S_CG}, s{S_CG}, s7
    s_lshl_b32 s{S_TW}, s{S_RB}, 12         ; 256*rb*16
    s_lshl_b32 s7, s{S_W}, 9                ; 32*w*16
    s_add_u32 s{S_TW}, s{S_TW}, s7          ; tw*16
    s_mov_b32 s{S_X}, s{S_TW}
    s_mul_i32 s{S_O01}, s{S_CG}, 224
    s_lshl_b32 s{S_O2}, s{S_CG}, 16
    s_lshl_b32 s{S_M0}, s{S_W}, 10
    s_add_u32 s{S_M1}, s{S_M0}, 8192
    s_add_u32 s{S_M2}, s{S_M0}, 12288
    s_cmp_lt_u32 s{S_W}, 4
    s_cselect_b32 s{S_M1}, s{S_M1}, 20480
    ; ---- DMA lane offsets.  GLU type: q = 64 i' + lane, rho = q / 6, ch = q % 6, k = swap23(rho)
    s_sub_u32 s7, s{S_W}, 6
    s_cmp_lt_u32 s{S_W}, 6
    s_cselect_b32 s7, s{S_W}, s7
    s_lshl_b32 s7, s7, 6                    ; 64 i' (u=0)
    s_lshl_b32 s{S_T}, s{S_W}, 6
    s_add_u32 s{S_T}, s{S_T}, 128           ; 64 i' (u=1)
    v_add_u32 v241, s7, v0
    v_add_u32 v242, s{S_T}, v0
    """)
    for (q, d) in ((241, V_D0), (242, V_D1)):
        a(f"""
        v_mul_u32_u24 v243, 10923, v{q}
        v_lshrrev_b32 v243, 16, v243              ; rho
        v_mul_u32_u24 v244, 6, v243
        v_sub_u32 v244, v{q}, v244                ; ch
        v_and_b32 v245, 0x33, v243
        v_and_b32 v246, 4, v243
        v_lshl_or_b32 v245, v246, 1, v245
        v_and_b32 v246, 8, v243
        v_lshrrev_b32 v246, 1, v246
        v_or_b32 v245, v245, v246                  ; k
        v_mul_u32_u24 v245, 7168, v245
        v_lshl_add_u32 v{d}, v244, 4, v245
        """)
    a(f"""
    s_and_b32 s7, s{S_W}, 3
    s_lshl_b32 s7, s7, 3
    v_lshrrev_b32 v243, 3, v0
    v_add_u32 v243, s7, v243                  ; row
    v_lshrrev_b32 v244, 1, v243
    v_xor_b32 v244, v244, v0
    v_and_b32 v244, 7, v244
    v_lshlrev_b32 v244, 4, v244
    v_lshl_add_u32 v{V_D2}, v243, 11, v244
    ; X: (l>>4)*32768 + (l&15)*16
    v_lshrrev_b32 v243, 4, v0                ; g
    v_and_b32 v244, 15, v0                   ; n
    v_lshlrev_b32 v245, 4, v244
    v_lshl_add_u32 v{V_XO}, v243, 15, v245
    s_waitcnt lgkmcnt(0)
    """)
    srd(a, S_XN, 70, 71, XN_SZ, XN_OFF)
    a(f"""
    s_cmp_lt_u32 s{S_W}, 6
    s_cselect_b32 s{S_D0}, s72, s74
    s_cselect_b32 s{S_D0+1}, s73, s75
    s_mov_b32 s{S_D0+2}, 0x700000
    s_mov_b32 s{S_D0+3}, 0x00020000
    s_cmp_lt_u32 s{S_W}, 4
    s_mov_b32 s{S_D1}, s74
    s_mov_b32 s{S_D1+1}, s75
    s_cselect_b32 s{S_D1+2}, 0x700000, 0
    s_mov_b32 s{S_D1+3}, 0x00020000
    s_cselect_b32 s{S_D2}, s64, s66
    s_cselect_b32 s{S_D2+1}, s65, s67
    s_mov_b32 s{S_D2+2}, 0x200000
    s_mov_b32 s{S_D2+3}, 0x00020000
    """)
    a(f"s_mov_b32 s{S_CNT}, 0")
    st = Stream(a)
    def dma(s):
        slot = (s % NSLOT) * SLOT
        g = []
        if s < 16:
            g.append([f"s_add_u32 m0, s{S_M0}, {slot}", "s_nop 0", (f"buffer_load_dwordx4 v{V_D0}, s[{S_D0}:{S_D0+3}], s{S_O01} offen lds", ("D", s, 0))])
            g.append([f"s_add_u32 m0, s{S_M1}, {slot}", "s_nop 0", (f"buffer_load_dwordx4 v{V_D1}, s[{S_D1}:{S_D1+3}], s{S_O01} offen lds", ("D", s, 1)),
                      f"s_add_u32 s{S_O01}, s{S_O01}, 458752"])
            g.append([f"s_add_u32 m0, s{S_M2}, {slot}", "s_nop 0", (f"buffer_load_dwordx4 v{V_D2}, s[{S_D2}:{S_D2+3}], s{S_O2} offen lds", ("D", s, 2)),
                      f"s_add_u32 s{S_O2}, s{S_O2}, 128"])
        else:
            pre = [f"s_mov_b32 s{S_O01}, s{S_O96}"] if s == 16 else []
            g.append(pre + [f"s_add_u32 m0, s{S_M0}, {slot}", "s_nop 0", (f"buffer_load_dwordx4 v{V_D0B}, s[{S_G}:{S_G+3}], s{S_O01} offen lds", ("D", s, 0))])
            g.append([f"s_add_u32 m0, s{S_M0}, {slot+8192}", "s_nop 0", (f"buffer_load_dwordx4 v{V_D0B}, s[{S_U}:{S_U+3}], s{S_O01} offen lds", ("D", s, 1)),
                      f"s_add_u32 s{S_O01}, s{S_O01}, 458752"])
        if int(opts.get("dfix", 0)):
            g = [[x for x in grp if not (isinstance(x, str) and (x.startswith(f"s_add_u32 s{S_O01},") or x.startswith(f"s_add_u32 s{S_O2},")))] for grp in g]
        return g
    def dtags(s): return [("D", s, u) for u in range(3 if s < 16 else 2)]
    def xload(n):
        g = [(f"buffer_load_dwordx4 {vr(xr(n,0),4)}, v{V_XO}, s[{S_XN}:{S_XN+3}], s{S_X} offen", ("X", n, 0)),
             (f"buffer_load_dwordx4 {vr(xr(n,1),4)}, v{V_XO}, s[{S_XN}:{S_XN+3}], s{S_X} offen offset:256", ("X", n, 1))]
        if n == 31: g.append(f"s_mov_b32 s{S_X}, s{S_TW}")
        elif not int(opts.get("xfix", 0)): g.append(f"s_add_u32 s{S_X}, s{S_X}, 131072")
        return [g]
    def emit_group(g):
        for x in g:
            if isinstance(x, tuple): st.ins(x[0], x[1])
            elif x.endswith(":"): a.label(x[:-1])
            else: st.ins(x)
    order = dma(0) + xload(0) + xload(1) + dma(1) + xload(2) + xload(3) + dma(2) + xload(4) + xload(5) + dma(3)
    DLA = int(opts.get("dla", 4))
    NPRO = int(opts.get("npro", 100))
    if NPRO == 100:
        order += dma(4) + dma(5)
    pro_rest = order[NPRO:]
    for grp in order[:NPRO]: emit_group(grp)
    P.stamp(2)
    srd(a, S_G, 72, 73, 0x700000)
    srd(a, S_U, 74, 75, 0x700000)
    srd(a, S_ACT, 70, 71, ACT_SZ, ACT_OFF)
    srd(a, S_EXR, 70, 71, EX_SZ, EX_OFF)
    srd(a, S_EXW, 70, 71, EX_SZ, EX_OFF)
    a(f"""
    s_cmp_eq_u32 s{S_W}, 7
    s_cselect_b32 s{S_EXW+2}, 0x{EX_SZ:x}, 0
    """)
    srd(a, S_XB, 70, 71, XB_SZ, XB_OFF)
    srd(a, S_P0, 60, 61, 2048)
    srd(a, S_P1, 62, 63, 2048)
    srd(a, S_P2, 68, 69, 2048)
    PF3 = int(opts.get("pf3", -1)); NPF3 = int(opts.get("npf3", 1)); PF3D = int(opts.get("pf3d", 50))
    PF2A = int(opts.get("pf2a", -1)); PF2B = int(opts.get("pf2b", -1)); PFR = int(opts.get("pf1rows", 256))
    a(f"""
    s_lshl_b32 s7, s2, 2
    s_add_u32 s7, s7, s{S_W}
    s_mov_b32 s62, 0x700000
    s_cmp_lt_u32 s{S_W}, 4
    s_cselect_b32 s60, s82, s84
    s_cselect_b32 s61, s83, s85
    s_cselect_b32 s62, s62, 0x200000
    s_cselect_b32 s68, s7, s2
    s_lshl_b32 s68, s68, 13
    s_cmp_eq_u32 s{S_W}, 5
    s_cselect_b32 s60, s86, s60
    s_cselect_b32 s61, s87, s61
    s_cmp_lt_u32 s{S_W}, 6
    s_cselect_b32 s62, s62, 0
    s_mov_b32 s63, 0x00020000
    s_mul_i32 s{S_O96}, s{S_CG}, 224
    s_add_u32 s{S_O96}, s{S_O96}, 96
    v_and_b32 v254, {64 // NPF3 - 1}, v0
    v_lshlrev_b32 v254, 7, v254
    ; warm-up of this launch's later weight rows: 4 rows x 14 lines of w_gate (even waves) / w_up (odd waves)
    s_and_b32 s7, s{S_W}, 1
    s_cmp_eq_u32 s7, 0
    s_cselect_b32 s64, s72, s74
    s_cselect_b32 s65, s73, s75
    s_mov_b32 s66, 0x700000
    s_mov_b32 s67, 0x00020000
    s_lshr_b32 s7, s2, 3
    s_lshl_b32 s7, s7, 2
    s_lshr_b32 s69, s{S_W}, 1
    s_add_u32 s69, s69, s7
    s_lshl_b32 s69, s69, 2
    s_add_u32 s69, s69, {PFR}
    s_mul_i32 s69, s69, 7168
    s_and_b32 s7, s2, 7
    s_mul_i32 s7, s7, 1792
    s_add_u32 s69, s69, s7
    v_and_b32 v253, 15, v0
    v_min_u32 v253, 13, v253
    v_lshlrev_b32 v253, 7, v253
    v_lshrrev_b32 v252, 4, v0
    v_mul_u32_u24 v252, 7168, v252
    v_add_u32 v253, v253, v252
    """)
    a(f"""
    v_lshrrev_b32 v246, 2, v0
    v_and_b32 v246, 3, v246                   ; r
    v_and_b32 v247, 3, v0                    ; c
    v_and_b32 v248, 1, v243
    v_lshl_add_u32 v248, v248, 2, v246
    v_lshrrev_b32 v249, 1, v243
    v_lshl_add_u32 v248, v249, 4, v248
    v_mul_u32_u24 v248, 96, v248
    v_lshl_add_u32 v{V_GA}, v247, 3, v248
    ; S address: 12288 + n*128 + ((g ^ (n>>1))*16)
    v_lshrrev_b32 v248, 1, v244
    v_xor_b32 v248, v248, v243
    v_lshlrev_b32 v248, 4, v248
    v_lshl_add_u32 v248, v244, 7, v248
    v_add_u32 v{V_SA0}, 12288, v248
    v_xor_b32 v{V_SA1}, 64, v{V_SA0}
    v_lshlrev_b32 v250, 1, v244
    s_lshl_b32 s7, s{S_CG}, 6
    """)
    PL = T1
    for i, sp in enumerate((S_P0, S_P1, S_P2)):
        for b in (0, 1):
            st.ins(f"buffer_load_ushort v{PL+2*i+b}, v250, s[{sp}:{sp+3}], s7 offen offset:{32*b}", ("PL", i, b))
    F1 = []
    def I(q, lst):
        for x in lst: q.append(("i", x))
    t = T1 + 8
    I(F1, [
        f"v_lshrrev_b32 v{t}, 4, v0",
        f"v_lshrrev_b32 v{t+1}, 2, v0",
        f"v_and_b32 v{t+1}, 3, v{t+1}",
        f"v_and_b32 v{t+2}, 3, v0",
        f"v_lshl_add_u32 v{t+3}, v{t}, 3, v{t+1}",
        f"v_lshlrev_b32 v{t+3}, 7, v{t+3}",
        f"v_lshl_add_u32 v{t+3}, v{t+2}, 3, v{t+3}",
        f"v_lshrrev_b32 v{t+4}, 1, v{t+1}",
        f"v_and_b32 v{t+5}, 1, v{t}",
        f"v_lshl_or_b32 v{t+4}, v{t+5}, 1, v{t+4}",
    ])
    for w in range(4):
        I(F1, [f"v_xor_b32 v{t+5}, {w}, v{t+4}", f"v_lshl_add_u32 v{GA2[w]}, v{t+5}, 5, v{t+3}"])
    I(F1, [
        f"s_lshl_b32 s7, s{S_W}, 3",
        f"v_lshrrev_b32 v{t+6}, 3, v0",
        f"v_add_u32 v{t+6}, s7, v{t+6}",
        f"v_mul_u32_u24 v{t+6}, 7168, v{t+6}",
        f"s_and_b32 s7, s{S_W}, 1",
        f"s_lshl_b32 s7, s7, 1",
        f"v_and_b32 v{t+7}, 1, v{t}",
        f"v_or_b32 v{t+7}, s7, v{t+7}",
        f"v_lshrrev_b32 v{t+8}, 1, v0",
        f"v_and_b32 v{t+8}, 3, v{t+8}",
        f"v_xor_b32 v{t+7}, v{t+7}, v{t+8}",
        f"v_lshl_add_u32 v{t+6}, v{t+7}, 5, v{t+6}",
        f"v_and_b32 v{t+8}, 1, v0",
        f"v_lshl_add_u32 v{V_D0B}, v{t+8}, 4, v{t+6}",
        f"v_and_b32 v{t+2}, 15, v0",
        f"v_lshrrev_b32 v{t+6}, 2, v{t+2}",
        f"v_lshlrev_b32 v{t+6}, 3, v{t+6}",
        f"v_lshl_add_u32 v{t+6}, v{t+5-5+0}, 0, v{t+6}" if False else f"v_and_b32 v{t+7}, 1, v{t}",
        f"v_lshl_add_u32 v{t+6}, v{t+7}, 2, v{t+6}",
        f"v_and_b32 v{t+7}, 3, v{t+2}",
        f"v_add_u32 v{t+6}, v{t+6}, v{t+7}",
        f"v_lshlrev_b32 v{t+6}, 4, v{t+6}",
        f"v_lshrrev_b32 v{t+7}, 1, v{t}",
        f"v_lshl_add_u32 v{V_ST}, v{t+7}, 15, v{t+6}",
        f"v_lshlrev_b32 v{V_P16}, 4, v{t+2}",
        f"s_mul_i32 s7, s{S_W}, 1792",
        f"s_add_u32 s7, s7, {SCR_W}",
        f"v_lshl_add_u32 v{V_SW}, v{t}, 8, v{V_P16}",
        f"v_add_u32 v{V_SW}, s7, v{V_SW}",
        f"s_lshl_b32 s7, s{S_W}, 8",
        f"s_add_u32 s7, s7, {TABLE}",
        f"v_add_u32 v{V_TB}, s7, v{V_P16}",
        f"s_mul_i32 s{S_ST}, s{S_CG}, {14*32768}",
        f"s_add_u32 s{S_ST}, s{S_ST}, s{S_TW}",
        f"s_lshl_b32 s{S_SS}, s{S_CG}, 17",
        f"s_add_u32 s{S_SS}, s{S_SS}, s{S_TW}",
        f"s_add_u32 s{S_SS}, s{S_SS}, {448*32768}",
        f"s_lshl_b32 s{S_ER}, s{S_CG}, 12",
        f"s_lshl_b32 s7, s{S_RB}, 8",
        f"s_add_u32 s{S_ER}, s{S_ER}, s7",
        f"s_add_u32 s{S_EW}, s{S_ER}, {7*256}",
        f"s_lshl_b32 s{S_XBO}, s2, 15",
        f"s_lshl_b32 s7, s{S_W}, 12",
        f"s_add_u32 s{S_XBO}, s{S_XBO}, s7",
        f"v_mov_b32 v{t+12}, 0", f"v_mov_b32 v{t+13}, 0", f"v_mov_b32 v{t+14}, 0", f"v_mov_b32 v{t+15}, 0",
        f"ds_write_b128 v{V_SW}, {vr(t+12,4)}",
        f"ds_write_b128 v{V_TB}, {vr(t+12,4)}",
        f"v_mov_b32 v{t+16}, -1", f"v_mov_b32 v{t+17}, -1", f"v_mov_b32 v{t+18}, -1", f"v_mov_b32 v{t+19}, -1",
        f"v_lshlrev_b32 v{t+20}, 4, v0",
    ])
    for k in range(4 if not int(opts.get("noxb", 0)) else 0):
        I(F1, [f"buffer_store_dwordx4 {vr(t+16,4)}, v{t+20}, s[{S_XB}:{S_XB+3}], s{S_XBO} offen offset:{k*1024}"])
    F1.append(("need", [("PL", i, b) for i in range(3) for b in (0, 1)]))
    u = T1 + 32
    for b in (0, 1):
        lre, lim, dt = PL + b, PL + 2 + b, PL + 4 + b
        q = u + 8 * b
        I(F1, [
            f"v_lshlrev_b32 v{lre}, 16, v{lre}",
            f"v_lshlrev_b32 v{lim}, 16, v{lim}",
            f"v_lshlrev_b32 v{dt}, 16, v{dt}",
            f"v_mul_f32 v{dt}, {L2E}, v{dt}",
            f"v_exp_f32 v{dt}, v{dt}",
            f"v_cvt_pk_bf16_f32 v{dt}, v{dt}, v{dt}",
            f"v_and_b32 v{dt}, 0xffff0000, v{dt}",
            f"v_mul_f32 v{q}, v{dt}, v{lre}",
            f"v_mul_f32 v{q+1}, v{dt}, v{lim}",
            f"v_mul_f32 v{LAM+b}, {L2E}, v{q}",
            f"v_mul_f32 v{TH+b}, 0x3e22f983, v{q+1}",
        ])
    I(F1, power(A1, "1.0", u + 16))
    for b in (0, 1):
        lre, lim = PL + b, PL + 2 + b
        ar, ai = A1 + 2 * b, A1 + 2 * b + 1
        q = u + 8 * b
        I(F1, [
            f"v_add_f32 v{q}, -1.0, v{ar}",
            f"v_mul_f32 v{q+1}, v{lre}, v{lre}",
            f"v_fmac_f32 v{q+1}, v{lim}, v{lim}",
            f"v_rcp_f32 v{q+1}, v{q+1}",
            f"v_mul_f32 v{q+2}, v{q}, v{lre}",
            f"v_fmac_f32 v{q+2}, v{ai}, v{lim}",
            f"v_mul_f32 v{q+3}, v{ai}, v{lre}",
            f"v_fma_f32 v{q+3}, -v{q}, v{lim}, v{q+3}",
            f"v_add_f32 v{q+1}, v{q+1}, v{q+1}",
            f"v_mul_f32 v{CF+2*b}, v{q+2}, v{q+1}",
            f"v_mul_f32 v{CF+2*b+1}, v{q+3}, v{q+1}",
        ])
    I(F1, power(A8, "0x41000000", u + 16))
    I(F1, power(A32, "0x42000000", u + 16))

    F2 = []
    R0, R1, R2 = PG(0), PG(1), PG(2)
    I(F2, glu(0, flags))
    F2.append(("atS",))
    cur = [(SRE(b), SIM(b)) for b in (0, 1)]
    for j in range(1, 8):
        d = R0 if (j & 1) else R0 + 4
        for b in (0, 1):
            F2.append(("i", f"v_fma_f32 v{d+2*b}, v{A1+2*b}, v{cur[b][0]}, v{SRE(b)+j}"))
            F2.append(("i", f"v_fma_f32 v{d+2*b+1}, v{A1+2*b}, v{cur[b][1]}, v{SIM(b)+j}"))
        for b in (0, 1):
            F2.append(("i", f"v_fma_f32 v{d+2*b}, -v{A1+2*b+1}, v{cur[b][1]}, v{d+2*b}"))
            F2.append(("i", f"v_fma_f32 v{d+2*b+1}, v{A1+2*b+1}, v{cur[b][0]}, v{d+2*b+1}"))
        cur = [(d + 2 * b, d + 2 * b + 1) for b in (0, 1)]
    I(F2, [f"ds_write_b128 v{V_SW}, {vr(R0,4)} offset:768"])
    for k in range(3):
        F2.append(("t", f"ds_read_b128 {vr(R0+4+4*k,4)}, v{V_SW} offset:{256*k}", ("SW", k)))
    F2.append(("gapn", 3))
    F2.append(("need", [("SW", 2)]))
    I(F2, quad_mac(R0 + 8, A8, R0 + 4))
    I(F2, quad_mac(R0 + 12, A8, R0 + 8))
    I(F2, quad_mac(R0, A8, R0 + 12))
    F2.append(("g", ["s_mov_b32 exec_lo, 0", "s_mov_b32 exec_hi, 0xffff0000",
                     (f"ds_write_b128 v{V_TB}, {vr(R0,4)} offset:{7*256}", "TW"), "s_mov_b64 exec, -1"]))
    F2.append(("mark", "TW"))
    F2.append(("at1",))
    I(F2, glu(1, flags))
    F2.append(("afterbar", "TW"))
    rows = [R1, R1 + 4, R1 + 8, R1 + 12, R0 + 4, R0 + 8, Q0]
    for k in range(7):
        F2.append(("t", f"ds_read_b128 {vr(rows[k],4)}, v{V_TB} offset:{256*k}", ("TR", k)))
    F2.append(("gapn", 2))
    for k in range(1, 7):
        F2.append(("need", [("TR", k - 1), ("TR", k)]))
        I(F2, quad_mac(rows[k], A32, rows[k-1]))
    I(F2, quad_mac(R0, A32, Q0))
    I(F2, [f"s_mov_b32 s7, 0xfffffffe"])
    I(F2, [f"v_min_u32 v{R0+r}, s7, v{R0+r}" for r in range(4)])
    F2.append(("g", ["s_mov_b32 exec_lo, 0", "s_mov_b32 exec_hi, 0xffff0000",
                     f"buffer_store_dwordx4 {vr(R0,4)}, v{V_P16}, s[{S_EXW}:{S_EXW+3}], s{S_EW} offen sc1", "s_mov_b64 exec, -1"]))
    F2.append(("stamp", 4))
    I(F2, [f"v_lshrrev_b32 v{R1+12}, 4, v0", f"v_lshlrev_b32 v{R1+12}, 3, v{R1+12}", f"v_cvt_f32_u32 v{R1+13}, v{R1+12}"])
    I(F2, power(R1, f"v{R1+13}", R1 + 4))
    I(F2, quad_mac(R0 + 12, R1, Q0))
    I(F2, [f"s_lshl_b32 s7, s{S_W}, 5", f"v_add_u32 v{V_D0}, s7, v{R1+12}", f"v_cvt_f32_u32 v{V_D0}, v{V_D0}"])
    F2.append(("at", int(opts.get("pollat", 0))))
    prow = [R1, R1 + 4, R1 + 8, R1 + 12, R0, R0 + 4, R0 + 8]
    def poll_loads(tagged):
        o = []
        for k in range(7):
            s = f"buffer_load_dwordx4 {vr(prow[k],4)}, v{V_P16}, s[{S_EXR}:{S_EXR+3}], s{S_ER} offen offset:{256*k} sc1"
            o.append((s, ("PR", k)) if tagged else s)
        return o
    if POLLFIRST:
        for x in poll_loads(True): F2.append(("t", x[0], x[1]))
    I(F2, glu(2, flags))
    I(F2, power(R2, "0x43800000", R2 + 8))
    I(F2, power(R2 + 4, f"v{V_D0}", R2 + 8))
    if not POLLFIRST:
        for x in poll_loads(True): F2.append(("t", x[0], x[1]))
    F2.append(("gapn", int(opts.get("pollgap", 0))))
    F2.append(("need", [("PR", 6)]))
    def maxchain():
        m = V_D2
        regs = [r + i for r in prow for i in range(4)]
        o = [f"v_max3_u32 v{m}, v{regs[0]}, v{regs[1]}, v{regs[2]}"]
        for k in range(3, 27, 2):
            o.append(f"v_max3_u32 v{m}, v{m}, v{regs[k]}, v{regs[k+1]}")
        o.append(f"v_max_u32 v{m}, v{m}, v{regs[27]}")
        o.append(f"v_cmp_eq_u32 vcc, -1, v{m}")
        return o
    I(F2, maxchain())
    F2.append(("g", ["s_nop 3", "s_cmp_eq_u64 vcc, 0", "s_cbranch_scc0 K2_SLOW", "K2_BACK:"]))
    for k in range(1, 7):
        I(F2, quad_mac(prow[k], R2, prow[k-1]))
    I(F2, quad_mac(R0 + 12, R2 + 4, R0 + 8))
    H = [R0 + 12, R2 + 8]
    TT = R2 + 12
    for j in range(8):
        s_, d = H[j & 1], H[(j + 1) & 1]
        for b in (0, 1):
            F2.append(("i", f"v_fma_f32 v{d+2*b}, v{A1+2*b}, v{s_+2*b}, v{SRE(b)+j}"))
            F2.append(("i", f"v_fma_f32 v{d+2*b+1}, v{A1+2*b}, v{s_+2*b+1}, v{SIM(b)+j}"))
        for b in (0, 1):
            F2.append(("i", f"v_fma_f32 v{d+2*b}, -v{A1+2*b+1}, v{s_+2*b+1}, v{d+2*b}"))
            F2.append(("i", f"v_fma_f32 v{d+2*b+1}, v{A1+2*b+1}, v{s_+2*b}, v{d+2*b+1}"))
        for b in (0, 1):
            F2.append(("i", f"v_mul_f32 v{TT+2*b}, v{CF+2*b+1}, v{d+2*b+1}"))
            F2.append(("i", f"v_mul_f32 v{TT+2*b+1}, v{CF+2*b+1}, v{d+2*b}"))
        for b in (0, 1):
            F2.append(("i", f"v_fma_f32 v{SRE(b)+j}, v{CF+2*b}, v{d+2*b}, -v{TT+2*b}"))
            F2.append(("i", f"v_fma_f32 v{SIM(b)+j}, -v{CF+2*b}, v{d+2*b+1}, -v{TT+2*b+1}"))
    SEL = R1
    I(F2, [
        f"v_and_b32 v{R1+8}, 15, v0",
        f"v_lshrrev_b32 v{R1+9}, 2, v{R1+8}",
        f"v_lshrrev_b32 v{R1+10}, 4, v0",
        f"v_and_b32 v{R1+11}, 1, v0",
        f"v_lshlrev_b32 v{R1+11}, 4, v{R1+11}",
        f"v_mov_b32 v{R1+12}, 0x3f80",
        f"v_lshlrev_b32 v{R1+12}, v{R1+11}, v{R1+12}",
        f"v_cmp_eq_u32 vcc, v{R1+9}, v{R1+10}",
        f"v_mov_b32 v{SEL}, 0", f"v_mov_b32 v{SEL+1}, 0",
        f"v_cndmask_b32 v{R1+12}, 0, v{R1+12}, vcc",
        f"v_and_b32 v{R1+13}, 2, v0",
        f"v_cmp_eq_u32 vcc, 0, v{R1+13}",
        f"v_mov_b32 v{SEL+4}, 0", f"v_mov_b32 v{SEL+5}, 0",
        f"v_cndmask_b32 v{SEL+2}, 0, v{R1+12}, vcc",
        f"v_cndmask_b32 v{SEL+3}, v{R1+12}, 0, vcc",
    ])
    outs = [(SRE(0), 0), (SRE(1), 65536), (SIM(0), 4194304), (SIM(1), 4194304 + 65536)]
    for k, (X, off) in enumerate(outs):
        for q in range(4):
            F2.append(("i", f"v_cvt_pk_bf16_f32 v{X+q}, v{X+2*q}, v{X+2*q+1}"))
    for k, (X, off) in enumerate(outs):
        d1 = R1 + 8 + 4 * (k & 1)
        F2.append(("i", f"v_mfma_f32_16x16x32_bf16 {vr(X+4,4)}, {vr(X,4)}, {vr(SEL+2,4)}, 0"))
        F2.append(("i", f"v_mfma_f32_16x16x32_bf16 {vr(d1,4)}, {vr(X,4)}, {vr(SEL,4)}, 0"))
        if k >= 1:
            Xp, offp = outs[k-1]
            I(F2, pack_store(Xp, Xp + 4, R1 + 8 + 4 * ((k - 1) & 1), f"s_add_u32 s{S_T}, s{S_SS}, {offp}", flags))
        else:
            F2.append(("gapn", 3))
    F2.append(("gapn", 3))
    Xp, offp = outs[3]
    I(F2, pack_store(Xp, Xp + 4, R1 + 12, f"s_add_u32 s{S_T}, s{S_SS}, {offp}", flags))
    if NOEPI:
        F2 = [("label", "K2_BACK")]

    pairs = []
    def mm(d, A, B, first):
        return f"v_mfma_f32_16x16x32_bf16 {vr(d,4)}, {vr(A,4)}, {vr(B,4)}, {'0' if first else vr(d,4)}"
    def add_pair(n, kind, idx):
        s = n // 2; h = n & 1
        slot = (s % NSLOT) * SLOT
        first = (n % 32 == 0)
        if kind == "S":
            im, b = idx
            rd = [("ds_read_b128", (V_SA0, V_SA1)[h], slot, im * 4096 + b * 2048, 0, 4)]
            D = SIM(b) if im else SRE(b)
        elif kind == "W1":
            j, up = idx
            o = up * 6144 + h * 3072 + j * 32
            rd = [("ds_read_b64_tr_b16", V_GA, slot, o, 0, 2), ("ds_read_b64_tr_b16", V_GA, slot, o + 768, 2, 2)]
            D = PU(j) if up else PG(j)
        else:
            j, up = idx
            o = up * 8192 + h * 4096
            rd = [("ds_read_b64_tr_b16", GA2[j-3], slot, o, 0, 2), ("ds_read_b64_tr_b16", GA2[j-3], slot, o + 512, 2, 2)]
            D = PU(j) if up else PG(j)
        pairs.append(dict(n=n, stage=s, kind=kind, rd=rd, D=D, first=first, idx=idx))
    def add_S(n):
        for im in (0, 1):
            for b in (0, 1): add_pair(n, "S", (im, b))
    for n in range(32 - NT1):
        add_S(n)
        for j in range(3):
            for up in (0, 1): add_pair(n, "W1", (j, up))
    for n in range(32 - NT1, 32):
        for up in (0, 1): add_pair(n, "W1", (0, up))
    F2START = len(pairs) + (1 if NT1 else 0)
    for n in range(32 - NT1, 32): add_S(n)
    SDONE = len(pairs) + 1
    for j in (1, 2):
        for n in range(32 - NT1, 32):
            for up in (0, 1): add_pair(n, "W1", (j, up))
    if NT1 == 0: F2START = SDONE = len(pairs) + 1
    P1END = len(pairs)
    NTAIL = int(opts.get("ntail", 4))
    for n in range(32, 64 - NTAIL):
        for j in range(3, 7):
            for up in (0, 1): add_pair(n, "W2", (j, up))
    tail0 = len(pairs)
    for j in range(3, 7):
        for n in range(64 - NTAIL, 64):
            for up in (0, 1): add_pair(n, "W2", (j, up))
    NP = len(pairs)
    F3 = []
    for j in range(3, 6):
        F3.append(("at", tail0 + (j - 2) * 2 * NTAIL + 1))
        I(F3, glu(j, flags))

    base = {}
    state = dict(bar=-1, marks={}, nbar=0)
    hq = []
    pend = []
    def barrier_for(stage):
        while state["bar"] < stage:
            s = state["bar"] + 1
            st.need(*(dtags(s) + pend))
            pend.clear()
            st.ins("s_barrier")
            state["bar"] = s; state["nbar"] += 1
            if (s >= 2 or NPRO != 100) and s + 4 < 32:
                hq.extend(dma(s + 4))
    def read_ins(k):
        p = pairs[k]
        barrier_for(p["stage"])
        o = []
        for (op, areg, slot, off, ro, cnt) in p["rd"]:
            cur = base.get(areg, 0)
            rel = slot + off - cur
            if rel < 0 or rel > 65535 - 1024:
                delta = slot - cur
                o.append((f"v_add_u32 v{areg}, {delta & 0xffffffff}, v{areg}" if delta >= 0 else f"v_subrev_u32 v{areg}, {-delta}, v{areg}", None))
                base[areg] = slot
                rel = off
            if SKIP and k % SKIP == SKIP - 1: continue
            o.append((f"{op} {vr(wr(k)+ro,cnt)}, v{areg} offset:{rel}", ("W", k, ro)))
        return o
    SKIP = int(opts.get("skiprd", 0))
    def wtags(k): return [("W", k, r[4]) for r in pairs[k]["rd"]] if not (SKIP and k % SKIP == SKIP - 1) else []
    PROGAP = int(opts.get("progap", 2))
    fq = dict(q=F1, pos=0, credit=0.0, hold=0)
    def run_fillers(i, budget):
        used = 0
        if pro_rest and budget < 10**8:
            state["pg"] = state.get("pg", 0) + 1
            if state["pg"] >= PROGAP:
                state["pg"] = 0
                emit_group(pro_rest.pop(0)); used += 1
        while hq and not pro_rest and used < max(budget, 1) + 1:
            g = hq.pop(0); emit_group(g); used += 1
        q = fq["q"]
        while fq["pos"] < len(q) and used < budget:
            it = q[fq["pos"]]
            k = it[0]
            if k == "i": st.ins(it[1]); used += 1
            elif k == "t": st.ins(it[1], it[2]); used += 1
            elif k == "g": emit_group(it[1]); used += 2
            elif k == "need": st.need(*it[1])
            elif k == "mark": pend.append(it[1]); state["marks"][it[1]] = state["nbar"]
            elif k == "afterbar":
                if state["nbar"] <= state["marks"][it[1]]: return
            elif k == "at":
                if i < it[1]: return
            elif k == "atS":
                if i < SDONE: return
            elif k == "at1":
                if i < P1END + 1: return
            elif k == "gapn":
                if fq["hold"] < it[1]:
                    fq["hold"] += 1; return
                fq["hold"] = 0
            elif k == "label": a.label(it[1])
            elif k == "stamp": P.stamp(it[1])
            fq["pos"] += 1
    def flush_fillers():
        while hq or fq["pos"] < len(fq["q"]):
            before = (len(hq), fq["pos"], fq["hold"])
            run_fillers(10**9, 1000)
            if (len(hq), fq["pos"], fq["hold"]) == before:
                raise RuntimeError("filler stuck %r" % (fq["q"][fq["pos"]],))
            if fq["hold"]: st.ins("s_nop 3")
    for k in range(NWR - 1):
        for ins, tag in read_ins(k): st.ins(ins, tag)
    P.stamp(3)
    acc_credit = 0.0
    last_use = {}
    for i, p in enumerate(pairs): last_use[p["n"]] = i
    xat = {}
    for m in range(NXR, 64): xat.setdefault(last_use[m - NXR] + 1, []).append(m)
    for i in range(NP):
        p = pairs[i]
        if i == F2START:
            flush_fillers()
            fq.update(q=F2, pos=0, hold=0)
        if i == P1END:
            P.stamp(5)
        for q in range(NPF3):
            if PF3 >= 0 and i == PF3 + q * PF3D:
                hq.append([(f"buffer_load_dword v255, v254, s[60:63], s68 offen offset:{q * (64 // NPF3) * 128 if q * (64 // NPF3) * 128 < 4096 else 0}", ("PF", 3))] if q * (64 // NPF3) * 128 < 4096 else
                          [f"s_add_u32 s{S_T}, s68, {q * (64 // NPF3) * 128}", (f"buffer_load_dword v255, v254, s[60:63], s{S_T} offen", ("PF", 3))])
        if i == PF2A:
            hq.append([("buffer_load_dword v255, v253, s[64:67], s69 offen", ("PF", 1))])
        if i == PF2B:
            hq.append([f"s_add_u32 s69, s69, {512*7168}", ("buffer_load_dword v255, v253, s[64:67], s69 offen", ("PF", 2))])
        if i == P1END - 1:
            st.need(*[t for t in (("PF", 1), ("PF", 2), ("PF", 3)) if t in st.tags])
        if i == tail0:
            if fq["pos"] < len(fq["q"]): print("K2: %d scan fillers left at tail" % (len(fq["q"]) - fq["pos"]))
            flush_fillers()
            fq.update(q=F3, pos=0, hold=0)
        rate = 1.0 if i < F2START else (RATE2 if i < tail0 else RATE3)
        n = p["n"]
        tg = wtags(i) + [("X", n, 0), ("X", n, 1)]
        if i % 2 == 0 and i + 1 < NP:
            tg += wtags(i + 1)
        st.need(*tg)
        rd = read_ins(i + NWR - 1) if i + NWR - 1 < NP else []
        g1 = []; g2 = []
        seen = 0
        for x in rd:
            if x[1] is None: (g1 if seen == 0 else g2).append(x)
            else:
                (g1 if seen == 0 else g2).append(x); seen += 1
        W, D = wr(i), p["D"]
        for tb in (0, 1):
            X = xr(n, tb - 0)
            if p["kind"] == "S": st.ins(mm(D + 4 * tb, X, W, p["first"]))
            else: st.ins(mm(D + 4 * tb, W, X, p["first"]))
            for ins, tag in (g1 if tb == 0 else g2): st.ins(ins, tag)
            if tb == 0:
                for m in xat.get(i, []): hq.extend(xload(m))
            acc_credit += rate
            bud = int(acc_credit); acc_credit -= bud
            run_fillers(i, bud)
    a("s_nop 7"); st.n += 8
    P.stamp(6)
    flush_fillers()
    for x in glu(6, flags): st.ins(x)
    print("K2: nops inserted", st.nops, "slots", st.n)
    P.stamp(7)
    if P.on:
        a(f"s_mov_b32 s{P.regs[8]}, s{S_CNT}")
        a("s_waitcnt vmcnt(0)")
    P.stamp(9, real=True)
    P.flush(70, 71, 60, S_W, 40, 41)
    a("s_endpgm")
    a.label("K2_SLOW")
    a(f"s_mov_b32 s{S_CNT}, 0")
    a.label("K2_SLOWL")
    for x in poll_loads(False): a(x)
    a("s_waitcnt vmcnt(0)")
    for x in maxchain(): a(x)
    a(f"""
    s_add_u32 s{S_CNT}, s{S_CNT}, 1
    s_nop 3
    s_cmp_eq_u64 vcc, 0
    s_cbranch_scc1 K2_BACK
    s_cmp_lt_u32 s{S_CNT}, 100000
    s_cbranch_scc1 K2_SLOWL
    s_branch K2_BACK
    """)
    a.label("K2_END")
    a("s_endpgm")
    return 256
```

```python
from common import *
from stream import Stream

K2 = "ssm_gemm1_kernel"
SLOT = 21504
NSLOT = 6
SCR_W = NSLOT * SLOT
TABLE = SCR_W + 8 * 1792
K2_LDS = TABLE + 15 * 256

V_XO = 1
V_GA, V_SA0, V_SA1, V_D1 = 2, 3, 4, 5
Q0 = 2
GA2 = [6, 7, 8, 9]
V_D0, V_D2, V_ST, V_P16, V_SW, V_TB = 10, 11, 12, 13, 14, 15
LAM, TH, A1, CF, A8, A32 = 16, 18, 20, 24, 28, 32
V_D0B = 36
V_XO2 = 37
XR = 40
NXR = 6
WR = 88
NWR = 6
def SRE(b): return 112 + 8 * b
def SIM(b): return 128 + 8 * b
def PG(j): return 144 + 16 * j
def PU(j): return PG(j) + 8
T1 = 192
def xr(n, tb): return XR + 8 * (n % NXR) + 4 * tb
def wr(i): return WR + 4 * (i % NWR)

S_XN, S_G, S_U, S_D0, S_D1, S_D2, S_ACT, S_EXR, S_EXW, S_XB, S_P0, S_P1, S_P2 = range(8, 60, 4)
S_W, S_RB, S_CG, S_TW = 3, 4, 5, 6
S_X, S_O01, S_O2, S_M0, S_M1, S_M2, S_ST, S_SS, S_ER, S_EW, S_XBO, S_O96, S_CNT, S_T = range(76, 90)

L2E = "0x3fb8aa3b"
def f32(x):
    import struct
    return "0x%08x" % struct.unpack("<I", struct.pack("<f", x))[0]

def quad_mac(d, A, s):
    o = []
    for b in (0, 1):
        o.append(f"v_fma_f32 v{d+2*b}, v{A+2*b}, v{s+2*b}, v{d+2*b}")
        o.append(f"v_fma_f32 v{d+2*b+1}, v{A+2*b}, v{s+2*b+1}, v{d+2*b+1}")
    for b in (0, 1):
        o.append(f"v_fma_f32 v{d+2*b}, -v{A+2*b+1}, v{s+2*b+1}, v{d+2*b}")
        o.append(f"v_fma_f32 v{d+2*b+1}, v{A+2*b+1}, v{s+2*b}, v{d+2*b+1}")
    return o

def power(d, n, t):
    o = []
    for b in (0, 1):
        o.append(f"v_mul_f32 v{t+3*b}, {n}, v{LAM+b}")
        o.append(f"v_mul_f32 v{t+3*b+1}, {n}, v{TH+b}")
    for b in (0, 1):
        o.append(f"v_exp_f32 v{t+3*b}, v{t+3*b}")
        o.append(f"v_fract_f32 v{t+3*b+1}, v{t+3*b+1}")
    for b in (0, 1):
        o.append(f"v_cos_f32 v{t+3*b+2}, v{t+3*b+1}")
        o.append(f"v_sin_f32 v{t+3*b+1}, v{t+3*b+1}")
    for b in (0, 1):
        o.append(f"v_mul_f32 v{d+2*b}, v{t+3*b}, v{t+3*b+2}")
        o.append(f"v_mul_f32 v{d+2*b+1}, v{t+3*b}, v{t+3*b+1}")
    return o

def pack_store(O, d0, d1, soff_expr, flags):
    o = [f"v_cvt_pk_bf16_f32 v{O}, v{d0}, v{d0+1}",
         f"v_cvt_pk_bf16_f32 v{O+1}, v{d0+2}, v{d0+3}",
         f"v_cvt_pk_bf16_f32 v{O+2}, v{d1}, v{d1+1}",
         f"v_cvt_pk_bf16_f32 v{O+3}, v{d1+2}, v{d1+3}",
         soff_expr,
         f"v_permlane16_swap_b32 v{O}, v{O+2}",
         f"v_permlane16_swap_b32 v{O+1}, v{O+3}",
         f"buffer_store_dwordx4 {vr(O,4)}, v{V_ST}, s[{S_ACT}:{S_ACT+3}], s{S_T} offen {flags}".rstrip()]
    return o

def glu(j, flags):
    G = [PG(j) + r for r in range(8)]; U = [PU(j) + r for r in range(8)]
    o = []
    o += [f"v_mul_f32 v{g}, 0xbfb8aa3b, v{g}" for g in G]
    o += [f"v_exp_f32 v{g}, v{g}" for g in G]
    o += [f"v_add_f32 v{g}, 1.0, v{g}" for g in G]
    o += [f"v_rcp_f32 v{g}, v{g}" for g in G]
    o += [f"v_mul_f32 v{g}, v{g}, v{u}" for g, u in zip(G, U)]
    o += pack_store(PU(j), PG(j), PG(j) + 4, f"s_add_u32 s{S_T}, s{S_ST}, {j*65536}", flags)
    return o

def ln_code(a, opts, P, wdma, nw):
    B = 40
    def v(i): return f"v{B+i}"
    X = S_P0; DBG = S_P1
    WPOS = opts.get("lnw", "a")
    LP = int(opts.get("lnprof", 0))
    a(f"""
    s_mov_b32 s{X+2}, 0x400000
    s_mov_b32 s{X+3}, 0x00020000
    s_mov_b32 s{S_XB}, s{DBG}
    s_mov_b32 s{S_XB+1}, s{DBG+1}
    s_mov_b32 s{S_XB+2}, 256
    s_mov_b32 s{S_XB+3}, 0x00020000
    v_and_b32 {v(3)}, 7, v0                 ; r
    v_lshrrev_b32 {v(4)}, 3, v0             ; part
    s_lshl_b32 s7, s{S_W}, 5
    v_add_u32 {v(5)}, s7, {v(4)}
    s_lshr_b32 s7, s2, 2
    s_lshl_b32 s7, s7, 5
    s_and_b32 s{S_T}, s2, 1
    s_lshl_b32 s{S_T}, s{S_T}, 4
    s_add_u32 s7, s7, s{S_T}
    s_and_b32 s{S_T}, s2, 2
    s_lshl_b32 s{S_T}, s{S_T}, 1
    s_add_u32 s7, s7, s{S_T}
    v_lshrrev_b32 {v(7)}, 2, {v(3)}
    v_and_b32 {v(8)}, 3, {v(3)}
    v_lshl_add_u32 {v(7)}, {v(7)}, 3, {v(8)}
    v_add_u32 {v(7)}, s7, {v(7)}            ; row
    v_lshlrev_b32 {v(7)}, 11, {v(7)}
    v_lshl_add_u32 {v(7)}, {v(5)}, 4, {v(7)}
    """)
    for j in range(4):
        a(f"buffer_load_dwordx4 {vr(B+16+4*j,4)}, {v(7)}, s[{X}:{X+3}], 0 offen offset:{128*j}")
    pend = 0
    if WPOS == "a":
        wdma(); pend = nw
    a(f"""
    s_lshl_b32 s7, s2, 3
    v_add_u32 {v(6)}, s7, {v(3)}            ; store position
    v_lshlrev_b32 {v(8)}, 15, {v(5)}
    v_lshl_add_u32 {v(8)}, {v(6)}, 4, {v(8)}        ; store offset (kc*32768 + pos*16)
    v_mul_u32_u24 {v(9)}, 144, {v(3)}
    v_add_u32 {v(9)}, {SCR_W}, {v(9)}
    s_lshl_b32 s7, s{S_W}, 3
    v_add_u32 {v(10)}, s7, {v(4)}
    v_lshl_add_u32 {v(10)}, {v(10)}, 2, {v(9)}
    s_waitcnt vmcnt({pend})
    """)
    if LP: P.stamp(2)
    for d in range(16):
        a(f"v_lshlrev_b32 {v(32+2*d)}, 16, {v(16+d)}")
        a(f"v_and_b32 {v(33+2*d)}, 0xffff0000, {v(16+d)}")
    for q in range(4):
        a(f"v_add_f32 {v(64+q)}, {v(32+q)}, {v(36+q)}")
    for d in range(8, 32, 4):
        for q in range(4):
            a(f"v_add_f32 {v(64+q)}, {v(64+q)}, {v(32+d+q)}")
    a(f"v_add_f32 {v(64)}, {v(64)}, {v(65)}")
    a(f"v_add_f32 {v(66)}, {v(66)}, {v(67)}")
    a(f"v_add_f32 {v(64)}, {v(64)}, {v(66)}")
    a(f"ds_write_b32 {v(10)}, {v(64)}")
    a("s_waitcnt lgkmcnt(0)")
    a("s_barrier")
    def reduce32(off, dst):
        for q in range(8):
            a(f"ds_read_b128 {vr(B+68+4*q,4)}, {v(9)} offset:{off+16*q}")
        a("s_waitcnt lgkmcnt(0)")
        for n in (16, 8, 4, 2, 1):
            for q in range(n):
                a(f"v_add_f32 {v(68+q)}, {v(68+q)}, {v(68+n+q)}")
        a(f"v_mul_f32 {v(dst)}, 0x3a800000, {v(68)}")
    reduce32(0, 100)
    for d in range(32):
        a(f"v_sub_f32 {v(68+d)}, {v(32+d)}, {v(100)}")
    for q in range(4):
        a(f"v_mul_f32 {v(64+q)}, {v(68+q)}, {v(68+q)}")
    for d in range(4, 32, 4):
        for q in range(4):
            a(f"v_fmac_f32 {v(64+q)}, {v(68+d+q)}, {v(68+d+q)}")
    a(f"v_add_f32 {v(64)}, {v(64)}, {v(65)}")
    a(f"v_add_f32 {v(66)}, {v(66)}, {v(67)}")
    a(f"v_add_f32 {v(64)}, {v(64)}, {v(66)}")
    a(f"ds_write_b32 {v(10)}, {v(64)} offset:1152")
    a("s_waitcnt lgkmcnt(0)")
    a("s_barrier")
    reduce32(1152, 101)
    a(f"""
    v_cvt_pk_bf16_f32 {v(102)}, {v(100)}, {v(101)}
    v_lshlrev_b32 {v(100)}, 16, {v(102)}
    v_and_b32 {v(101)}, 0xffff0000, {v(102)}
    v_add_f32 {v(101)}, 0x3727c5ac, {v(101)}
    v_cvt_pk_bf16_f32 {v(101)}, {v(101)}, {v(101)}
    v_and_b32 {v(101)}, 0xffff0000, {v(101)}
    v_sqrt_f32 {v(101)}, {v(101)}
    s_nop 0
    v_cvt_pk_bf16_f32 {v(101)}, {v(101)}, {v(101)}
    v_and_b32 {v(101)}, 0xffff0000, {v(101)}
    v_rcp_f32 {v(101)}, {v(101)}
    s_nop 0
    """)
    for d in range(16):
        x0, x1 = v(32 + 2*d), v(33 + 2*d)
        a(f"v_sub_f32 {x0}, {x0}, {v(100)}")
        a(f"v_sub_f32 {x1}, {x1}, {v(100)}")
        a(f"v_cvt_pk_bf16_f32 {x0}, {x0}, {x1}")
        a(f"v_and_b32 {x1}, 0xffff0000, {x0}")
        a(f"v_lshlrev_b32 {x0}, 16, {x0}")
        a(f"v_mul_f32 {x0}, {x0}, {v(101)}")
        a(f"v_mul_f32 {x1}, {x1}, {v(101)}")
        a(f"v_cvt_pk_bf16_f32 {v(16+d)}, {x0}, {x1}")
    for j in range(4):
        a(f"s_mov_b32 s7, {8*32768*j}")
        a(f"buffer_store_dwordx4 {vr(B+16+4*j,4)}, {v(8)}, s[{S_XN}:{S_XN+3}], s7 offen sc1")
    a(f"""
    s_cmp_eq_u32 s{S_W}, 0
    s_cbranch_scc0 K2_NOCLR
    s_mov_b32 exec_hi, 0
    s_lshl_b32 s{S_T}, s2, 9
    s_and_b32 s7, s2, 7
    s_lshl_b32 s7, s7, 1
    v_lshrrev_b32 {v(12)}, 4, v0
    v_add_u32 {v(12)}, s7, {v(12)}          ; row
    v_cmp_lt_u32 vcc, 6, {v(12)}
    v_lshlrev_b32 {v(11)}, 4, v0
    s_nop 1
    v_cndmask_b32 {v(12)}, 0, -1, vcc
    v_cndmask_b32 {v(13)}, 0, -1, vcc
    v_cndmask_b32 {v(14)}, 0, -1, vcc
    v_cndmask_b32 {v(15)}, 0, -1, vcc
    buffer_store_dwordx4 {vr(B+12,4)}, {v(11)}, s[{S_EXR}:{S_EXR+3}], s{S_T} offen sc1
    s_mov_b64 exec, -1
    K2_NOCLR:
    s_waitcnt vmcnt(0)
    """)
    if LP: P.stamp(3)
    a(f"""
    s_barrier
    s_cmp_eq_u32 s{S_W}, 0
    s_cbranch_scc0 K2_NOFLAG
    s_mov_b64 exec, 1
    v_mov_b32 {v(11)}, s2
    v_mov_b32 {v(12)}, 1
    buffer_store_byte {v(12)}, {v(11)}, s[{S_XB}:{S_XB+3}], 0 offen sc1
    s_mov_b64 exec, -1
    K2_NOFLAG:
    """)
    if WPOS == "b":
        wdma()

def gen_k2(a, store_flags="", prof=False, opts=None):
    opts = opts or {}
    flags = store_flags.replace("+", " ")
    RATE2 = float(opts.get("rate2", 1.5))
    RATE3 = float(opts.get("rate3", 3))
    NOEPI = int(opts.get("noepi", 0))
    POLLFIRST = int(opts.get("pollfirst", 1))
    NT1 = int(opts.get("nt1", 2))
    kernel_begin(a, K2)
    P = Prof(a, prof, 1, list(range(90, 100)), 100)
    a("""
    s_cmp_ge_u32 s2, 256
    s_cbranch_scc1 K2_END
    """)
    P.stamp(0, real=True)
    P.stamp(1)
    a(f"""
    s_load_dwordx4 s[72:75], s[0:1], 80     ; w_gate, w_up
    s_load_dwordx2 s[70:71], s[0:1], 120    ; ws
    s_load_dwordx4 s[64:67], s[0:1], 24
    s_load_dwordx4 s[60:63], s[0:1], 8
    s_load_dwordx2 s[68:69], s[0:1], 56     ; log_dt
    s_load_dwordx2 s[82:83], s[0:1], 96     ; w_down
    s_load_dwordx4 s[84:87], s[0:1], 40
    """)
    LN = int(opts.get("ln", 0)); LP = int(opts.get("lnprof", 0))
    if int(opts.get("fold", 0)):
        a("s_load_dwordx2 s[56:57], s[0:1], 0       ; x")
    if LN:
        a(f"""
        s_load_dwordx2 s[{S_P0}:{S_P0+1}], s[0:1], 0       ; x
        s_load_dwordx2 s[{S_P1}:{S_P1+1}], s[0:1], 112     ; hand-off bytes (zero at launch)
        """)
    a(f"""
    v_lshrrev_b32 v240, 6, v0
    v_and_b32 v0, 63, v0                    ; lane
    v_readfirstlane_b32 s{S_W}, v240         ; wave
    s_and_b32 s7, s2, 7                     ; xcd
    s_lshr_b32 s{S_CG}, s2, 3
    s_and_b32 s{S_RB}, s{S_CG}, 7
    s_lshr_b32 s{S_CG}, s{S_CG}, 3
    s_lshl_b32 s7, s7, 2
    s_add_u32 s{S_CG}, s{S_CG}, s7
    s_lshl_b32 s{S_TW}, s{S_RB}, 12         ; 256*rb*16
    s_lshl_b32 s7, s{S_W}, 9                ; 32*w*16
    s_add_u32 s{S_TW}, s{S_TW}, s7          ; tw*16
    s_mov_b32 s{S_X}, s{S_TW}
    """)
    AL = int(opts.get("al", 0))
    if AL:
        a(f"""
        s_lshr_b32 s7, s{S_CG}, 2
        s_mul_i32 s7, s7, 896
        s_and_b32 s{S_O01}, s{S_CG}, 3
        s_mul_i32 s{S_O01}, s{S_O01}, 96
        s_add_u32 s{S_O01}, s{S_O01}, s7
        """)
    else:
        a(f"s_mul_i32 s{S_O01}, s{S_CG}, 224")
    a(f"""
    s_lshl_b32 s{S_O2}, s{S_CG}, 16
    s_lshl_b32 s{S_M0}, s{S_W}, 10
    s_add_u32 s{S_M1}, s{S_M0}, 8192
    s_add_u32 s{S_M2}, s{S_M0}, 12288
    s_cmp_lt_u32 s{S_W}, 4
    s_cselect_b32 s{S_M1}, s{S_M1}, 20480
    ; ---- DMA lane offsets.  GLU type: q = 64 i' + lane, rho = q / 6, ch = q % 6, k = swap23(rho)
    s_sub_u32 s7, s{S_W}, 6
    s_cmp_lt_u32 s{S_W}, 6
    s_cselect_b32 s7, s{S_W}, s7
    s_lshl_b32 s7, s7, 6                    ; 64 i' (u=0)
    s_lshl_b32 s{S_T}, s{S_W}, 6
    s_add_u32 s{S_T}, s{S_T}, 128           ; 64 i' (u=1)
    v_add_u32 v241, s7, v0
    v_add_u32 v242, s{S_T}, v0
    """)
    for (q, d) in ((241, V_D0), (242, V_D1)):
        a(f"""
        v_mul_u32_u24 v243, 10923, v{q}
        v_lshrrev_b32 v243, 16, v243              ; rho
        v_mul_u32_u24 v244, 6, v243
        v_sub_u32 v244, v{q}, v244                ; ch
        v_and_b32 v245, 0x33, v243
        v_and_b32 v246, 4, v243
        v_lshl_or_b32 v245, v246, 1, v245
        v_and_b32 v246, 8, v243
        v_lshrrev_b32 v246, 1, v246
        v_or_b32 v245, v245, v246                  ; k
        v_mul_u32_u24 v245, 7168, v245
        v_lshl_add_u32 v{d}, v244, 4, v245
        """)
    a(f"""
    s_and_b32 s7, s{S_W}, 3
    s_lshl_b32 s7, s7, 3
    v_lshrrev_b32 v243, 3, v0
    v_add_u32 v243, s7, v243                  ; row
    v_lshrrev_b32 v244, 1, v243
    v_xor_b32 v244, v244, v0
    v_and_b32 v244, 7, v244
    v_lshlrev_b32 v244, 4, v244
    v_lshl_add_u32 v{V_D2}, v243, 11, v244
    ; X: (l>>4)*32768 + (l&15)*16
    v_lshrrev_b32 v243, 4, v0                ; g
    v_and_b32 v244, 15, v0                   ; n
    v_lshlrev_b32 v245, 4, v244
    v_lshl_add_u32 v{V_XO}, v243, 15, v245
    s_waitcnt lgkmcnt(0)
    """)
    FOLD = int(opts.get("fold", 0))
    if FOLD:
        a(f"""
        v_lshrrev_b32 v245, 2, v244
        v_and_b32 v246, 3, v244
        v_lshl_add_u32 v245, v245, 3, v246
        v_lshlrev_b32 v245, 11, v245
        v_lshl_add_u32 v{V_XO}, v243, 4, v245
        v_add_u32 v{V_XO2}, 8192, v{V_XO}
        s_lshl_b32 s{S_TW}, s{S_TW}, 7
        s_mov_b32 s{S_X}, s{S_TW}
        """)
        srd(a, S_XN, 56, 57, 0x400000)
    else:
        srd(a, S_XN, 70, 71, XN_SZ, XN_OFF)
    a(f"""
    s_cmp_lt_u32 s{S_W}, 6
    s_cselect_b32 s{S_D0}, s72, s74
    s_cselect_b32 s{S_D0+1}, s73, s75
    s_mov_b32 s{S_D0+2}, 0x700000
    s_mov_b32 s{S_D0+3}, 0x00020000
    s_cmp_lt_u32 s{S_W}, 4
    s_mov_b32 s{S_D1}, s74
    s_mov_b32 s{S_D1+1}, s75
    s_cselect_b32 s{S_D1+2}, 0x700000, 0
    s_mov_b32 s{S_D1+3}, 0x00020000
    s_cselect_b32 s{S_D2}, s64, s66
    s_cselect_b32 s{S_D2+1}, s65, s67
    s_mov_b32 s{S_D2+2}, 0x200000
    s_mov_b32 s{S_D2+3}, 0x00020000
    """)
    a(f"s_mov_b32 s{S_CNT}, 0")
    st = Stream(a)
    def dma(s):
        slot = (s % NSLOT) * SLOT
        g = []
        if s < 16:
            g.append([f"s_add_u32 m0, s{S_M0}, {slot}", "s_nop 0", (f"buffer_load_dwordx4 v{V_D0}, s[{S_D0}:{S_D0+3}], s{S_O01} offen lds", ("D", s, 0))])
            g.append([f"s_add_u32 m0, s{S_M1}, {slot}", "s_nop 0", (f"buffer_load_dwordx4 v{V_D1}, s[{S_D1}:{S_D1+3}], s{S_O01} offen lds", ("D", s, 1)),
                      f"s_add_u32 s{S_O01}, s{S_O01}, 458752"])
            g.append([f"s_add_u32 m0, s{S_M2}, {slot}", "s_nop 0", (f"buffer_load_dwordx4 v{V_D2}, s[{S_D2}:{S_D2+3}], s{S_O2} offen lds", ("D", s, 2)),
                      f"s_add_u32 s{S_O2}, s{S_O2}, 128"])
        else:
            pre = [f"s_mov_b32 s{S_O01}, s{S_O96}"] if s == 16 else []
            g.append(pre + [f"s_add_u32 m0, s{S_M0}, {slot}", "s_nop 0", (f"buffer_load_dwordx4 v{V_D0B}, s[{S_G}:{S_G+3}], s{S_O01} offen lds", ("D", s, 0))])
            g.append([f"s_add_u32 m0, s{S_M0}, {slot+8192}", "s_nop 0", (f"buffer_load_dwordx4 v{V_D0B}, s[{S_U}:{S_U+3}], s{S_O01} offen lds", ("D", s, 1)),
                      f"s_add_u32 s{S_O01}, s{S_O01}, 458752"])
        if int(opts.get("dfix", 0)):
            g = [[x for x in grp if not (isinstance(x, str) and (x.startswith(f"s_add_u32 s{S_O01},") or x.startswith(f"s_add_u32 s{S_O2},")))] for grp in g]
        return g
    def dtags(s): return [("D", s, u) for u in range(3 if s < 16 else 2)]
    def xload(n):
        if FOLD:
            if n & 1: return []
            g = []
            for (va, tb) in ((V_XO, 0), (V_XO2, 1)):
                for h in (0, 1):
                    g.append((f"buffer_load_dwordx4 {vr(xr(n+h,tb),4)}, v{va}, s[{S_XN}:{S_XN+3}], s{S_X} offen offset:{64*h}", ("X", n+h, tb)))
            if n == 30: g.append(f"s_mov_b32 s{S_X}, s{S_TW}")
            else: g.append(f"s_add_u32 s{S_X}, s{S_X}, 128")
            if int(opts.get("xsplit", 0)): return [g[:2], g[2:]]
            return [g]
        g = [(f"buffer_load_dwordx4 {vr(xr(n,0),4)}, v{V_XO}, s[{S_XN}:{S_XN+3}], s{S_X} offen", ("X", n, 0)),
             (f"buffer_load_dwordx4 {vr(xr(n,1),4)}, v{V_XO}, s[{S_XN}:{S_XN+3}], s{S_X} offen offset:256", ("X", n, 1))]
        if n == 31: g.append(f"s_mov_b32 s{S_X}, s{S_TW}")
        elif not int(opts.get("xfix", 0)): g.append(f"s_add_u32 s{S_X}, s{S_X}, 131072")
        return [g]
    def emit_group(g):
        for x in g:
            if isinstance(x, tuple): st.ins(x[0], x[1])
            elif x.endswith(":"): a.label(x[:-1])
            else: st.ins(x)
    DLA = int(opts.get("dla", 4))
    NPRO = int(opts.get("npro", 100))
    def raw_group(g):
        for x in g: a(x[0] if isinstance(x, tuple) else x)
    def param_srds():
        srd(a, S_P0, 60, 61, 2048)
        srd(a, S_P1, 62, 63, 2048)
        srd(a, S_P2, 68, 69, 2048)
    PL = T1
    def param_loads(tracked):
        a(f"""
        v_and_b32 v250, 15, v0
        v_lshlrev_b32 v250, 1, v250
        s_lshl_b32 s7, s{S_CG}, 6
        """)
        for i, sp in enumerate((S_P0, S_P1, S_P2)):
            for b in (0, 1):
                x = f"buffer_load_ushort v{PL+2*i+b}, v250, s[{sp}:{sp+3}], s7 offen offset:{32*b}"
                if tracked: st.ins(x, ("PL", i, b))
                else: a(x)
    if LN:
        NPRO = 100
        wgroups = dma(0) + dma(1) + dma(2) + dma(3) + dma(4) + dma(5)
        srd(a, S_G, 72, 73, 0x700000)
        srd(a, S_U, 74, 75, 0x700000)
        srd(a, S_EXR, 70, 71, EX_SZ, EX_OFF)
        a(f"""
        s_cmp_lt_u32 s{S_W}, 4
        s_cbranch_scc0 K2_PFW
        """)
        ln_code(a, opts, P, (lambda: [raw_group(g) for g in wgroups]), 18)
        param_srds()
        param_loads(False)
        a("s_branch K2_JOIN")
        a.label("K2_PFW")
        for g in wgroups: emit_group(g)
        param_srds()
        param_loads(True)
        PF = opts.get("pf", "bgu")
        a(f"""
        s_sub_u32 s7, s{S_W}, 4
        s_lshl_b32 s7, s7, 6
        s_lshl_b32 s{S_T}, s2, 8
        s_add_u32 s{S_T}, s{S_T}, s7
        v_add_u32 v41, s{S_T}, v0
        v_lshlrev_b32 v41, 7, v41               ; (wg*256 + t) * 128
        s_lshr_b32 s{S_T}, s2, 1
        s_lshl_b32 s{S_T}, s{S_T}, 8
        s_add_u32 s{S_T}, s{S_T}, s7
        v_add_u32 v42, s{S_T}, v0
        v_lshlrev_b32 v42, 7, v42               ; ((wg>>1)*256 + t) * 128
        s_and_b32 s7, s2, 1
        s_cmp_eq_u32 s7, 0
        s_cselect_b32 s{S_ACT}, s64, s66
        s_cselect_b32 s{S_ACT+1}, s65, s67
        s_mov_b32 s{S_ACT+2}, 0x200000
        s_mov_b32 s{S_ACT+3}, 0x00020000
        """)
        for c in PF:
            if c == "b": a(f"buffer_load_dword v43, v42, s[{S_ACT}:{S_ACT+3}], 0 offen")
            if c == "g": a(f"buffer_load_dword v44, v41, s[{S_G}:{S_G+3}], 0 offen")
            if c == "u": a(f"buffer_load_dword v45, v41, s[{S_U}:{S_U+3}], 0 offen")
        for _ in range(3): a("s_barrier")
        a.label("K2_JOIN")
        P.stamp(4 if LP else 2)
        a(f"""
        s_cmp_eq_u32 s{S_W}, 0
        s_cbranch_scc0 K2_GO
        """)
        a(f"""
        s_mov_b32 s{S_CNT}, 0
        v_lshlrev_b32 v41, 2, v0
        K2_POLL:
        buffer_load_dword v42, v41, s[{S_XB}:{S_XB+3}], 0 offen sc1
        s_add_u32 s{S_CNT}, s{S_CNT}, 1
        s_waitcnt vmcnt(0)
        v_cmp_ne_u32 vcc, 0x01010101, v42
        s_nop 1
        s_cmp_eq_u64 vcc, 0
        s_cbranch_scc1 K2_GO
        s_cmp_lt_u32 s{S_CNT}, 100000
        s_cbranch_scc1 K2_POLL
        K2_GO:
        s_barrier
        """)
        if LP: P.stamp(5)
        if LP: a(f"s_mov_b32 s{P.regs[8]}, s{S_CNT}")
        for n in range(6):
            for g in xload(n): emit_group(g)
        pro_rest = []
    else:
        order = dma(0) + xload(0) + xload(1) + dma(1) + xload(2) + xload(3) + dma(2) + xload(4) + xload(5) + dma(3)
        if NPRO == 100:
            order += dma(4) + dma(5)
        pro_rest = order[NPRO:]
        for grp in order[:NPRO]: emit_group(grp)
        P.stamp(2)
        if FOLD:
            PF = opts.get("pf", "xbgu")
            srd(a, S_G, 72, 73, 0x700000)
            srd(a, S_U, 74, 75, 0x700000)
            a(f"""
            s_and_b32 s7, s{S_W}, 3
            s_lshl_b32 s7, s7, 6
            s_lshl_b32 s{S_T}, s2, 8
            s_add_u32 s{S_T}, s{S_T}, s7
            v_add_u32 v241, s{S_T}, v0
            v_lshlrev_b32 v241, 7, v241               ; (wg*256 + t) * 128
            s_lshr_b32 s{S_T}, s2, 1
            s_lshl_b32 s{S_T}, s{S_T}, 8
            s_add_u32 s{S_T}, s{S_T}, s7
            v_add_u32 v242, s{S_T}, v0
            v_lshlrev_b32 v242, 7, v242               ; ((wg>>1)*256 + t) * 128
            s_and_b32 s7, s2, 1
            s_cmp_eq_u32 s7, 0
            s_cselect_b32 s{S_ACT}, s64, s66
            s_cselect_b32 s{S_ACT+1}, s65, s67
            s_mov_b32 s{S_ACT+2}, 0x200000
            s_mov_b32 s{S_ACT+3}, 0x00020000
            ; waves 0..3: first = x (waves 0, 1; 16 KB per workgroup), second = w_gate ; waves 4..7: first = B, second = w_up
            s_lshl_b32 s7, s2, 14
            s_lshl_b32 s{S_T}, s{S_W}, 13
            s_add_u32 s7, s7, s{S_T}
            v_lshlrev_b32 v240, 7, v0
            v_add_u32 v240, s7, v240
            s_cmp_lt_u32 s{S_W}, 2
            s_cselect_b32 s7, 0x400000, 0
            s_cmp_lt_u32 s{S_W}, 4
            s_cselect_b32 s{S_EXW}, s{S_XN}, s{S_ACT}
            s_cselect_b32 s{S_EXW+1}, s{S_XN+1}, s{S_ACT+1}
            s_cselect_b32 s{S_EXW+2}, s7, s{S_ACT+2}
            s_mov_b32 s{S_EXW+3}, 0x00020000
            s_cselect_b32 s{S_XB}, s72, s74
            s_cselect_b32 s{S_XB+1}, s73, s75
            s_mov_b32 s{S_XB+2}, 0x700000
            s_mov_b32 s{S_XB+3}, 0x00020000
            s_cselect_b64 vcc, -1, 0
            v_cndmask_b32 v240, v242, v240, vcc
            """)
            if "x" in PF: st.ins(f"buffer_load_dword v255, v240, s[{S_EXW}:{S_EXW+3}], 0 offen", ("PF", 8))
            if "g" in PF: st.ins(f"buffer_load_dword v255, v241, s[{S_XB}:{S_XB+3}], 0 offen", ("PF", 9))
    if not LN:
        srd(a, S_G, 72, 73, 0x700000)
        srd(a, S_U, 74, 75, 0x700000)
        srd(a, S_EXR, 70, 71, EX_SZ, EX_OFF)
    srd(a, S_ACT, 70, 71, ACT_SZ, ACT_OFF)
    srd(a, S_EXW, 70, 71, EX_SZ, EX_OFF)
    a(f"""
    s_cmp_eq_u32 s{S_W}, 7
    s_cselect_b32 s{S_EXW+2}, 0x{EX_SZ:x}, 0
    """)
    srd(a, S_XB, 70, 71, XB_SZ, XB_OFF)
    if not LN: param_srds()
    PF3 = int(opts.get("pf3", -1)); NPF3 = int(opts.get("npf3", 1)); PF3D = int(opts.get("pf3d", 50))
    PF2A = int(opts.get("pf2a", -1)); PF2B = int(opts.get("pf2b", -1)); PFR = int(opts.get("pf1rows", 256))
    O96 = f"""s_mul_i32 s{S_O96}, s{S_CG}, 224
    s_add_u32 s{S_O96}, s{S_O96}, 96"""
    if AL:
        O96 = f"""s_lshr_b32 s7, s{S_CG}, 2
        s_mul_i32 s7, s7, 896
        s_and_b32 s{S_O96}, s{S_CG}, 3
        s_lshl_b32 s{S_O96}, s{S_O96}, 7
        s_add_u32 s{S_O96}, s{S_O96}, s7
        s_add_u32 s{S_O96}, s{S_O96}, 384"""
    a(f"""
    s_lshl_b32 s7, s2, 2
    s_add_u32 s7, s7, s{S_W}
    s_mov_b32 s62, 0x700000
    s_cmp_lt_u32 s{S_W}, 4
    s_cselect_b32 s60, s82, s84
    s_cselect_b32 s61, s83, s85
    s_cselect_b32 s62, s62, 0x200000
    s_cselect_b32 s68, s7, s2
    s_lshl_b32 s68, s68, 13
    s_cmp_eq_u32 s{S_W}, 5
    s_cselect_b32 s60, s86, s60
    s_cselect_b32 s61, s87, s61
    s_cmp_lt_u32 s{S_W}, 6
    s_cselect_b32 s62, s62, 0
    s_mov_b32 s63, 0x00020000
    {O96}
    v_and_b32 v254, {64 // NPF3 - 1}, v0
    v_lshlrev_b32 v254, 7, v254
    ; warm-up of this launch's later weight rows: 4 rows x 14 lines of w_gate (even waves) / w_up (odd waves)
    s_and_b32 s7, s{S_W}, 1
    s_cmp_eq_u32 s7, 0
    s_cselect_b32 s64, s72, s74
    s_cselect_b32 s65, s73, s75
    s_mov_b32 s66, 0x700000
    s_mov_b32 s67, 0x00020000
    s_lshr_b32 s7, s2, 3
    s_lshl_b32 s7, s7, 2
    s_lshr_b32 s69, s{S_W}, 1
    s_add_u32 s69, s69, s7
    s_lshl_b32 s69, s69, 2
    s_add_u32 s69, s69, {PFR}
    s_mul_i32 s69, s69, 7168
    s_and_b32 s7, s2, 7
    s_mul_i32 s7, s7, 1792
    s_add_u32 s69, s69, s7
    v_and_b32 v253, 15, v0
    v_min_u32 v253, 13, v253
    v_lshlrev_b32 v253, 7, v253
    v_lshrrev_b32 v252, 4, v0
    v_mul_u32_u24 v252, 7168, v252
    v_add_u32 v253, v253, v252
    """)
    a(f"""
    v_lshrrev_b32 v246, 2, v0
    v_and_b32 v246, 3, v246                   ; r
    v_and_b32 v247, 3, v0                    ; c
    v_and_b32 v248, 1, v243
    v_lshl_add_u32 v248, v248, 2, v246
    v_lshrrev_b32 v249, 1, v243
    v_lshl_add_u32 v248, v249, 4, v248
    v_mul_u32_u24 v248, 96, v248
    v_lshl_add_u32 v{V_GA}, v247, 3, v248
    ; S address: 12288 + n*128 + ((g ^ (n>>1))*16)
    v_lshrrev_b32 v248, 1, v244
    v_xor_b32 v248, v248, v243
    v_lshlrev_b32 v248, 4, v248
    v_lshl_add_u32 v248, v244, 7, v248
    v_add_u32 v{V_SA0}, 12288, v248
    v_xor_b32 v{V_SA1}, 64, v{V_SA0}
    """)
    if not LN: param_loads(True)
    F1 = []
    def I(q, lst):
        for x in lst: q.append(("i", x))
    t = T1 + 8
    I(F1, [
        f"v_lshrrev_b32 v{t}, 4, v0",
        f"v_lshrrev_b32 v{t+1}, 2, v0",
        f"v_and_b32 v{t+1}, 3, v{t+1}",
        f"v_and_b32 v{t+2}, 3, v0",
        f"v_lshl_add_u32 v{t+3}, v{t}, 3, v{t+1}",
        f"v_lshlrev_b32 v{t+3}, 7, v{t+3}",
        f"v_lshl_add_u32 v{t+3}, v{t+2}, 3, v{t+3}",
        f"v_lshrrev_b32 v{t+4}, 1, v{t+1}",
        f"v_and_b32 v{t+5}, 1, v{t}",
        f"v_lshl_or_b32 v{t+4}, v{t+5}, 1, v{t+4}",
    ])
    for w in range(4):
        I(F1, [f"v_xor_b32 v{t+5}, {w}, v{t+4}", f"v_lshl_add_u32 v{GA2[w]}, v{t+5}, 5, v{t+3}"])
    I(F1, [
        f"s_lshl_b32 s7, s{S_W}, 3",
        f"v_lshrrev_b32 v{t+6}, 3, v0",
        f"v_add_u32 v{t+6}, s7, v{t+6}",
        f"v_mul_u32_u24 v{t+6}, 7168, v{t+6}",
        f"s_and_b32 s7, s{S_W}, 1",
        f"s_lshl_b32 s7, s7, 1",
        f"v_and_b32 v{t+7}, 1, v{t}",
        f"v_or_b32 v{t+7}, s7, v{t+7}",
        f"v_lshrrev_b32 v{t+8}, 1, v0",
        f"v_and_b32 v{t+8}, 3, v{t+8}",
        f"v_xor_b32 v{t+7}, v{t+7}, v{t+8}",
        f"v_lshl_add_u32 v{t+6}, v{t+7}, 5, v{t+6}",
        f"v_and_b32 v{t+8}, 1, v0",
        f"v_lshl_add_u32 v{V_D0B}, v{t+8}, 4, v{t+6}",
        f"v_and_b32 v{t+2}, 15, v0",
        f"v_lshrrev_b32 v{t+6}, 2, v{t+2}",
        f"v_lshlrev_b32 v{t+6}, 3, v{t+6}",
        f"v_lshl_add_u32 v{t+6}, v{t+5-5+0}, 0, v{t+6}" if False else f"v_and_b32 v{t+7}, 1, v{t}",
        f"v_lshl_add_u32 v{t+6}, v{t+7}, 2, v{t+6}",
        f"v_and_b32 v{t+7}, 3, v{t+2}",
        f"v_add_u32 v{t+6}, v{t+6}, v{t+7}",
        f"v_lshlrev_b32 v{t+6}, 4, v{t+6}",
        f"v_lshrrev_b32 v{t+7}, 1, v{t}",
        f"v_lshl_add_u32 v{V_ST}, v{t+7}, 15, v{t+6}",
        f"v_lshlrev_b32 v{V_P16}, 4, v{t+2}",
        f"s_mul_i32 s7, s{S_W}, 1792",
        f"s_add_u32 s7, s7, {SCR_W}",
        f"v_lshl_add_u32 v{V_SW}, v{t}, 8, v{V_P16}",
        f"v_add_u32 v{V_SW}, s7, v{V_SW}",
        f"s_lshl_b32 s7, s{S_W}, 8",
        f"s_add_u32 s7, s7, {TABLE}",
        f"v_add_u32 v{V_TB}, s7, v{V_P16}",
        *([f"s_mul_i32 s{S_ST}, s{S_CG}, {14*32768}"] if not AL else
          [f"s_lshr_b32 s{S_T}, s{S_CG}, 2", f"s_mul_i32 s{S_T}, s{S_T}, {56*32768}", f"s_and_b32 s{S_ST}, s{S_CG}, 3",
           f"s_mul_i32 s{S_ST}, s{S_ST}, {6*32768}", f"s_add_u32 s{S_ST}, s{S_ST}, s{S_T}"]),
        f"s_add_u32 s{S_ST}, s{S_ST}, s{S_TW}",
        f"s_lshl_b32 s{S_SS}, s{S_CG}, 17",
        f"s_add_u32 s{S_SS}, s{S_SS}, s{S_TW}",
        f"s_add_u32 s{S_SS}, s{S_SS}, {448*32768}",
        f"s_lshl_b32 s{S_ER}, s{S_CG}, 12",
        f"s_lshl_b32 s7, s{S_RB}, 8",
        f"s_add_u32 s{S_ER}, s{S_ER}, s7",
        f"s_add_u32 s{S_EW}, s{S_ER}, {7*256}",
        f"s_lshl_b32 s{S_XBO}, s2, 15",
        f"s_lshl_b32 s7, s{S_W}, 12",
        f"s_add_u32 s{S_XBO}, s{S_XBO}, s7",
        f"v_mov_b32 v{t+12}, 0", f"v_mov_b32 v{t+13}, 0", f"v_mov_b32 v{t+14}, 0", f"v_mov_b32 v{t+15}, 0",
        f"ds_write_b128 v{V_SW}, {vr(t+12,4)}",
        f"ds_write_b128 v{V_TB}, {vr(t+12,4)}",
        f"v_mov_b32 v{t+16}, -1", f"v_mov_b32 v{t+17}, -1", f"v_mov_b32 v{t+18}, -1", f"v_mov_b32 v{t+19}, -1",
        f"v_lshlrev_b32 v{t+20}, 4, v0",
    ])
    for k in range(4 if not int(opts.get("noxb", 0)) else 0):
        I(F1, [f"buffer_store_dwordx4 {vr(t+16,4)}, v{t+20}, s[{S_XB}:{S_XB+3}], s{S_XBO} offen offset:{k*1024}"])
    F1.append(("need", [("PL", i, b) for i in range(3) for b in (0, 1)]))
    u = T1 + 32
    for b in (0, 1):
        lre, lim, dt = PL + b, PL + 2 + b, PL + 4 + b
        q = u + 8 * b
        I(F1, [
            f"v_lshlrev_b32 v{lre}, 16, v{lre}",
            f"v_lshlrev_b32 v{lim}, 16, v{lim}",
            f"v_lshlrev_b32 v{dt}, 16, v{dt}",
            f"v_mul_f32 v{dt}, {L2E}, v{dt}",
            f"v_exp_f32 v{dt}, v{dt}",
            f"v_cvt_pk_bf16_f32 v{dt}, v{dt}, v{dt}",
            f"v_and_b32 v{dt}, 0xffff0000, v{dt}",
            f"v_mul_f32 v{q}, v{dt}, v{lre}",
            f"v_mul_f32 v{q+1}, v{dt}, v{lim}",
            f"v_mul_f32 v{LAM+b}, {L2E}, v{q}",
            f"v_mul_f32 v{TH+b}, 0x3e22f983, v{q+1}",
        ])
    I(F1, power(A1, "1.0", u + 16))
    for b in (0, 1):
        lre, lim = PL + b, PL + 2 + b
        ar, ai = A1 + 2 * b, A1 + 2 * b + 1
        q = u + 8 * b
        I(F1, [
            f"v_add_f32 v{q}, -1.0, v{ar}",
            f"v_mul_f32 v{q+1}, v{lre}, v{lre}",
            f"v_fmac_f32 v{q+1}, v{lim}, v{lim}",
            f"v_rcp_f32 v{q+1}, v{q+1}",
            f"v_mul_f32 v{q+2}, v{q}, v{lre}",
            f"v_fmac_f32 v{q+2}, v{ai}, v{lim}",
            f"v_mul_f32 v{q+3}, v{ai}, v{lre}",
            f"v_fma_f32 v{q+3}, -v{q}, v{lim}, v{q+3}",
            f"v_add_f32 v{q+1}, v{q+1}, v{q+1}",
            f"v_mul_f32 v{CF+2*b}, v{q+2}, v{q+1}",
            f"v_mul_f32 v{CF+2*b+1}, v{q+3}, v{q+1}",
        ])
    I(F1, power(A8, "0x41000000", u + 16))
    I(F1, power(A32, "0x42000000", u + 16))

    F2 = []
    R0, R1, R2 = PG(0), PG(1), PG(2)
    I(F2, glu(0, flags))
    F2.append(("atS",))
    cur = [(SRE(b), SIM(b)) for b in (0, 1)]
    for j in range(1, 8):
        d = R0 if (j & 1) else R0 + 4
        for b in (0, 1):
            F2.append(("i", f"v_fma_f32 v{d+2*b}, v{A1+2*b}, v{cur[b][0]}, v{SRE(b)+j}"))
            F2.append(("i", f"v_fma_f32 v{d+2*b+1}, v{A1+2*b}, v{cur[b][1]}, v{SIM(b)+j}"))
        for b in (0, 1):
            F2.append(("i", f"v_fma_f32 v{d+2*b}, -v{A1+2*b+1}, v{cur[b][1]}, v{d+2*b}"))
            F2.append(("i", f"v_fma_f32 v{d+2*b+1}, v{A1+2*b+1}, v{cur[b][0]}, v{d+2*b+1}"))
        cur = [(d + 2 * b, d + 2 * b + 1) for b in (0, 1)]
    I(F2, [f"ds_write_b128 v{V_SW}, {vr(R0,4)} offset:768"])
    for k in range(3):
        F2.append(("t", f"ds_read_b128 {vr(R0+4+4*k,4)}, v{V_SW} offset:{256*k}", ("SW", k)))
    F2.append(("gapn", 3))
    F2.append(("need", [("SW", 2)]))
    I(F2, quad_mac(R0 + 8, A8, R0 + 4))
    I(F2, quad_mac(R0 + 12, A8, R0 + 8))
    I(F2, quad_mac(R0, A8, R0 + 12))
    F2.append(("g", ["s_mov_b32 exec_lo, 0", "s_mov_b32 exec_hi, 0xffff0000",
                     (f"ds_write_b128 v{V_TB}, {vr(R0,4)} offset:{7*256}", "TW"), "s_mov_b64 exec, -1"]))
    F2.append(("mark", "TW"))
    F2.append(("at1",))
    I(F2, glu(1, flags))
    F2.append(("afterbar", "TW"))
    rows = [R1, R1 + 4, R1 + 8, R1 + 12, R0 + 4, R0 + 8, Q0]
    for k in range(7):
        F2.append(("t", f"ds_read_b128 {vr(rows[k],4)}, v{V_TB} offset:{256*k}", ("TR", k)))
    F2.append(("gapn", 2))
    for k in range(1, 7):
        F2.append(("need", [("TR", k - 1), ("TR", k)]))
        I(F2, quad_mac(rows[k], A32, rows[k-1]))
    I(F2, quad_mac(R0, A32, Q0))
    I(F2, [f"s_mov_b32 s7, 0xfffffffe"])
    I(F2, [f"v_min_u32 v{R0+r}, s7, v{R0+r}" for r in range(4)])
    F2.append(("g", ["s_mov_b32 exec_lo, 0", "s_mov_b32 exec_hi, 0xffff0000",
                     f"buffer_store_dwordx4 {vr(R0,4)}, v{V_P16}, s[{S_EXW}:{S_EXW+3}], s{S_EW} offen sc1", "s_mov_b64 exec, -1"]))
    if not LP: F2.append(("stamp", 4))
    I(F2, [f"v_lshrrev_b32 v{R1+12}, 4, v0", f"v_lshlrev_b32 v{R1+12}, 3, v{R1+12}", f"v_cvt_f32_u32 v{R1+13}, v{R1+12}"])
    I(F2, power(R1, f"v{R1+13}", R1 + 4))
    I(F2, quad_mac(R0 + 12, R1, Q0))
    I(F2, [f"s_lshl_b32 s7, s{S_W}, 5", f"v_add_u32 v{V_D0}, s7, v{R1+12}", f"v_cvt_f32_u32 v{V_D0}, v{V_D0}"])
    F2.append(("at", int(opts.get("pollat", 0))))
    prow = [R1, R1 + 4, R1 + 8, R1 + 12, R0, R0 + 4, R0 + 8]
    def poll_loads(tagged):
        o = []
        for k in range(7):
            s = f"buffer_load_dwordx4 {vr(prow[k],4)}, v{V_P16}, s[{S_EXR}:{S_EXR+3}], s{S_ER} offen offset:{256*k} sc1"
            o.append((s, ("PR", k)) if tagged else s)
        return o
    if POLLFIRST:
        for x in poll_loads(True): F2.append(("t", x[0], x[1]))
    I(F2, glu(2, flags))
    I(F2, power(R2, "0x43800000", R2 + 8))
    I(F2, power(R2 + 4, f"v{V_D0}", R2 + 8))
    if not POLLFIRST:
        for x in poll_loads(True): F2.append(("t", x[0], x[1]))
    F2.append(("gapn", int(opts.get("pollgap", 0))))
    F2.append(("need", [("PR", 6)]))
    def maxchain():
        m = V_D2
        regs = [r + i for r in prow for i in range(4)]
        o = [f"v_max3_u32 v{m}, v{regs[0]}, v{regs[1]}, v{regs[2]}"]
        for k in range(3, 27, 2):
            o.append(f"v_max3_u32 v{m}, v{m}, v{regs[k]}, v{regs[k+1]}")
        o.append(f"v_max_u32 v{m}, v{m}, v{regs[27]}")
        o.append(f"v_cmp_eq_u32 vcc, -1, v{m}")
        return o
    I(F2, maxchain())
    F2.append(("g", ["s_nop 3", "s_cmp_eq_u64 vcc, 0", "s_cbranch_scc0 K2_SLOW", "K2_BACK:"]))
    for k in range(1, 7):
        I(F2, quad_mac(prow[k], R2, prow[k-1]))
    I(F2, quad_mac(R0 + 12, R2 + 4, R0 + 8))
    H = [R0 + 12, R2 + 8]
    TT = R2 + 12
    for j in range(8):
        s_, d = H[j & 1], H[(j + 1) & 1]
        for b in (0, 1):
            F2.append(("i", f"v_fma_f32 v{d+2*b}, v{A1+2*b}, v{s_+2*b}, v{SRE(b)+j}"))
            F2.append(("i", f"v_fma_f32 v{d+2*b+1}, v{A1+2*b}, v{s_+2*b+1}, v{SIM(b)+j}"))
        for b in (0, 1):
            F2.append(("i", f"v_fma_f32 v{d+2*b}, -v{A1+2*b+1}, v{s_+2*b+1}, v{d+2*b}"))
            F2.append(("i", f"v_fma_f32 v{d+2*b+1}, v{A1+2*b+1}, v{s_+2*b}, v{d+2*b+1}"))
        for b in (0, 1):
            F2.append(("i", f"v_mul_f32 v{TT+2*b}, v{CF+2*b+1}, v{d+2*b+1}"))
            F2.append(("i", f"v_mul_f32 v{TT+2*b+1}, v{CF+2*b+1}, v{d+2*b}"))
        for b in (0, 1):
            F2.append(("i", f"v_fma_f32 v{SRE(b)+j}, v{CF+2*b}, v{d+2*b}, -v{TT+2*b}"))
            F2.append(("i", f"v_fma_f32 v{SIM(b)+j}, -v{CF+2*b}, v{d+2*b+1}, -v{TT+2*b+1}"))
    SEL = R1
    I(F2, [
        f"v_and_b32 v{R1+8}, 15, v0",
        f"v_lshrrev_b32 v{R1+9}, 2, v{R1+8}",
        f"v_lshrrev_b32 v{R1+10}, 4, v0",
        f"v_and_b32 v{R1+11}, 1, v0",
        f"v_lshlrev_b32 v{R1+11}, 4, v{R1+11}",
        f"v_mov_b32 v{R1+12}, 0x3f80",
        f"v_lshlrev_b32 v{R1+12}, v{R1+11}, v{R1+12}",
        f"v_cmp_eq_u32 vcc, v{R1+9}, v{R1+10}",
        f"v_mov_b32 v{SEL}, 0", f"v_mov_b32 v{SEL+1}, 0",
        f"v_cndmask_b32 v{R1+12}, 0, v{R1+12}, vcc",
        f"v_and_b32 v{R1+13}, 2, v0",
        f"v_cmp_eq_u32 vcc, 0, v{R1+13}",
        f"v_mov_b32 v{SEL+4}, 0", f"v_mov_b32 v{SEL+5}, 0",
        f"v_cndmask_b32 v{SEL+2}, 0, v{R1+12}, vcc",
        f"v_cndmask_b32 v{SEL+3}, v{R1+12}, 0, vcc",
    ])
    outs = [(SRE(0), 0), (SRE(1), 65536), (SIM(0), 4194304), (SIM(1), 4194304 + 65536)]
    for k, (X, off) in enumerate(outs):
        for q in range(4):
            F2.append(("i", f"v_cvt_pk_bf16_f32 v{X+q}, v{X+2*q}, v{X+2*q+1}"))
    for k, (X, off) in enumerate(outs):
        d1 = R1 + 8 + 4 * (k & 1)
        F2.append(("i", f"v_mfma_f32_16x16x32_bf16 {vr(X+4,4)}, {vr(X,4)}, {vr(SEL+2,4)}, 0"))
        F2.append(("i", f"v_mfma_f32_16x16x32_bf16 {vr(d1,4)}, {vr(X,4)}, {vr(SEL,4)}, 0"))
        if k >= 1:
            Xp, offp = outs[k-1]
            I(F2, pack_store(Xp, Xp + 4, R1 + 8 + 4 * ((k - 1) & 1), f"s_add_u32 s{S_T}, s{S_SS}, {offp}", flags))
        else:
            F2.append(("gapn", 3))
    F2.append(("gapn", 3))
    Xp, offp = outs[3]
    I(F2, pack_store(Xp, Xp + 4, R1 + 12, f"s_add_u32 s{S_T}, s{S_SS}, {offp}", flags))
    if NOEPI:
        F2 = [("label", "K2_BACK")]

    pairs = []
    def mm(d, A, B, first):
        return f"v_mfma_f32_16x16x32_bf16 {vr(d,4)}, {vr(A,4)}, {vr(B,4)}, {'0' if first else vr(d,4)}"
    def add_pair(n, kind, idx):
        s = n // 2; h = n & 1
        slot = (s % NSLOT) * SLOT
        first = (n % 32 == 0)
        if kind == "S":
            im, b = idx
            rd = [("ds_read_b128", (V_SA0, V_SA1)[h], slot, im * 4096 + b * 2048, 0, 4)]
            D = SIM(b) if im else SRE(b)
        elif kind == "W1":
            j, up = idx
            o = up * 6144 + h * 3072 + j * 32
            rd = [("ds_read_b64_tr_b16", V_GA, slot, o, 0, 2), ("ds_read_b64_tr_b16", V_GA, slot, o + 768, 2, 2)]
            D = PU(j) if up else PG(j)
        else:
            j, up = idx
            o = up * 8192 + h * 4096
            rd = [("ds_read_b64_tr_b16", GA2[j-3], slot, o, 0, 2), ("ds_read_b64_tr_b16", GA2[j-3], slot, o + 512, 2, 2)]
            D = PU(j) if up else PG(j)
        pairs.append(dict(n=n, stage=s, kind=kind, rd=rd, D=D, first=first, idx=idx))
    def add_S(n):
        for im in (0, 1):
            for b in (0, 1): add_pair(n, "S", (im, b))
    for n in range(32 - NT1):
        add_S(n)
        for j in range(3):
            for up in (0, 1): add_pair(n, "W1", (j, up))
    for n in range(32 - NT1, 32):
        for up in (0, 1): add_pair(n, "W1", (0, up))
    F2START = len(pairs) + (1 if NT1 else 0)
    for n in range(32 - NT1, 32): add_S(n)
    SDONE = len(pairs) + 1
    for j in (1, 2):
        for n in range(32 - NT1, 32):
            for up in (0, 1): add_pair(n, "W1", (j, up))
    if NT1 == 0: F2START = SDONE = len(pairs) + 1
    P1END = len(pairs)
    NTAIL = int(opts.get("ntail", 4))
    for n in range(32, 64 - NTAIL):
        for j in range(3, 7):
            for up in (0, 1): add_pair(n, "W2", (j, up))
    tail0 = len(pairs)
    for j in range(3, 7):
        for n in range(64 - NTAIL, 64):
            for up in (0, 1): add_pair(n, "W2", (j, up))
    NP = len(pairs)
    F3 = []
    if AL:
        I(F3, [f"s_and_b32 s{S_O96}, s{S_CG}, 3", f"s_lshl_b32 s{S_O96}, s{S_O96}, 16", f"s_add_u32 s{S_O96}, s{S_O96}, {18*32768}",
               f"s_add_u32 s{S_ST}, s{S_ST}, s{S_O96}"])
    for j in range(3, 6):
        F3.append(("at", tail0 + (j - 2) * 2 * NTAIL + 1))
        I(F3, glu(j, flags))

    base = {}
    state = dict(bar=-1, marks={}, nbar=0)
    hq = []
    pend = []
    def barrier_for(stage):
        while state["bar"] < stage:
            s = state["bar"] + 1
            st.need(*(dtags(s) + pend))
            pend.clear()
            st.ins("s_barrier")
            state["bar"] = s; state["nbar"] += 1
            if (s >= 2 or NPRO != 100) and s + 4 < 32:
                hq.extend(dma(s + 4))
    def read_ins(k):
        p = pairs[k]
        barrier_for(p["stage"])
        o = []
        for (op, areg, slot, off, ro, cnt) in p["rd"]:
            cur = base.get(areg, 0)
            rel = slot + off - cur
            if rel < 0 or rel > 65535 - 1024:
                delta = slot - cur
                o.append((f"v_add_u32 v{areg}, {delta & 0xffffffff}, v{areg}" if delta >= 0 else f"v_subrev_u32 v{areg}, {-delta}, v{areg}", None))
                base[areg] = slot
                rel = off
            if SKIP and k % SKIP == SKIP - 1: continue
            o.append((f"{op} {vr(wr(k)+ro,cnt)}, v{areg} offset:{rel}", ("W", k, ro)))
        return o
    SKIP = int(opts.get("skiprd", 0))
    def wtags(k): return [("W", k, r[4]) for r in pairs[k]["rd"]] if not (SKIP and k % SKIP == SKIP - 1) else []
    PROGAP = int(opts.get("progap", 2))
    fq = dict(q=F1, pos=0, credit=0.0, hold=0)
    def run_fillers(i, budget):
        used = 0
        if pro_rest and budget < 10**8:
            state["pg"] = state.get("pg", 0) + 1
            if state["pg"] >= PROGAP:
                state["pg"] = 0
                emit_group(pro_rest.pop(0)); used += 1
        while hq and not pro_rest and used < max(budget, 1) + 1:
            g = hq.pop(0); emit_group(g); used += 1
        q = fq["q"]
        while fq["pos"] < len(q) and used < budget:
            it = q[fq["pos"]]
            k = it[0]
            if k == "i": st.ins(it[1]); used += 1
            elif k == "t": st.ins(it[1], it[2]); used += 1
            elif k == "g": emit_group(it[1]); used += 2
            elif k == "need": st.need(*it[1])
            elif k == "mark": pend.append(it[1]); state["marks"][it[1]] = state["nbar"]
            elif k == "afterbar":
                if state["nbar"] <= state["marks"][it[1]]: return
            elif k == "at":
                if i < it[1]: return
            elif k == "atS":
                if i < SDONE: return
            elif k == "at1":
                if i < P1END + 1: return
            elif k == "gapn":
                if fq["hold"] < it[1]:
                    fq["hold"] += 1; return
                fq["hold"] = 0
            elif k == "label": a.label(it[1])
            elif k == "stamp": P.stamp(it[1])
            fq["pos"] += 1
    def flush_fillers():
        while hq or fq["pos"] < len(fq["q"]):
            before = (len(hq), fq["pos"], fq["hold"])
            run_fillers(10**9, 1000)
            if (len(hq), fq["pos"], fq["hold"]) == before:
                raise RuntimeError("filler stuck %r" % (fq["q"][fq["pos"]],))
            if fq["hold"]: st.ins("s_nop 3")
    for k in range(NWR - 1):
        for ins, tag in read_ins(k): st.ins(ins, tag)
    if not LP: P.stamp(3)
    acc_credit = 0.0
    last_use = {}
    for i, p in enumerate(pairs): last_use[p["n"]] = i
    xat = {}
    for m in range(NXR, 64): xat.setdefault(last_use[m - NXR + (1 if FOLD else 0)] + 1 if m + 1 < 64 or not FOLD else 0, []).append(m)
    for i in range(NP):
        p = pairs[i]
        if i == F2START:
            flush_fillers()
            fq.update(q=F2, pos=0, hold=0)
        if i == P1END and not LP:
            P.stamp(5)
        if i == 1 and LP:
            P.stamp(6)
        for q in range(NPF3):
            if PF3 >= 0 and i == PF3 + q * PF3D:
                hq.append([(f"buffer_load_dword v255, v254, s[60:63], s68 offen offset:{q * (64 // NPF3) * 128 if q * (64 // NPF3) * 128 < 4096 else 0}", ("PF", 3))] if q * (64 // NPF3) * 128 < 4096 else
                          [f"s_add_u32 s{S_T}, s68, {q * (64 // NPF3) * 128}", (f"buffer_load_dword v255, v254, s[60:63], s{S_T} offen", ("PF", 3))])
        if i == PF2A:
            hq.append([("buffer_load_dword v255, v253, s[64:67], s69 offen", ("PF", 1))])
        if i == PF2B:
            hq.append([f"s_add_u32 s69, s69, {512*7168}", ("buffer_load_dword v255, v253, s[64:67], s69 offen", ("PF", 2))])
        if i == P1END - 1:
            st.need(*[t for t in (("PF", 1), ("PF", 2), ("PF", 3)) if t in st.tags])
        if i == tail0:
            if fq["pos"] < len(fq["q"]): print("K2: %d scan fillers left at tail" % (len(fq["q"]) - fq["pos"]))
            flush_fillers()
            fq.update(q=F3, pos=0, hold=0)
        rate = 1.0 if i < F2START else (RATE2 if i < tail0 else RATE3)
        n = p["n"]
        tg = wtags(i) + [("X", n, 0), ("X", n, 1)]
        if i % 2 == 0 and i + 1 < NP:
            tg += wtags(i + 1)
        st.need(*tg)
        rd = read_ins(i + NWR - 1) if i + NWR - 1 < NP else []
        g1 = []; g2 = []
        seen = 0
        for x in rd:
            if x[1] is None: (g1 if seen == 0 else g2).append(x)
            else:
                (g1 if seen == 0 else g2).append(x); seen += 1
        W, D = wr(i), p["D"]
        for tb in (0, 1):
            X = xr(n, tb - 0)
            if p["kind"] == "S": st.ins(mm(D + 4 * tb, X, W, p["first"]))
            else: st.ins(mm(D + 4 * tb, W, X, p["first"]))
            for ins, tag in (g1 if tb == 0 else g2): st.ins(ins, tag)
            if tb == 0:
                for m in xat.get(i, []): hq.extend(xload(m))
            acc_credit += rate
            bud = int(acc_credit); acc_credit -= bud
            run_fillers(i, bud)
    a("s_nop 7"); st.n += 8
    if not LP: P.stamp(6)
    flush_fillers()
    for x in glu(6, flags): st.ins(x)
    print("K2: nops inserted", st.nops, "slots", st.n)
    P.stamp(7)
    if P.on:
        if not LP: a(f"s_mov_b32 s{P.regs[8]}, s{S_CNT}")
        a("s_waitcnt vmcnt(0)")
    P.stamp(9, real=True)
    P.flush(70, 71, 60, S_W, 40, 41)
    a("s_endpgm")
    a.label("K2_SLOW")
    a(f"s_mov_b32 s{S_CNT}, 0")
    a.label("K2_SLOWL")
    for x in poll_loads(False): a(x)
    a("s_waitcnt vmcnt(0)")
    for x in maxchain(): a(x)
    a(f"""
    s_add_u32 s{S_CNT}, s{S_CNT}, 1
    s_nop 3
    s_cmp_eq_u64 vcc, 0
    s_cbranch_scc1 K2_BACK
    s_cmp_lt_u32 s{S_CNT}, 100000
    s_cbranch_scc1 K2_SLOWL
    s_branch K2_BACK
    """)
    a.label("K2_END")
    a("s_endpgm")
    return 256
```

```python
from common import *
from stream import Stream

K2 = "ssm_gemm1_kernel"
SLOT = 21504
NSLOT = 6
SCR_W = NSLOT * SLOT
TABLE = SCR_W + 8 * 1792
K2_LDS = TABLE + 15 * 256

V_XO = 1
V_GA, V_SA0, V_SA1, V_D1 = 2, 3, 4, 5
Q0 = 2
GA2 = [6, 7, 8, 9]
V_D0, V_D2, V_ST, V_P16, V_SW, V_TB = 10, 11, 12, 13, 14, 15
LAM, TH, A1, CF, A8, A32 = 16, 18, 20, 24, 28, 32
V_D0B = 36
V_XO2 = 37
XR = 40
NXR = 6
WR = 88
NWR = 6
def SRE(b): return 112 + 8 * b
def SIM(b): return 128 + 8 * b
def PG(j): return 144 + 16 * j
def PU(j): return PG(j) + 8
T1 = 192
REV = [0]
def xr(n, tb): return XR + 8 * ((63 - n) % NXR if (REV[0] and n >= 32) else n % NXR) + 4 * tb
def wr(i): return WR + 4 * (i % NWR)

S_XN, S_G, S_U, S_D0, S_D1, S_D2, S_ACT, S_EXR, S_EXW, S_XB, S_P0, S_P1, S_P2 = range(8, 60, 4)
S_W, S_RB, S_CG, S_TW = 3, 4, 5, 6
S_X, S_O01, S_O2, S_M0, S_M1, S_M2, S_ST, S_SS, S_ER, S_EW, S_XBO, S_O96, S_CNT, S_T = range(76, 90)

L2E = "0x3fb8aa3b"
def f32(x):
    import struct
    return "0x%08x" % struct.unpack("<I", struct.pack("<f", x))[0]

def quad_mac(d, A, s):
    o = []
    for b in (0, 1):
        o.append(f"v_fma_f32 v{d+2*b}, v{A+2*b}, v{s+2*b}, v{d+2*b}")
        o.append(f"v_fma_f32 v{d+2*b+1}, v{A+2*b}, v{s+2*b+1}, v{d+2*b+1}")
    for b in (0, 1):
        o.append(f"v_fma_f32 v{d+2*b}, -v{A+2*b+1}, v{s+2*b+1}, v{d+2*b}")
        o.append(f"v_fma_f32 v{d+2*b+1}, v{A+2*b+1}, v{s+2*b}, v{d+2*b+1}")
    return o

def power(d, n, t):
    o = []
    for b in (0, 1):
        o.append(f"v_mul_f32 v{t+3*b}, {n}, v{LAM+b}")
        o.append(f"v_mul_f32 v{t+3*b+1}, {n}, v{TH+b}")
    for b in (0, 1):
        o.append(f"v_exp_f32 v{t+3*b}, v{t+3*b}")
        o.append(f"v_fract_f32 v{t+3*b+1}, v{t+3*b+1}")
    for b in (0, 1):
        o.append(f"v_cos_f32 v{t+3*b+2}, v{t+3*b+1}")
        o.append(f"v_sin_f32 v{t+3*b+1}, v{t+3*b+1}")
    for b in (0, 1):
        o.append(f"v_mul_f32 v{d+2*b}, v{t+3*b}, v{t+3*b+2}")
        o.append(f"v_mul_f32 v{d+2*b+1}, v{t+3*b}, v{t+3*b+1}")
    return o

def pack_store(O, d0, d1, soff_expr, flags):
    o = [f"v_cvt_pk_bf16_f32 v{O}, v{d0}, v{d0+1}",
         f"v_cvt_pk_bf16_f32 v{O+1}, v{d0+2}, v{d0+3}",
         f"v_cvt_pk_bf16_f32 v{O+2}, v{d1}, v{d1+1}",
         f"v_cvt_pk_bf16_f32 v{O+3}, v{d1+2}, v{d1+3}",
         soff_expr,
         f"v_permlane16_swap_b32 v{O}, v{O+2}",
         f"v_permlane16_swap_b32 v{O+1}, v{O+3}",
         f"buffer_store_dwordx4 {vr(O,4)}, v{V_ST}, s[{S_ACT}:{S_ACT+3}], s{S_T} offen {flags}".rstrip()]
    return o

def glu(j, flags):
    G = [PG(j) + r for r in range(8)]; U = [PU(j) + r for r in range(8)]
    o = []
    o += [f"v_mul_f32 v{g}, 0xbfb8aa3b, v{g}" for g in G]
    o += [f"v_exp_f32 v{g}, v{g}" for g in G]
    o += [f"v_add_f32 v{g}, 1.0, v{g}" for g in G]
    o += [f"v_rcp_f32 v{g}, v{g}" for g in G]
    o += [f"v_mul_f32 v{g}, v{g}, v{u}" for g, u in zip(G, U)]
    o += pack_store(PU(j), PG(j), PG(j) + 4, f"s_add_u32 s{S_T}, s{S_ST}, {j*65536}", flags)
    return o

def ln_code(a, opts, P, wdma, nw):
    B = 40
    def v(i): return f"v{B+i}"
    X = S_P0; DBG = S_P1
    WPOS = opts.get("lnw", "a")
    LP = int(opts.get("lnprof", 0))
    a(f"""
    s_mov_b32 s{X+2}, 0x400000
    s_mov_b32 s{X+3}, 0x00020000
    s_mov_b32 s{S_XB}, s{DBG}
    s_mov_b32 s{S_XB+1}, s{DBG+1}
    s_mov_b32 s{S_XB+2}, 256
    s_mov_b32 s{S_XB+3}, 0x00020000
    v_and_b32 {v(3)}, 7, v0                 ; r
    v_lshrrev_b32 {v(4)}, 3, v0             ; part
    s_lshl_b32 s7, s{S_W}, 5
    v_add_u32 {v(5)}, s7, {v(4)}
    s_lshr_b32 s7, s2, 2
    s_lshl_b32 s7, s7, 5
    s_and_b32 s{S_T}, s2, 1
    s_lshl_b32 s{S_T}, s{S_T}, 4
    s_add_u32 s7, s7, s{S_T}
    s_and_b32 s{S_T}, s2, 2
    s_lshl_b32 s{S_T}, s{S_T}, 1
    s_add_u32 s7, s7, s{S_T}
    v_lshrrev_b32 {v(7)}, 2, {v(3)}
    v_and_b32 {v(8)}, 3, {v(3)}
    v_lshl_add_u32 {v(7)}, {v(7)}, 3, {v(8)}
    v_add_u32 {v(7)}, s7, {v(7)}            ; row
    v_lshlrev_b32 {v(7)}, 11, {v(7)}
    v_lshl_add_u32 {v(7)}, {v(5)}, 4, {v(7)}
    """)
    for j in range(4):
        a(f"buffer_load_dwordx4 {vr(B+16+4*j,4)}, {v(7)}, s[{X}:{X+3}], 0 offen offset:{128*j}")
    pend = 0
    if WPOS == "a":
        wdma(); pend = nw
    a(f"""
    s_lshl_b32 s7, s2, 3
    v_add_u32 {v(6)}, s7, {v(3)}            ; store position
    v_lshlrev_b32 {v(8)}, 15, {v(5)}
    v_lshl_add_u32 {v(8)}, {v(6)}, 4, {v(8)}        ; store offset (kc*32768 + pos*16)
    v_mul_u32_u24 {v(9)}, 144, {v(3)}
    v_add_u32 {v(9)}, {SCR_W}, {v(9)}
    s_lshl_b32 s7, s{S_W}, 3
    v_add_u32 {v(10)}, s7, {v(4)}
    v_lshl_add_u32 {v(10)}, {v(10)}, 2, {v(9)}
    s_waitcnt vmcnt({pend})
    """)
    if LP: P.stamp(2)
    for d in range(16):
        a(f"v_lshlrev_b32 {v(32+2*d)}, 16, {v(16+d)}")
        a(f"v_and_b32 {v(33+2*d)}, 0xffff0000, {v(16+d)}")
    for q in range(4):
        a(f"v_add_f32 {v(64+q)}, {v(32+q)}, {v(36+q)}")
    for d in range(8, 32, 4):
        for q in range(4):
            a(f"v_add_f32 {v(64+q)}, {v(64+q)}, {v(32+d+q)}")
    a(f"v_add_f32 {v(64)}, {v(64)}, {v(65)}")
    a(f"v_add_f32 {v(66)}, {v(66)}, {v(67)}")
    a(f"v_add_f32 {v(64)}, {v(64)}, {v(66)}")
    a(f"ds_write_b32 {v(10)}, {v(64)}")
    a("s_waitcnt lgkmcnt(0)")
    a("s_barrier")
    def reduce32(off, dst):
        for q in range(8):
            a(f"ds_read_b128 {vr(B+68+4*q,4)}, {v(9)} offset:{off+16*q}")
        a("s_waitcnt lgkmcnt(0)")
        for n in (16, 8, 4, 2, 1):
            for q in range(n):
                a(f"v_add_f32 {v(68+q)}, {v(68+q)}, {v(68+n+q)}")
        a(f"v_mul_f32 {v(dst)}, 0x3a800000, {v(68)}")
    reduce32(0, 100)
    for d in range(32):
        a(f"v_sub_f32 {v(68+d)}, {v(32+d)}, {v(100)}")
    for q in range(4):
        a(f"v_mul_f32 {v(64+q)}, {v(68+q)}, {v(68+q)}")
    for d in range(4, 32, 4):
        for q in range(4):
            a(f"v_fmac_f32 {v(64+q)}, {v(68+d+q)}, {v(68+d+q)}")
    a(f"v_add_f32 {v(64)}, {v(64)}, {v(65)}")
    a(f"v_add_f32 {v(66)}, {v(66)}, {v(67)}")
    a(f"v_add_f32 {v(64)}, {v(64)}, {v(66)}")
    a(f"ds_write_b32 {v(10)}, {v(64)} offset:1152")
    a("s_waitcnt lgkmcnt(0)")
    a("s_barrier")
    reduce32(1152, 101)
    a(f"""
    v_cvt_pk_bf16_f32 {v(102)}, {v(100)}, {v(101)}
    v_lshlrev_b32 {v(100)}, 16, {v(102)}
    v_and_b32 {v(101)}, 0xffff0000, {v(102)}
    v_add_f32 {v(101)}, 0x3727c5ac, {v(101)}
    v_cvt_pk_bf16_f32 {v(101)}, {v(101)}, {v(101)}
    v_and_b32 {v(101)}, 0xffff0000, {v(101)}
    v_sqrt_f32 {v(101)}, {v(101)}
    s_nop 0
    v_cvt_pk_bf16_f32 {v(101)}, {v(101)}, {v(101)}
    v_and_b32 {v(101)}, 0xffff0000, {v(101)}
    v_rcp_f32 {v(101)}, {v(101)}
    s_nop 0
    """)
    for d in range(16):
        x0, x1 = v(32 + 2*d), v(33 + 2*d)
        a(f"v_sub_f32 {x0}, {x0}, {v(100)}")
        a(f"v_sub_f32 {x1}, {x1}, {v(100)}")
        a(f"v_cvt_pk_bf16_f32 {x0}, {x0}, {x1}")
        a(f"v_and_b32 {x1}, 0xffff0000, {x0}")
        a(f"v_lshlrev_b32 {x0}, 16, {x0}")
        a(f"v_mul_f32 {x0}, {x0}, {v(101)}")
        a(f"v_mul_f32 {x1}, {x1}, {v(101)}")
        a(f"v_cvt_pk_bf16_f32 {v(16+d)}, {x0}, {x1}")
    for j in range(4):
        a(f"s_mov_b32 s7, {8*32768*j}")
        a(f"buffer_store_dwordx4 {vr(B+16+4*j,4)}, {v(8)}, s[{S_XN}:{S_XN+3}], s7 offen sc1")
    a(f"""
    s_cmp_eq_u32 s{S_W}, 0
    s_cbranch_scc0 K2_NOCLR
    s_mov_b32 exec_hi, 0
    s_lshl_b32 s{S_T}, s2, 9
    s_and_b32 s7, s2, 7
    s_lshl_b32 s7, s7, 1
    v_lshrrev_b32 {v(12)}, 4, v0
    v_add_u32 {v(12)}, s7, {v(12)}          ; row
    v_cmp_lt_u32 vcc, 6, {v(12)}
    v_lshlrev_b32 {v(11)}, 4, v0
    s_nop 1
    v_cndmask_b32 {v(12)}, 0, -1, vcc
    v_cndmask_b32 {v(13)}, 0, -1, vcc
    v_cndmask_b32 {v(14)}, 0, -1, vcc
    v_cndmask_b32 {v(15)}, 0, -1, vcc
    buffer_store_dwordx4 {vr(B+12,4)}, {v(11)}, s[{S_EXR}:{S_EXR+3}], s{S_T} offen sc1
    s_mov_b64 exec, -1
    K2_NOCLR:
    s_waitcnt vmcnt(0)
    """)
    if LP: P.stamp(3)
    a(f"""
    s_barrier
    s_cmp_eq_u32 s{S_W}, 0
    s_cbranch_scc0 K2_NOFLAG
    s_mov_b64 exec, 1
    v_mov_b32 {v(11)}, s2
    v_mov_b32 {v(12)}, 1
    buffer_store_byte {v(12)}, {v(11)}, s[{S_XB}:{S_XB+3}], 0 offen sc1
    s_mov_b64 exec, -1
    K2_NOFLAG:
    """)
    if WPOS == "b":
        wdma()

def gen_k2(a, store_flags="", prof=False, opts=None):
    opts = opts or {}
    flags = store_flags.replace("+", " ")
    RATE2 = float(opts.get("rate2", 1.5))
    RATE3 = float(opts.get("rate3", 3))
    NOEPI = int(opts.get("noepi", 0))
    POLLFIRST = int(opts.get("pollfirst", 1))
    NT1 = int(opts.get("nt1", 2))
    REV[0] = int(opts.get("rev", 0))
    kernel_begin(a, K2)
    P = Prof(a, prof, 1, list(range(90, 100)), 100)
    a("""
    s_cmp_ge_u32 s2, 256
    s_cbranch_scc1 K2_END
    """)
    P.stamp(0, real=True)
    P.stamp(1)
    a(f"""
    s_load_dwordx4 s[72:75], s[0:1], 80     ; w_gate, w_up
    s_load_dwordx2 s[70:71], s[0:1], 120    ; ws
    s_load_dwordx4 s[64:67], s[0:1], 24
    s_load_dwordx4 s[60:63], s[0:1], 8
    s_load_dwordx2 s[68:69], s[0:1], 56     ; log_dt
    s_load_dwordx2 s[82:83], s[0:1], 96     ; w_down
    s_load_dwordx4 s[84:87], s[0:1], 40
    """)
    LN = int(opts.get("ln", 0)); LP = int(opts.get("lnprof", 0))
    if int(opts.get("fold", 0)):
        a("s_load_dwordx2 s[56:57], s[0:1], 0       ; x")
    if LN:
        a(f"""
        s_load_dwordx2 s[{S_P0}:{S_P0+1}], s[0:1], 0       ; x
        s_load_dwordx2 s[{S_P1}:{S_P1+1}], s[0:1], 112     ; hand-off bytes (zero at launch)
        """)
    a(f"""
    v_lshrrev_b32 v240, 6, v0
    v_and_b32 v0, 63, v0                    ; lane
    v_readfirstlane_b32 s{S_W}, v240         ; wave
    s_and_b32 s7, s2, 7                     ; xcd
    s_lshr_b32 s{S_CG}, s2, 3
    s_and_b32 s{S_RB}, s{S_CG}, 7
    s_lshr_b32 s{S_CG}, s{S_CG}, 3
    s_lshl_b32 s7, s7, 2
    s_add_u32 s{S_CG}, s{S_CG}, s7
    s_lshl_b32 s{S_TW}, s{S_RB}, 12         ; 256*rb*16
    s_lshl_b32 s7, s{S_W}, 9                ; 32*w*16
    s_add_u32 s{S_TW}, s{S_TW}, s7          ; tw*16
    s_mov_b32 s{S_X}, s{S_TW}
    """)
    AL = int(opts.get("al", 0))
    if AL:
        a(f"""
        s_lshr_b32 s7, s{S_CG}, 2
        s_mul_i32 s7, s7, 896
        s_and_b32 s{S_O01}, s{S_CG}, 3
        s_mul_i32 s{S_O01}, s{S_O01}, 96
        s_add_u32 s{S_O01}, s{S_O01}, s7
        """)
    else:
        a(f"s_mul_i32 s{S_O01}, s{S_CG}, 224")
    a(f"""
    s_lshl_b32 s{S_O2}, s{S_CG}, 16
    s_lshl_b32 s{S_M0}, s{S_W}, 10
    s_add_u32 s{S_M1}, s{S_M0}, 8192
    s_add_u32 s{S_M2}, s{S_M0}, 12288
    s_cmp_lt_u32 s{S_W}, 4
    s_cselect_b32 s{S_M1}, s{S_M1}, 20480
    ; ---- DMA lane offsets.  GLU type: q = 64 i' + lane, rho = q / 6, ch = q % 6, k = swap23(rho)
    s_sub_u32 s7, s{S_W}, 6
    s_cmp_lt_u32 s{S_W}, 6
    s_cselect_b32 s7, s{S_W}, s7
    s_lshl_b32 s7, s7, 6                    ; 64 i' (u=0)
    s_lshl_b32 s{S_T}, s{S_W}, 6
    s_add_u32 s{S_T}, s{S_T}, 128           ; 64 i' (u=1)
    v_add_u32 v241, s7, v0
    v_add_u32 v242, s{S_T}, v0
    """)
    for (q, d) in ((241, V_D0), (242, V_D1)):
        a(f"""
        v_mul_u32_u24 v243, 10923, v{q}
        v_lshrrev_b32 v243, 16, v243              ; rho
        v_mul_u32_u24 v244, 6, v243
        v_sub_u32 v244, v{q}, v244                ; ch
        v_and_b32 v245, 0x33, v243
        v_and_b32 v246, 4, v243
        v_lshl_or_b32 v245, v246, 1, v245
        v_and_b32 v246, 8, v243
        v_lshrrev_b32 v246, 1, v246
        v_or_b32 v245, v245, v246                  ; k
        v_mul_u32_u24 v245, 7168, v245
        v_lshl_add_u32 v{d}, v244, 4, v245
        """)
    a(f"""
    s_and_b32 s7, s{S_W}, 3
    s_lshl_b32 s7, s7, 3
    v_lshrrev_b32 v243, 3, v0
    v_add_u32 v243, s7, v243                  ; row
    v_lshrrev_b32 v244, 1, v243
    v_xor_b32 v244, v244, v0
    v_and_b32 v244, 7, v244
    v_lshlrev_b32 v244, 4, v244
    v_lshl_add_u32 v{V_D2}, v243, 11, v244
    ; X: (l>>4)*32768 + (l&15)*16
    v_lshrrev_b32 v243, 4, v0                ; g
    v_and_b32 v244, 15, v0                   ; n
    v_lshlrev_b32 v245, 4, v244
    v_lshl_add_u32 v{V_XO}, v243, 15, v245
    s_waitcnt lgkmcnt(0)
    """)
    FOLD = int(opts.get("fold", 0))
    if FOLD:
        a(f"""
        v_lshrrev_b32 v245, 2, v244
        v_and_b32 v246, 3, v244
        v_lshl_add_u32 v245, v245, 3, v246
        v_lshlrev_b32 v245, 11, v245
        v_lshl_add_u32 v{V_XO}, v243, 4, v245
        v_add_u32 v{V_XO2}, 8192, v{V_XO}
        s_lshl_b32 s{S_TW}, s{S_TW}, 7
        s_mov_b32 s{S_X}, s{S_TW}
        """)
        srd(a, S_XN, 56, 57, 0x400000)
    else:
        srd(a, S_XN, 70, 71, XN_SZ, XN_OFF)
    a(f"""
    s_cmp_lt_u32 s{S_W}, 6
    s_cselect_b32 s{S_D0}, s72, s74
    s_cselect_b32 s{S_D0+1}, s73, s75
    s_mov_b32 s{S_D0+2}, 0x700000
    s_mov_b32 s{S_D0+3}, 0x00020000
    s_cmp_lt_u32 s{S_W}, 4
    s_mov_b32 s{S_D1}, s74
    s_mov_b32 s{S_D1+1}, s75
    s_cselect_b32 s{S_D1+2}, 0x700000, 0
    s_mov_b32 s{S_D1+3}, 0x00020000
    s_cselect_b32 s{S_D2}, s64, s66
    s_cselect_b32 s{S_D2+1}, s65, s67
    s_mov_b32 s{S_D2+2}, 0x200000
    s_mov_b32 s{S_D2+3}, 0x00020000
    """)
    a(f"s_mov_b32 s{S_CNT}, 0")
    st = Stream(a)
    def dma(s):
        slot = (s % NSLOT) * SLOT
        g = []
        if s < 16:
            g.append([f"s_add_u32 m0, s{S_M0}, {slot}", "s_nop 0", (f"buffer_load_dwordx4 v{V_D0}, s[{S_D0}:{S_D0+3}], s{S_O01} offen lds", ("D", s, 0))])
            g.append([f"s_add_u32 m0, s{S_M1}, {slot}", "s_nop 0", (f"buffer_load_dwordx4 v{V_D1}, s[{S_D1}:{S_D1+3}], s{S_O01} offen lds", ("D", s, 1)),
                      f"s_add_u32 s{S_O01}, s{S_O01}, 458752"])
            g.append([f"s_add_u32 m0, s{S_M2}, {slot}", "s_nop 0", (f"buffer_load_dwordx4 v{V_D2}, s[{S_D2}:{S_D2+3}], s{S_O2} offen lds", ("D", s, 2)),
                      f"s_add_u32 s{S_O2}, s{S_O2}, 128"])
        else:
            pre = [f"s_mov_b32 s{S_O01}, s{S_O96}"] if s == 16 else []
            if REV[0]:
                pre = [f"s_add_u32 s{S_O01}, s{S_O96}, {15*458752}"] if s == 16 else []
            g.append(pre + [f"s_add_u32 m0, s{S_M0}, {slot}", "s_nop 0", (f"buffer_load_dwordx4 v{V_D0B}, s[{S_G}:{S_G+3}], s{S_O01} offen lds", ("D", s, 0))])
            g.append([f"s_add_u32 m0, s{S_M0}, {slot+8192}", "s_nop 0", (f"buffer_load_dwordx4 v{V_D0B}, s[{S_U}:{S_U+3}], s{S_O01} offen lds", ("D", s, 1)),
                      f"s_{'sub' if REV[0] else 'add'}_u32 s{S_O01}, s{S_O01}, 458752"])
        if int(opts.get("dfix", 0)):
            g = [[x for x in grp if not (isinstance(x, str) and (x.startswith(f"s_add_u32 s{S_O01},") or x.startswith(f"s_add_u32 s{S_O2},")))] for grp in g]
        return g
    def dtags(s): return [("D", s, u) for u in range(3 if s < 16 else 2)]
    def xload(n):
        if FOLD:
            if n & 1: return []
            g = []
            for (va, tb) in ((V_XO, 0), (V_XO2, 1)):
                for h in (0, 1):
                    g.append((f"buffer_load_dwordx4 {vr(xr(n+h,tb),4)}, v{va}, s[{S_XN}:{S_XN+3}], s{S_X} offen offset:{64*h}", ("X", n+h, tb)))
            if n == 30: g.append(f"s_mov_b32 s{S_X}, s{S_TW}")
            else: g.append(f"s_add_u32 s{S_X}, s{S_X}, 128")
            if int(opts.get("xsplit", 0)): return [g[:2], g[2:]]
            return [g]
        g = [(f"buffer_load_dwordx4 {vr(xr(n,0),4)}, v{V_XO}, s[{S_XN}:{S_XN+3}], s{S_X} offen", ("X", n, 0)),
             (f"buffer_load_dwordx4 {vr(xr(n,1),4)}, v{V_XO}, s[{S_XN}:{S_XN+3}], s{S_X} offen offset:256", ("X", n, 1))]
        if REV[0] and 32 <= n < 38: return []
        if REV[0] and n == 31: g.append(f"s_add_u32 s{S_X}, s{S_TW}, {25*131072}")
        elif REV[0] and n >= 38: g.append(f"s_sub_u32 s{S_X}, s{S_X}, 131072")
        elif n == 31: g.append(f"s_mov_b32 s{S_X}, s{S_TW}")
        elif not int(opts.get("xfix", 0)): g.append(f"s_add_u32 s{S_X}, s{S_X}, 131072")
        return [g]
    def emit_group(g):
        for x in g:
            if isinstance(x, tuple): st.ins(x[0], x[1])
            elif x.endswith(":"): a.label(x[:-1])
            else: st.ins(x)
    DLA = int(opts.get("dla", 4))
    NPRO = int(opts.get("npro", 100))
    def raw_group(g):
        for x in g: a(x[0] if isinstance(x, tuple) else x)
    def param_srds():
        srd(a, S_P0, 60, 61, 2048)
        srd(a, S_P1, 62, 63, 2048)
        srd(a, S_P2, 68, 69, 2048)
    PL = T1
    def param_loads(tracked):
        a(f"""
        v_and_b32 v250, 15, v0
        v_lshlrev_b32 v250, 1, v250
        s_lshl_b32 s7, s{S_CG}, 6
        """)
        for i, sp in enumerate((S_P0, S_P1, S_P2)):
            for b in (0, 1):
                x = f"buffer_load_ushort v{PL+2*i+b}, v250, s[{sp}:{sp+3}], s7 offen offset:{32*b}"
                if tracked: st.ins(x, ("PL", i, b))
                else: a(x)
    if LN:
        NPRO = 100
        wgroups = dma(0) + dma(1) + dma(2) + dma(3) + dma(4) + dma(5)
        srd(a, S_G, 72, 73, 0x700000)
        srd(a, S_U, 74, 75, 0x700000)
        srd(a, S_EXR, 70, 71, EX_SZ, EX_OFF)
        a(f"""
        s_cmp_lt_u32 s{S_W}, 4
        s_cbranch_scc0 K2_PFW
        """)
        ln_code(a, opts, P, (lambda: [raw_group(g) for g in wgroups]), 18)
        param_srds()
        param_loads(False)
        a("s_branch K2_JOIN")
        a.label("K2_PFW")
        for g in wgroups: emit_group(g)
        param_srds()
        param_loads(True)
        PF = opts.get("pf", "bgu")
        a(f"""
        s_sub_u32 s7, s{S_W}, 4
        s_lshl_b32 s7, s7, 6
        s_lshl_b32 s{S_T}, s2, 8
        s_add_u32 s{S_T}, s{S_T}, s7
        v_add_u32 v41, s{S_T}, v0
        v_lshlrev_b32 v41, 7, v41               ; (wg*256 + t) * 128
        s_lshr_b32 s{S_T}, s2, 1
        s_lshl_b32 s{S_T}, s{S_T}, 8
        s_add_u32 s{S_T}, s{S_T}, s7
        v_add_u32 v42, s{S_T}, v0
        v_lshlrev_b32 v42, 7, v42               ; ((wg>>1)*256 + t) * 128
        s_and_b32 s7, s2, 1
        s_cmp_eq_u32 s7, 0
        s_cselect_b32 s{S_ACT}, s64, s66
        s_cselect_b32 s{S_ACT+1}, s65, s67
        s_mov_b32 s{S_ACT+2}, 0x200000
        s_mov_b32 s{S_ACT+3}, 0x00020000
        """)
        for c in PF:
            if c == "b": a(f"buffer_load_dword v43, v42, s[{S_ACT}:{S_ACT+3}], 0 offen")
            if c == "g": a(f"buffer_load_dword v44, v41, s[{S_G}:{S_G+3}], 0 offen")
            if c == "u": a(f"buffer_load_dword v45, v41, s[{S_U}:{S_U+3}], 0 offen")
        for _ in range(3): a("s_barrier")
        a.label("K2_JOIN")
        P.stamp(4 if LP else 2)
        a(f"""
        s_cmp_eq_u32 s{S_W}, 0
        s_cbranch_scc0 K2_GO
        """)
        a(f"""
        s_mov_b32 s{S_CNT}, 0
        v_lshlrev_b32 v41, 2, v0
        K2_POLL:
        buffer_load_dword v42, v41, s[{S_XB}:{S_XB+3}], 0 offen sc1
        s_add_u32 s{S_CNT}, s{S_CNT}, 1
        s_waitcnt vmcnt(0)
        v_cmp_ne_u32 vcc, 0x01010101, v42
        s_nop 1
        s_cmp_eq_u64 vcc, 0
        s_cbranch_scc1 K2_GO
        s_cmp_lt_u32 s{S_CNT}, 100000
        s_cbranch_scc1 K2_POLL
        K2_GO:
        s_barrier
        """)
        if LP: P.stamp(5)
        if LP: a(f"s_mov_b32 s{P.regs[8]}, s{S_CNT}")
        for n in range(6):
            for g in xload(n): emit_group(g)
        pro_rest = []
    else:
        order = dma(0) + xload(0) + xload(1) + dma(1) + xload(2) + xload(3) + dma(2) + xload(4) + xload(5) + dma(3)
        if NPRO == 100:
            order += dma(4) + dma(5)
        pro_rest = order[NPRO:]
        for grp in order[:NPRO]: emit_group(grp)
        P.stamp(2)
        if FOLD:
            PF = opts.get("pf", "xbgu")
            srd(a, S_G, 72, 73, 0x700000)
            srd(a, S_U, 74, 75, 0x700000)
            a(f"""
            s_and_b32 s7, s{S_W}, 3
            s_lshl_b32 s7, s7, 6
            s_lshl_b32 s{S_T}, s2, 8
            s_add_u32 s{S_T}, s{S_T}, s7
            v_add_u32 v241, s{S_T}, v0
            v_lshlrev_b32 v241, 7, v241               ; (wg*256 + t) * 128
            s_lshr_b32 s{S_T}, s2, 1
            s_lshl_b32 s{S_T}, s{S_T}, 8
            s_add_u32 s{S_T}, s{S_T}, s7
            v_add_u32 v242, s{S_T}, v0
            v_lshlrev_b32 v242, 7, v242               ; ((wg>>1)*256 + t) * 128
            s_and_b32 s7, s2, 1
            s_cmp_eq_u32 s7, 0
            s_cselect_b32 s{S_ACT}, s64, s66
            s_cselect_b32 s{S_ACT+1}, s65, s67
            s_mov_b32 s{S_ACT+2}, 0x200000
            s_mov_b32 s{S_ACT+3}, 0x00020000
            ; waves 0..3: first = x (waves 0, 1; 16 KB per workgroup), second = w_gate ; waves 4..7: first = B, second = w_up
            s_lshl_b32 s7, s2, 14
            s_lshl_b32 s{S_T}, s{S_W}, 13
            s_add_u32 s7, s7, s{S_T}
            v_lshlrev_b32 v240, 7, v0
            v_add_u32 v240, s7, v240
            s_cmp_lt_u32 s{S_W}, 2
            s_cselect_b32 s7, 0x400000, 0
            s_cmp_lt_u32 s{S_W}, 4
            s_cselect_b32 s{S_EXW}, s{S_XN}, s{S_ACT}
            s_cselect_b32 s{S_EXW+1}, s{S_XN+1}, s{S_ACT+1}
            s_cselect_b32 s{S_EXW+2}, s7, s{S_ACT+2}
            s_mov_b32 s{S_EXW+3}, 0x00020000
            s_cselect_b32 s{S_XB}, s72, s74
            s_cselect_b32 s{S_XB+1}, s73, s75
            s_mov_b32 s{S_XB+2}, 0x700000
            s_mov_b32 s{S_XB+3}, 0x00020000
            s_cselect_b64 vcc, -1, 0
            v_cndmask_b32 v240, v242, v240, vcc
            """)
            if "x" in PF: st.ins(f"buffer_load_dword v255, v240, s[{S_EXW}:{S_EXW+3}], 0 offen", ("PF", 8))
            if "g" in PF: st.ins(f"buffer_load_dword v255, v241, s[{S_XB}:{S_XB+3}], 0 offen", ("PF", 9))
    if not LN:
        srd(a, S_G, 72, 73, 0x700000)
        srd(a, S_U, 74, 75, 0x700000)
        srd(a, S_EXR, 70, 71, EX_SZ, EX_OFF)
    srd(a, S_ACT, 70, 71, ACT_SZ, ACT_OFF)
    srd(a, S_EXW, 70, 71, EX_SZ, EX_OFF)
    a(f"""
    s_cmp_eq_u32 s{S_W}, 7
    s_cselect_b32 s{S_EXW+2}, 0x{EX_SZ:x}, 0
    """)
    srd(a, S_XB, 70, 71, XB_SZ, XB_OFF)
    if not LN: param_srds()
    PF3 = int(opts.get("pf3", -1)); NPF3 = int(opts.get("npf3", 1)); PF3D = int(opts.get("pf3d", 50))
    PF2A = int(opts.get("pf2a", -1)); PF2B = int(opts.get("pf2b", -1)); PFR = int(opts.get("pf1rows", 256))
    O96 = f"""s_mul_i32 s{S_O96}, s{S_CG}, 224
    s_add_u32 s{S_O96}, s{S_O96}, 96"""
    if AL:
        O96 = f"""s_lshr_b32 s7, s{S_CG}, 2
        s_mul_i32 s7, s7, 896
        s_and_b32 s{S_O96}, s{S_CG}, 3
        s_lshl_b32 s{S_O96}, s{S_O96}, 7
        s_add_u32 s{S_O96}, s{S_O96}, s7
        s_add_u32 s{S_O96}, s{S_O96}, 384"""
    a(f"""
    s_lshl_b32 s7, s2, 2
    s_add_u32 s7, s7, s{S_W}
    s_mov_b32 s62, 0x700000
    s_cmp_lt_u32 s{S_W}, 4
    s_cselect_b32 s60, s82, s84
    s_cselect_b32 s61, s83, s85
    s_cselect_b32 s62, s62, 0x200000
    s_cselect_b32 s68, s7, s2
    s_lshl_b32 s68, s68, 13
    s_cmp_eq_u32 s{S_W}, 5
    s_cselect_b32 s60, s86, s60
    s_cselect_b32 s61, s87, s61
    s_cmp_lt_u32 s{S_W}, 6
    s_cselect_b32 s62, s62, 0
    s_mov_b32 s63, 0x00020000
    {O96}
    v_and_b32 v254, {64 // NPF3 - 1}, v0
    v_lshlrev_b32 v254, 7, v254
    ; warm-up of this launch's later weight rows: 4 rows x 14 lines of w_gate (even waves) / w_up (odd waves)
    s_and_b32 s7, s{S_W}, 1
    s_cmp_eq_u32 s7, 0
    s_cselect_b32 s64, s72, s74
    s_cselect_b32 s65, s73, s75
    s_mov_b32 s66, 0x700000
    s_mov_b32 s67, 0x00020000
    s_lshr_b32 s7, s2, 3
    s_lshl_b32 s7, s7, 2
    s_lshr_b32 s69, s{S_W}, 1
    s_add_u32 s69, s69, s7
    s_lshl_b32 s69, s69, 2
    s_add_u32 s69, s69, {PFR}
    s_mul_i32 s69, s69, 7168
    s_and_b32 s7, s2, 7
    s_mul_i32 s7, s7, 1792
    s_add_u32 s69, s69, s7
    v_and_b32 v253, 15, v0
    v_min_u32 v253, 13, v253
    v_lshlrev_b32 v253, 7, v253
    v_lshrrev_b32 v252, 4, v0
    v_mul_u32_u24 v252, 7168, v252
    v_add_u32 v253, v253, v252
    """)
    a(f"""
    v_lshrrev_b32 v246, 2, v0
    v_and_b32 v246, 3, v246                   ; r
    v_and_b32 v247, 3, v0                    ; c
    v_and_b32 v248, 1, v243
    v_lshl_add_u32 v248, v248, 2, v246
    v_lshrrev_b32 v249, 1, v243
    v_lshl_add_u32 v248, v249, 4, v248
    v_mul_u32_u24 v248, 96, v248
    v_lshl_add_u32 v{V_GA}, v247, 3, v248
    ; S address: 12288 + n*128 + ((g ^ (n>>1))*16)
    v_lshrrev_b32 v248, 1, v244
    v_xor_b32 v248, v248, v243
    v_lshlrev_b32 v248, 4, v248
    v_lshl_add_u32 v248, v244, 7, v248
    v_add_u32 v{V_SA0}, 12288, v248
    v_xor_b32 v{V_SA1}, 64, v{V_SA0}
    """)
    if not LN: param_loads(True)
    F1 = []
    def I(q, lst):
        for x in lst: q.append(("i", x))
    t = T1 + 8
    I(F1, [
        f"v_lshrrev_b32 v{t}, 4, v0",
        f"v_lshrrev_b32 v{t+1}, 2, v0",
        f"v_and_b32 v{t+1}, 3, v{t+1}",
        f"v_and_b32 v{t+2}, 3, v0",
        f"v_lshl_add_u32 v{t+3}, v{t}, 3, v{t+1}",
        f"v_lshlrev_b32 v{t+3}, 7, v{t+3}",
        f"v_lshl_add_u32 v{t+3}, v{t+2}, 3, v{t+3}",
        f"v_lshrrev_b32 v{t+4}, 1, v{t+1}",
        f"v_and_b32 v{t+5}, 1, v{t}",
        f"v_lshl_or_b32 v{t+4}, v{t+5}, 1, v{t+4}",
    ])
    for w in range(4):
        I(F1, [f"v_xor_b32 v{t+5}, {w}, v{t+4}", f"v_lshl_add_u32 v{GA2[w]}, v{t+5}, 5, v{t+3}"])
    I(F1, [
        f"s_lshl_b32 s7, s{S_W}, 3",
        f"v_lshrrev_b32 v{t+6}, 3, v0",
        f"v_add_u32 v{t+6}, s7, v{t+6}",
        f"v_mul_u32_u24 v{t+6}, 7168, v{t+6}",
        f"s_and_b32 s7, s{S_W}, 1",
        f"s_lshl_b32 s7, s7, 1",
        f"v_and_b32 v{t+7}, 1, v{t}",
        f"v_or_b32 v{t+7}, s7, v{t+7}",
        f"v_lshrrev_b32 v{t+8}, 1, v0",
        f"v_and_b32 v{t+8}, 3, v{t+8}",
        f"v_xor_b32 v{t+7}, v{t+7}, v{t+8}",
        f"v_lshl_add_u32 v{t+6}, v{t+7}, 5, v{t+6}",
        f"v_and_b32 v{t+8}, 1, v0",
        f"v_lshl_add_u32 v{V_D0B}, v{t+8}, 4, v{t+6}",
        f"v_and_b32 v{t+2}, 15, v0",
        f"v_lshrrev_b32 v{t+6}, 2, v{t+2}",
        f"v_lshlrev_b32 v{t+6}, 3, v{t+6}",
        f"v_lshl_add_u32 v{t+6}, v{t+5-5+0}, 0, v{t+6}" if False else f"v_and_b32 v{t+7}, 1, v{t}",
        f"v_lshl_add_u32 v{t+6}, v{t+7}, 2, v{t+6}",
        f"v_and_b32 v{t+7}, 3, v{t+2}",
        f"v_add_u32 v{t+6}, v{t+6}, v{t+7}",
        f"v_lshlrev_b32 v{t+6}, 4, v{t+6}",
        f"v_lshrrev_b32 v{t+7}, 1, v{t}",
        f"v_lshl_add_u32 v{V_ST}, v{t+7}, 15, v{t+6}",
        f"v_lshlrev_b32 v{V_P16}, 4, v{t+2}",
        f"s_mul_i32 s7, s{S_W}, 1792",
        f"s_add_u32 s7, s7, {SCR_W}",
        f"v_lshl_add_u32 v{V_SW}, v{t}, 8, v{V_P16}",
        f"v_add_u32 v{V_SW}, s7, v{V_SW}",
        f"s_lshl_b32 s7, s{S_W}, 8",
        f"s_add_u32 s7, s7, {TABLE}",
        f"v_add_u32 v{V_TB}, s7, v{V_P16}",
        *([f"s_mul_i32 s{S_ST}, s{S_CG}, {14*32768}"] if not AL else
          [f"s_lshr_b32 s{S_T}, s{S_CG}, 2", f"s_mul_i32 s{S_T}, s{S_T}, {56*32768}", f"s_and_b32 s{S_ST}, s{S_CG}, 3",
           f"s_mul_i32 s{S_ST}, s{S_ST}, {6*32768}", f"s_add_u32 s{S_ST}, s{S_ST}, s{S_T}"]),
        f"s_add_u32 s{S_ST}, s{S_ST}, s{S_TW}",
        f"s_lshl_b32 s{S_SS}, s{S_CG}, 17",
        f"s_add_u32 s{S_SS}, s{S_SS}, s{S_TW}",
        f"s_add_u32 s{S_SS}, s{S_SS}, {448*32768}",
        f"s_lshl_b32 s{S_ER}, s{S_CG}, 12",
        f"s_lshl_b32 s7, s{S_RB}, 8",
        f"s_add_u32 s{S_ER}, s{S_ER}, s7",
        f"s_add_u32 s{S_EW}, s{S_ER}, {7*256}",
        f"s_lshl_b32 s{S_XBO}, s2, 15",
        f"s_lshl_b32 s7, s{S_W}, 12",
        f"s_add_u32 s{S_XBO}, s{S_XBO}, s7",
        f"v_mov_b32 v{t+12}, 0", f"v_mov_b32 v{t+13}, 0", f"v_mov_b32 v{t+14}, 0", f"v_mov_b32 v{t+15}, 0",
        f"ds_write_b128 v{V_SW}, {vr(t+12,4)}",
        f"ds_write_b128 v{V_TB}, {vr(t+12,4)}",
        f"v_mov_b32 v{t+16}, -1", f"v_mov_b32 v{t+17}, -1", f"v_mov_b32 v{t+18}, -1", f"v_mov_b32 v{t+19}, -1",
        f"v_lshlrev_b32 v{t+20}, 4, v0",
    ])
    for k in range(4 if not int(opts.get("noxb", 0)) else 0):
        I(F1, [f"buffer_store_dwordx4 {vr(t+16,4)}, v{t+20}, s[{S_XB}:{S_XB+3}], s{S_XBO} offen offset:{k*1024}"])
    F1.append(("need", [("PL", i, b) for i in range(3) for b in (0, 1)]))
    u = T1 + 32
    for b in (0, 1):
        lre, lim, dt = PL + b, PL + 2 + b, PL + 4 + b
        q = u + 8 * b
        I(F1, [
            f"v_lshlrev_b32 v{lre}, 16, v{lre}",
            f"v_lshlrev_b32 v{lim}, 16, v{lim}",
            f"v_lshlrev_b32 v{dt}, 16, v{dt}",
            f"v_mul_f32 v{dt}, {L2E}, v{dt}",
            f"v_exp_f32 v{dt}, v{dt}",
            f"v_cvt_pk_bf16_f32 v{dt}, v{dt}, v{dt}",
            f"v_and_b32 v{dt}, 0xffff0000, v{dt}",
            f"v_mul_f32 v{q}, v{dt}, v{lre}",
            f"v_mul_f32 v{q+1}, v{dt}, v{lim}",
            f"v_mul_f32 v{LAM+b}, {L2E}, v{q}",
            f"v_mul_f32 v{TH+b}, 0x3e22f983, v{q+1}",
        ])
    I(F1, power(A1, "1.0", u + 16))
    for b in (0, 1):
        lre, lim = PL + b, PL + 2 + b
        ar, ai = A1 + 2 * b, A1 + 2 * b + 1
        q = u + 8 * b
        I(F1, [
            f"v_add_f32 v{q}, -1.0, v{ar}",
            f"v_mul_f32 v{q+1}, v{lre}, v{lre}",
            f"v_fmac_f32 v{q+1}, v{lim}, v{lim}",
            f"v_rcp_f32 v{q+1}, v{q+1}",
            f"v_mul_f32 v{q+2}, v{q}, v{lre}",
            f"v_fmac_f32 v{q+2}, v{ai}, v{lim}",
            f"v_mul_f32 v{q+3}, v{ai}, v{lre}",
            f"v_fma_f32 v{q+3}, -v{q}, v{lim}, v{q+3}",
            f"v_add_f32 v{q+1}, v{q+1}, v{q+1}",
            f"v_mul_f32 v{CF+2*b}, v{q+2}, v{q+1}",
            f"v_mul_f32 v{CF+2*b+1}, v{q+3}, v{q+1}",
        ])
    I(F1, power(A8, "0x41000000", u + 16))
    I(F1, power(A32, "0x42000000", u + 16))

    F2 = []
    R0, R1, R2 = PG(0), PG(1), PG(2)
    I(F2, glu(0, flags))
    F2.append(("atS",))
    cur = [(SRE(b), SIM(b)) for b in (0, 1)]
    for j in range(1, 8):
        d = R0 if (j & 1) else R0 + 4
        for b in (0, 1):
            F2.append(("i", f"v_fma_f32 v{d+2*b}, v{A1+2*b}, v{cur[b][0]}, v{SRE(b)+j}"))
            F2.append(("i", f"v_fma_f32 v{d+2*b+1}, v{A1+2*b}, v{cur[b][1]}, v{SIM(b)+j}"))
        for b in (0, 1):
            F2.append(("i", f"v_fma_f32 v{d+2*b}, -v{A1+2*b+1}, v{cur[b][1]}, v{d+2*b}"))
            F2.append(("i", f"v_fma_f32 v{d+2*b+1}, v{A1+2*b+1}, v{cur[b][0]}, v{d+2*b+1}"))
        cur = [(d + 2 * b, d + 2 * b + 1) for b in (0, 1)]
    I(F2, [f"ds_write_b128 v{V_SW}, {vr(R0,4)} offset:768"])
    for k in range(3):
        F2.append(("t", f"ds_read_b128 {vr(R0+4+4*k,4)}, v{V_SW} offset:{256*k}", ("SW", k)))
    F2.append(("gapn", 3))
    F2.append(("need", [("SW", 2)]))
    I(F2, quad_mac(R0 + 8, A8, R0 + 4))
    I(F2, quad_mac(R0 + 12, A8, R0 + 8))
    I(F2, quad_mac(R0, A8, R0 + 12))
    F2.append(("g", ["s_mov_b32 exec_lo, 0", "s_mov_b32 exec_hi, 0xffff0000",
                     (f"ds_write_b128 v{V_TB}, {vr(R0,4)} offset:{7*256}", "TW"), "s_mov_b64 exec, -1"]))
    F2.append(("mark", "TW"))
    F2.append(("at1",))
    I(F2, glu(1, flags))
    F2.append(("afterbar", "TW"))
    rows = [R1, R1 + 4, R1 + 8, R1 + 12, R0 + 4, R0 + 8, Q0]
    for k in range(7):
        F2.append(("t", f"ds_read_b128 {vr(rows[k],4)}, v{V_TB} offset:{256*k}", ("TR", k)))
    F2.append(("gapn", 2))
    for k in range(1, 7):
        F2.append(("need", [("TR", k - 1), ("TR", k)]))
        I(F2, quad_mac(rows[k], A32, rows[k-1]))
    I(F2, quad_mac(R0, A32, Q0))
    I(F2, [f"s_mov_b32 s7, 0xfffffffe"])
    I(F2, [f"v_min_u32 v{R0+r}, s7, v{R0+r}" for r in range(4)])
    F2.append(("g", ["s_mov_b32 exec_lo, 0", "s_mov_b32 exec_hi, 0xffff0000",
                     f"buffer_store_dwordx4 {vr(R0,4)}, v{V_P16}, s[{S_EXW}:{S_EXW+3}], s{S_EW} offen sc1", "s_mov_b64 exec, -1"]))
    if not LP: F2.append(("stamp", 4))
    I(F2, [f"v_lshrrev_b32 v{R1+12}, 4, v0", f"v_lshlrev_b32 v{R1+12}, 3, v{R1+12}", f"v_cvt_f32_u32 v{R1+13}, v{R1+12}"])
    I(F2, power(R1, f"v{R1+13}", R1 + 4))
    I(F2, quad_mac(R0 + 12, R1, Q0))
    I(F2, [f"s_lshl_b32 s7, s{S_W}, 5", f"v_add_u32 v{V_D0}, s7, v{R1+12}", f"v_cvt_f32_u32 v{V_D0}, v{V_D0}"])
    F2.append(("at", int(opts.get("pollat", 0))))
    prow = [R1, R1 + 4, R1 + 8, R1 + 12, R0, R0 + 4, R0 + 8]
    def poll_loads(tagged):
        o = []
        for k in range(7):
            s = f"buffer_load_dwordx4 {vr(prow[k],4)}, v{V_P16}, s[{S_EXR}:{S_EXR+3}], s{S_ER} offen offset:{256*k} sc1"
            o.append((s, ("PR", k)) if tagged else s)
        return o
    if POLLFIRST:
        for x in poll_loads(True): F2.append(("t", x[0], x[1]))
    I(F2, glu(2, flags))
    I(F2, power(R2, "0x43800000", R2 + 8))
    I(F2, power(R2 + 4, f"v{V_D0}", R2 + 8))
    if not POLLFIRST:
        for x in poll_loads(True): F2.append(("t", x[0], x[1]))
    F2.append(("gapn", int(opts.get("pollgap", 0))))
    F2.append(("need", [("PR", 6)]))
    def maxchain():
        m = V_D2
        regs = [r + i for r in prow for i in range(4)]
        o = [f"v_max3_u32 v{m}, v{regs[0]}, v{regs[1]}, v{regs[2]}"]
        for k in range(3, 27, 2):
            o.append(f"v_max3_u32 v{m}, v{m}, v{regs[k]}, v{regs[k+1]}")
        o.append(f"v_max_u32 v{m}, v{m}, v{regs[27]}")
        o.append(f"v_cmp_eq_u32 vcc, -1, v{m}")
        return o
    I(F2, maxchain())
    F2.append(("g", ["s_nop 3", "s_cmp_eq_u64 vcc, 0", "s_cbranch_scc0 K2_SLOW", "K2_BACK:"]))
    for k in range(1, 7):
        I(F2, quad_mac(prow[k], R2, prow[k-1]))
    I(F2, quad_mac(R0 + 12, R2 + 4, R0 + 8))
    H = [R0 + 12, R2 + 8]
    TT = R2 + 12
    for j in range(8):
        s_, d = H[j & 1], H[(j + 1) & 1]
        for b in (0, 1):
            F2.append(("i", f"v_fma_f32 v{d+2*b}, v{A1+2*b}, v{s_+2*b}, v{SRE(b)+j}"))
            F2.append(("i", f"v_fma_f32 v{d+2*b+1}, v{A1+2*b}, v{s_+2*b+1}, v{SIM(b)+j}"))
        for b in (0, 1):
            F2.append(("i", f"v_fma_f32 v{d+2*b}, -v{A1+2*b+1}, v{s_+2*b+1}, v{d+2*b}"))
            F2.append(("i", f"v_fma_f32 v{d+2*b+1}, v{A1+2*b+1}, v{s_+2*b}, v{d+2*b+1}"))
        for b in (0, 1):
            F2.append(("i", f"v_mul_f32 v{TT+2*b}, v{CF+2*b+1}, v{d+2*b+1}"))
            F2.append(("i", f"v_mul_f32 v{TT+2*b+1}, v{CF+2*b+1}, v{d+2*b}"))
        for b in (0, 1):
            F2.append(("i", f"v_fma_f32 v{SRE(b)+j}, v{CF+2*b}, v{d+2*b}, -v{TT+2*b}"))
            F2.append(("i", f"v_fma_f32 v{SIM(b)+j}, -v{CF+2*b}, v{d+2*b+1}, -v{TT+2*b+1}"))
    SEL = R1
    I(F2, [
        f"v_and_b32 v{R1+8}, 15, v0",
        f"v_lshrrev_b32 v{R1+9}, 2, v{R1+8}",
        f"v_lshrrev_b32 v{R1+10}, 4, v0",
        f"v_and_b32 v{R1+11}, 1, v0",
        f"v_lshlrev_b32 v{R1+11}, 4, v{R1+11}",
        f"v_mov_b32 v{R1+12}, 0x3f80",
        f"v_lshlrev_b32 v{R1+12}, v{R1+11}, v{R1+12}",
        f"v_cmp_eq_u32 vcc, v{R1+9}, v{R1+10}",
        f"v_mov_b32 v{SEL}, 0", f"v_mov_b32 v{SEL+1}, 0",
        f"v_cndmask_b32 v{R1+12}, 0, v{R1+12}, vcc",
        f"v_and_b32 v{R1+13}, 2, v0",
        f"v_cmp_eq_u32 vcc, 0, v{R1+13}",
        f"v_mov_b32 v{SEL+4}, 0", f"v_mov_b32 v{SEL+5}, 0",
        f"v_cndmask_b32 v{SEL+2}, 0, v{R1+12}, vcc",
        f"v_cndmask_b32 v{SEL+3}, v{R1+12}, 0, vcc",
    ])
    outs = [(SRE(0), 0), (SRE(1), 65536), (SIM(0), 4194304), (SIM(1), 4194304 + 65536)]
    for k, (X, off) in enumerate(outs):
        for q in range(4):
            F2.append(("i", f"v_cvt_pk_bf16_f32 v{X+q}, v{X+2*q}, v{X+2*q+1}"))
    for k, (X, off) in enumerate(outs):
        d1 = R1 + 8 + 4 * (k & 1)
        F2.append(("i", f"v_mfma_f32_16x16x32_bf16 {vr(X+4,4)}, {vr(X,4)}, {vr(SEL+2,4)}, 0"))
        F2.append(("i", f"v_mfma_f32_16x16x32_bf16 {vr(d1,4)}, {vr(X,4)}, {vr(SEL,4)}, 0"))
        if k >= 1:
            Xp, offp = outs[k-1]
            I(F2, pack_store(Xp, Xp + 4, R1 + 8 + 4 * ((k - 1) & 1), f"s_add_u32 s{S_T}, s{S_SS}, {offp}", flags))
        else:
            F2.append(("gapn", 3))
    F2.append(("gapn", 3))
    Xp, offp = outs[3]
    I(F2, pack_store(Xp, Xp + 4, R1 + 12, f"s_add_u32 s{S_T}, s{S_SS}, {offp}", flags))
    if NOEPI:
        F2 = [("label", "K2_BACK")]

    pairs = []
    def mm(d, A, B, first):
        return f"v_mfma_f32_16x16x32_bf16 {vr(d,4)}, {vr(A,4)}, {vr(B,4)}, {'0' if first else vr(d,4)}"
    def add_pair(n, kind, idx):
        s = n // 2; h = n & 1
        slot = (s % NSLOT) * SLOT
        first = (n % 32 == 0)
        if kind == "S":
            im, b = idx
            rd = [("ds_read_b128", (V_SA0, V_SA1)[h], slot, im * 4096 + b * 2048, 0, 4)]
            D = SIM(b) if im else SRE(b)
        elif kind == "W1":
            j, up = idx
            o = up * 6144 + h * 3072 + j * 32
            rd = [("ds_read_b64_tr_b16", V_GA, slot, o, 0, 2), ("ds_read_b64_tr_b16", V_GA, slot, o + 768, 2, 2)]
            D = PU(j) if up else PG(j)
        else:
            j, up = idx
            o = up * 8192 + (1 - h if REV[0] else h) * 4096
            rd = [("ds_read_b64_tr_b16", GA2[j-3], slot, o, 0, 2), ("ds_read_b64_tr_b16", GA2[j-3], slot, o + 512, 2, 2)]
            D = PU(j) if up else PG(j)
        pairs.append(dict(n=n, stage=s, kind=kind, rd=rd, D=D, first=first, idx=idx))
    def add_S(n):
        for im in (0, 1):
            for b in (0, 1): add_pair(n, "S", (im, b))
    for n in range(32 - NT1):
        add_S(n)
        for j in range(3):
            for up in (0, 1): add_pair(n, "W1", (j, up))
    for n in range(32 - NT1, 32):
        for up in (0, 1): add_pair(n, "W1", (0, up))
    F2START = len(pairs) + (1 if NT1 else 0)
    for n in range(32 - NT1, 32): add_S(n)
    SDONE = len(pairs) + 1
    for j in (1, 2):
        for n in range(32 - NT1, 32):
            for up in (0, 1): add_pair(n, "W1", (j, up))
    if NT1 == 0: F2START = SDONE = len(pairs) + 1
    P1END = len(pairs)
    NTAIL = int(opts.get("ntail", 4))
    for n in range(32, 64 - NTAIL):
        for j in range(3, 7):
            for up in (0, 1): add_pair(n, "W2", (j, up))
    tail0 = len(pairs)
    for j in range(3, 7):
        for n in range(64 - NTAIL, 64):
            for up in (0, 1): add_pair(n, "W2", (j, up))
    NP = len(pairs)
    F3 = []
    if AL:
        I(F3, [f"s_and_b32 s{S_O96}, s{S_CG}, 3", f"s_lshl_b32 s{S_O96}, s{S_O96}, 16", f"s_add_u32 s{S_O96}, s{S_O96}, {18*32768}",
               f"s_add_u32 s{S_ST}, s{S_ST}, s{S_O96}"])
    for j in range(3, 6):
        F3.append(("at", tail0 + (j - 2) * 2 * NTAIL + 1))
        I(F3, glu(j, flags))

    base = {}
    state = dict(bar=-1, marks={}, nbar=0)
    hq = []
    pend = []
    def barrier_for(stage):
        while state["bar"] < stage:
            s = state["bar"] + 1
            st.need(*(dtags(s) + pend))
            pend.clear()
            st.ins("s_barrier")
            state["bar"] = s; state["nbar"] += 1
            if (s >= 2 or NPRO != 100) and s + 4 < 32:
                hq.extend(dma(s + 4))
    def read_ins(k):
        p = pairs[k]
        barrier_for(p["stage"])
        o = []
        for (op, areg, slot, off, ro, cnt) in p["rd"]:
            cur = base.get(areg, 0)
            rel = slot + off - cur
            if rel < 0 or rel > 65535 - 1024:
                delta = slot - cur
                o.append((f"v_add_u32 v{areg}, {delta & 0xffffffff}, v{areg}" if delta >= 0 else f"v_subrev_u32 v{areg}, {-delta}, v{areg}", None))
                base[areg] = slot
                rel = off
            if SKIP and k % SKIP == SKIP - 1: continue
            o.append((f"{op} {vr(wr(k)+ro,cnt)}, v{areg} offset:{rel}", ("W", k, ro)))
        return o
    SKIP = int(opts.get("skiprd", 0))
    def wtags(k): return [("W", k, r[4]) for r in pairs[k]["rd"]] if not (SKIP and k % SKIP == SKIP - 1) else []
    PROGAP = int(opts.get("progap", 2))
    fq = dict(q=F1, pos=0, credit=0.0, hold=0)
    def run_fillers(i, budget):
        used = 0
        if pro_rest and budget < 10**8:
            state["pg"] = state.get("pg", 0) + 1
            if state["pg"] >= PROGAP:
                state["pg"] = 0
                emit_group(pro_rest.pop(0)); used += 1
        while hq and not pro_rest and used < max(budget, 1) + 1:
            g = hq.pop(0); emit_group(g); used += 1
        q = fq["q"]
        while fq["pos"] < len(q) and used < budget:
            it = q[fq["pos"]]
            k = it[0]
            if k == "i": st.ins(it[1]); used += 1
            elif k == "t": st.ins(it[1], it[2]); used += 1
            elif k == "g": emit_group(it[1]); used += 2
            elif k == "need": st.need(*it[1])
            elif k == "mark": pend.append(it[1]); state["marks"][it[1]] = state["nbar"]
            elif k == "afterbar":
                if state["nbar"] <= state["marks"][it[1]]: return
            elif k == "at":
                if i < it[1]: return
            elif k == "atS":
                if i < SDONE: return
            elif k == "at1":
                if i < P1END + 1: return
            elif k == "gapn":
                if fq["hold"] < it[1]:
                    fq["hold"] += 1; return
                fq["hold"] = 0
            elif k == "label": a.label(it[1])
            elif k == "stamp": P.stamp(it[1])
            fq["pos"] += 1
    def flush_fillers():
        while hq or fq["pos"] < len(fq["q"]):
            before = (len(hq), fq["pos"], fq["hold"])
            run_fillers(10**9, 1000)
            if (len(hq), fq["pos"], fq["hold"]) == before:
                raise RuntimeError("filler stuck %r" % (fq["q"][fq["pos"]],))
            if fq["hold"]: st.ins("s_nop 3")
    for k in range(NWR - 1):
        for ins, tag in read_ins(k): st.ins(ins, tag)
    if not LP: P.stamp(3)
    acc_credit = 0.0
    last_use = {}
    for i, p in enumerate(pairs): last_use[p["n"]] = i
    xat = {}
    for m in range(NXR, 64): xat.setdefault(last_use[m - NXR + (1 if FOLD else 0)] + 1 if m + 1 < 64 or not FOLD else 0, []).append(m)
    for i in range(NP):
        p = pairs[i]
        if i == F2START:
            flush_fillers()
            fq.update(q=F2, pos=0, hold=0)
        if i == P1END and not LP:
            P.stamp(5)
        if i == 1 and LP:
            P.stamp(6)
        for q in range(NPF3):
            if PF3 >= 0 and i == PF3 + q * PF3D:
                hq.append([(f"buffer_load_dword v255, v254, s[60:63], s68 offen offset:{q * (64 // NPF3) * 128 if q * (64 // NPF3) * 128 < 4096 else 0}", ("PF", 3))] if q * (64 // NPF3) * 128 < 4096 else
                          [f"s_add_u32 s{S_T}, s68, {q * (64 // NPF3) * 128}", (f"buffer_load_dword v255, v254, s[60:63], s{S_T} offen", ("PF", 3))])
        if i == PF2A:
            hq.append([("buffer_load_dword v255, v253, s[64:67], s69 offen", ("PF", 1))])
        if i == PF2B:
            hq.append([f"s_add_u32 s69, s69, {512*7168}", ("buffer_load_dword v255, v253, s[64:67], s69 offen", ("PF", 2))])
        if i == P1END - 1:
            st.need(*[t for t in (("PF", 1), ("PF", 2), ("PF", 3)) if t in st.tags])
        if i == tail0:
            if fq["pos"] < len(fq["q"]): print("K2: %d scan fillers left at tail" % (len(fq["q"]) - fq["pos"]))
            flush_fillers()
            fq.update(q=F3, pos=0, hold=0)
        rate = 1.0 if i < F2START else (RATE2 if i < tail0 else RATE3)
        n = p["n"]
        nx = 63 - n if (REV[0] and 32 <= n < 38) else n
        tg = wtags(i) + [("X", nx, 0), ("X", nx, 1)]
        if i % 2 == 0 and i + 1 < NP:
            tg += wtags(i + 1)
        st.need(*tg)
        rd = read_ins(i + NWR - 1) if i + NWR - 1 < NP else []
        g1 = []; g2 = []
        seen = 0
        for x in rd:
            if x[1] is None: (g1 if seen == 0 else g2).append(x)
            else:
                (g1 if seen == 0 else g2).append(x); seen += 1
        W, D = wr(i), p["D"]
        for tb in (0, 1):
            X = xr(n, tb - 0)
            if p["kind"] == "S": st.ins(mm(D + 4 * tb, X, W, p["first"]))
            else: st.ins(mm(D + 4 * tb, W, X, p["first"]))
            for ins, tag in (g1 if tb == 0 else g2): st.ins(ins, tag)
            if tb == 0:
                for m in xat.get(i, []): hq.extend(xload(m))
            acc_credit += rate
            bud = int(acc_credit); acc_credit -= bud
            run_fillers(i, bud)
    a("s_nop 7"); st.n += 8
    if not LP: P.stamp(6)
    flush_fillers()
    for x in glu(6, flags): st.ins(x)
    print("K2: nops inserted", st.nops, "slots", st.n)
    P.stamp(7)
    if P.on:
        if not LP: a(f"s_mov_b32 s{P.regs[8]}, s{S_CNT}")
        a("s_waitcnt vmcnt(0)")
    P.stamp(9, real=True)
    P.flush(70, 71, 60, S_W, 40, 41)
    a("s_endpgm")
    a.label("K2_SLOW")
    a(f"s_mov_b32 s{S_CNT}, 0")
    a.label("K2_SLOWL")
    for x in poll_loads(False): a(x)
    a("s_waitcnt vmcnt(0)")
    for x in maxchain(): a(x)
    a(f"""
    s_add_u32 s{S_CNT}, s{S_CNT}, 1
    s_nop 3
    s_cmp_eq_u64 vcc, 0
    s_cbranch_scc1 K2_BACK
    s_cmp_lt_u32 s{S_CNT}, 100000
    s_cbranch_scc1 K2_SLOWL
    s_branch K2_BACK
    """)
    a.label("K2_END")
    a("s_endpgm")
    return 256
```

```python
from common import *
from stream import Stream

K2 = "ssm_gemm1_kernel"
SLOT = 21504
NSLOT = 6
SCR_W = NSLOT * SLOT
TABLE = SCR_W + 8 * 1792
K2_LDS = TABLE + 15 * 256

V_XO = 1
V_GA, V_SA0, V_SA1, V_D1 = 2, 3, 4, 5
Q0 = 2
GA2 = [6, 7, 8, 9]
V_D0, V_D2, V_ST, V_P16, V_SW, V_TB = 10, 11, 12, 13, 14, 15
LAM, TH, A1, CF, A8, A32 = 16, 18, 20, 24, 28, 32
V_D0B = 36
V_XO2 = 37
XR = 40
NXR = 6
WR = 88
NWR = 6
def SRE(b): return 112 + 8 * b
def SIM(b): return 128 + 8 * b
def PG(j): return 144 + 16 * j
def PU(j): return PG(j) + 8
T1 = 192
REV = [0]
def xr(n, tb): return XR + 8 * ((63 - n) % NXR if (REV[0] and n >= 32) else n % NXR) + 4 * tb
def wr(i): return WR + 4 * (i % NWR)

S_XN, S_G, S_U, S_D0, S_D1, S_D2, S_ACT, S_EXR, S_EXW, S_XB, S_P0, S_P1, S_P2 = range(8, 60, 4)
S_W, S_RB, S_CG, S_TW = 3, 4, 5, 6
S_X, S_O01, S_O2, S_M0, S_M1, S_M2, S_ST, S_SS, S_ER, S_EW, S_XBO, S_O96, S_CNT, S_T = range(76, 90)

L2E = "0x3fb8aa3b"
def f32(x):
    import struct
    return "0x%08x" % struct.unpack("<I", struct.pack("<f", x))[0]

def quad_mac(d, A, s):
    o = []
    for b in (0, 1):
        o.append(f"v_fma_f32 v{d+2*b}, v{A+2*b}, v{s+2*b}, v{d+2*b}")
        o.append(f"v_fma_f32 v{d+2*b+1}, v{A+2*b}, v{s+2*b+1}, v{d+2*b+1}")
    for b in (0, 1):
        o.append(f"v_fma_f32 v{d+2*b}, -v{A+2*b+1}, v{s+2*b+1}, v{d+2*b}")
        o.append(f"v_fma_f32 v{d+2*b+1}, v{A+2*b+1}, v{s+2*b}, v{d+2*b+1}")
    return o

def power(d, n, t):
    o = []
    for b in (0, 1):
        o.append(f"v_mul_f32 v{t+3*b}, {n}, v{LAM+b}")
        o.append(f"v_mul_f32 v{t+3*b+1}, {n}, v{TH+b}")
    for b in (0, 1):
        o.append(f"v_exp_f32 v{t+3*b}, v{t+3*b}")
        o.append(f"v_fract_f32 v{t+3*b+1}, v{t+3*b+1}")
    for b in (0, 1):
        o.append(f"v_cos_f32 v{t+3*b+2}, v{t+3*b+1}")
        o.append(f"v_sin_f32 v{t+3*b+1}, v{t+3*b+1}")
    for b in (0, 1):
        o.append(f"v_mul_f32 v{d+2*b}, v{t+3*b}, v{t+3*b+2}")
        o.append(f"v_mul_f32 v{d+2*b+1}, v{t+3*b}, v{t+3*b+1}")
    return o

def pack_store(O, d0, d1, soff_expr, flags):
    o = [f"v_cvt_pk_bf16_f32 v{O}, v{d0}, v{d0+1}",
         f"v_cvt_pk_bf16_f32 v{O+1}, v{d0+2}, v{d0+3}",
         f"v_cvt_pk_bf16_f32 v{O+2}, v{d1}, v{d1+1}",
         f"v_cvt_pk_bf16_f32 v{O+3}, v{d1+2}, v{d1+3}",
         soff_expr,
         f"v_permlane16_swap_b32 v{O}, v{O+2}",
         f"v_permlane16_swap_b32 v{O+1}, v{O+3}",
         f"buffer_store_dwordx4 {vr(O,4)}, v{V_ST}, s[{S_ACT}:{S_ACT+3}], s{S_T} offen {flags}".rstrip()]
    return o

def glu(j, flags):
    G = [PG(j) + r for r in range(8)]; U = [PU(j) + r for r in range(8)]
    o = []
    o += [f"v_mul_f32 v{g}, 0xbfb8aa3b, v{g}" for g in G]
    o += [f"v_exp_f32 v{g}, v{g}" for g in G]
    o += [f"v_add_f32 v{g}, 1.0, v{g}" for g in G]
    o += [f"v_rcp_f32 v{g}, v{g}" for g in G]
    o += [f"v_mul_f32 v{g}, v{g}, v{u}" for g, u in zip(G, U)]
    o += pack_store(PU(j), PG(j), PG(j) + 4, f"s_add_u32 s{S_T}, s{S_ST}, {j*65536}", flags)
    return o

def ln_code(a, opts, P, wdma, nw):
    B = 40
    def v(i): return f"v{B+i}"
    X = S_P0; DBG = S_P1
    WPOS = opts.get("lnw", "a")
    LP = int(opts.get("lnprof", 0))
    a(f"""
    s_mov_b32 s{X+2}, 0x400000
    s_mov_b32 s{X+3}, 0x00020000
    s_mov_b32 s{S_XB}, s{DBG}
    s_mov_b32 s{S_XB+1}, s{DBG+1}
    s_mov_b32 s{S_XB+2}, 256
    s_mov_b32 s{S_XB+3}, 0x00020000
    v_and_b32 {v(3)}, 7, v0                 ; r
    v_lshrrev_b32 {v(4)}, 3, v0             ; part
    s_lshl_b32 s7, s{S_W}, 5
    v_add_u32 {v(5)}, s7, {v(4)}
    s_lshr_b32 s7, s2, 2
    s_lshl_b32 s7, s7, 5
    s_and_b32 s{S_T}, s2, 1
    s_lshl_b32 s{S_T}, s{S_T}, 4
    s_add_u32 s7, s7, s{S_T}
    s_and_b32 s{S_T}, s2, 2
    s_lshl_b32 s{S_T}, s{S_T}, 1
    s_add_u32 s7, s7, s{S_T}
    v_lshrrev_b32 {v(7)}, 2, {v(3)}
    v_and_b32 {v(8)}, 3, {v(3)}
    v_lshl_add_u32 {v(7)}, {v(7)}, 3, {v(8)}
    v_add_u32 {v(7)}, s7, {v(7)}            ; row
    v_lshlrev_b32 {v(7)}, 11, {v(7)}
    v_lshl_add_u32 {v(7)}, {v(5)}, 4, {v(7)}
    """)
    for j in range(4):
        a(f"buffer_load_dwordx4 {vr(B+16+4*j,4)}, {v(7)}, s[{X}:{X+3}], 0 offen offset:{128*j}")
    pend = 0
    if WPOS == "a":
        wdma(); pend = nw
    a(f"""
    s_lshl_b32 s7, s2, 3
    v_add_u32 {v(6)}, s7, {v(3)}            ; store position
    v_lshlrev_b32 {v(8)}, 15, {v(5)}
    v_lshl_add_u32 {v(8)}, {v(6)}, 4, {v(8)}        ; store offset (kc*32768 + pos*16)
    v_mul_u32_u24 {v(9)}, 144, {v(3)}
    v_add_u32 {v(9)}, {SCR_W}, {v(9)}
    s_lshl_b32 s7, s{S_W}, 3
    v_add_u32 {v(10)}, s7, {v(4)}
    v_lshl_add_u32 {v(10)}, {v(10)}, 2, {v(9)}
    s_waitcnt vmcnt({pend})
    """)
    if LP: P.stamp(2)
    for d in range(16):
        a(f"v_lshlrev_b32 {v(32+2*d)}, 16, {v(16+d)}")
        a(f"v_and_b32 {v(33+2*d)}, 0xffff0000, {v(16+d)}")
    for q in range(4):
        a(f"v_add_f32 {v(64+q)}, {v(32+q)}, {v(36+q)}")
    for d in range(8, 32, 4):
        for q in range(4):
            a(f"v_add_f32 {v(64+q)}, {v(64+q)}, {v(32+d+q)}")
    a(f"v_add_f32 {v(64)}, {v(64)}, {v(65)}")
    a(f"v_add_f32 {v(66)}, {v(66)}, {v(67)}")
    a(f"v_add_f32 {v(64)}, {v(64)}, {v(66)}")
    a(f"ds_write_b32 {v(10)}, {v(64)}")
    a("s_waitcnt lgkmcnt(0)")
    a("s_barrier")
    def reduce32(off, dst):
        for q in range(8):
            a(f"ds_read_b128 {vr(B+68+4*q,4)}, {v(9)} offset:{off+16*q}")
        a("s_waitcnt lgkmcnt(0)")
        for n in (16, 8, 4, 2, 1):
            for q in range(n):
                a(f"v_add_f32 {v(68+q)}, {v(68+q)}, {v(68+n+q)}")
        a(f"v_mul_f32 {v(dst)}, 0x3a800000, {v(68)}")
    reduce32(0, 100)
    for d in range(32):
        a(f"v_sub_f32 {v(68+d)}, {v(32+d)}, {v(100)}")
    for q in range(4):
        a(f"v_mul_f32 {v(64+q)}, {v(68+q)}, {v(68+q)}")
    for d in range(4, 32, 4):
        for q in range(4):
            a(f"v_fmac_f32 {v(64+q)}, {v(68+d+q)}, {v(68+d+q)}")
    a(f"v_add_f32 {v(64)}, {v(64)}, {v(65)}")
    a(f"v_add_f32 {v(66)}, {v(66)}, {v(67)}")
    a(f"v_add_f32 {v(64)}, {v(64)}, {v(66)}")
    a(f"ds_write_b32 {v(10)}, {v(64)} offset:1152")
    a("s_waitcnt lgkmcnt(0)")
    a("s_barrier")
    reduce32(1152, 101)
    a(f"""
    v_cvt_pk_bf16_f32 {v(102)}, {v(100)}, {v(101)}
    v_lshlrev_b32 {v(100)}, 16, {v(102)}
    v_and_b32 {v(101)}, 0xffff0000, {v(102)}
    v_add_f32 {v(101)}, 0x3727c5ac, {v(101)}
    v_cvt_pk_bf16_f32 {v(101)}, {v(101)}, {v(101)}
    v_and_b32 {v(101)}, 0xffff0000, {v(101)}
    v_sqrt_f32 {v(101)}, {v(101)}
    s_nop 0
    v_cvt_pk_bf16_f32 {v(101)}, {v(101)}, {v(101)}
    v_and_b32 {v(101)}, 0xffff0000, {v(101)}
    v_rcp_f32 {v(101)}, {v(101)}
    s_nop 0
    """)
    for d in range(16):
        x0, x1 = v(32 + 2*d), v(33 + 2*d)
        a(f"v_sub_f32 {x0}, {x0}, {v(100)}")
        a(f"v_sub_f32 {x1}, {x1}, {v(100)}")
        a(f"v_cvt_pk_bf16_f32 {x0}, {x0}, {x1}")
        a(f"v_and_b32 {x1}, 0xffff0000, {x0}")
        a(f"v_lshlrev_b32 {x0}, 16, {x0}")
        a(f"v_mul_f32 {x0}, {x0}, {v(101)}")
        a(f"v_mul_f32 {x1}, {x1}, {v(101)}")
        a(f"v_cvt_pk_bf16_f32 {v(16+d)}, {x0}, {x1}")
    for j in range(4):
        a(f"s_mov_b32 s7, {8*32768*j}")
        a(f"buffer_store_dwordx4 {vr(B+16+4*j,4)}, {v(8)}, s[{S_XN}:{S_XN+3}], s7 offen sc1")
    a(f"""
    s_cmp_eq_u32 s{S_W}, 0
    s_cbranch_scc0 K2_NOCLR
    s_mov_b32 exec_hi, 0
    s_lshl_b32 s{S_T}, s2, 9
    s_and_b32 s7, s2, 7
    s_lshl_b32 s7, s7, 1
    v_lshrrev_b32 {v(12)}, 4, v0
    v_add_u32 {v(12)}, s7, {v(12)}          ; row
    v_cmp_lt_u32 vcc, 6, {v(12)}
    v_lshlrev_b32 {v(11)}, 4, v0
    s_nop 1
    v_cndmask_b32 {v(12)}, 0, -1, vcc
    v_cndmask_b32 {v(13)}, 0, -1, vcc
    v_cndmask_b32 {v(14)}, 0, -1, vcc
    v_cndmask_b32 {v(15)}, 0, -1, vcc
    buffer_store_dwordx4 {vr(B+12,4)}, {v(11)}, s[{S_EXR}:{S_EXR+3}], s{S_T} offen sc1
    s_mov_b64 exec, -1
    K2_NOCLR:
    s_waitcnt vmcnt(0)
    """)
    if LP: P.stamp(3)
    a(f"""
    s_barrier
    s_cmp_eq_u32 s{S_W}, 0
    s_cbranch_scc0 K2_NOFLAG
    s_mov_b64 exec, 1
    v_mov_b32 {v(11)}, s2
    v_mov_b32 {v(12)}, 1
    buffer_store_byte {v(12)}, {v(11)}, s[{S_XB}:{S_XB+3}], 0 offen sc1
    s_mov_b64 exec, -1
    K2_NOFLAG:
    """)
    if WPOS == "b":
        wdma()

def gen_k2(a, store_flags="", prof=False, opts=None):
    K3V = int((opts or {}).get("k3v", 1))
    XB16 = int((opts or {}).get("xb16", 0))
    opts = opts or {}
    flags = store_flags.replace("+", " ")
    RATE2 = float(opts.get("rate2", 1.5))
    RATE3 = float(opts.get("rate3", 3))
    NOEPI = int(opts.get("noepi", 0))
    POLLFIRST = int(opts.get("pollfirst", 1))
    NT1 = int(opts.get("nt1", 2))
    REV[0] = int(opts.get("rev", 0))
    kernel_begin(a, K2)
    P = Prof(a, prof, 1, list(range(90, 100)), 100)
    a("""
    s_cmp_ge_u32 s2, 256
    s_cbranch_scc1 K2_END
    """)
    P.stamp(0, real=True)
    P.stamp(1)
    a(f"""
    s_load_dwordx4 s[72:75], s[0:1], 80     ; w_gate, w_up
    s_load_dwordx2 s[70:71], s[0:1], 120    ; ws
    s_load_dwordx4 s[64:67], s[0:1], 24
    s_load_dwordx4 s[60:63], s[0:1], 8
    s_load_dwordx2 s[68:69], s[0:1], 56     ; log_dt
    s_load_dwordx2 s[82:83], s[0:1], 96     ; w_down
    s_load_dwordx4 s[84:87], s[0:1], 40
    """)
    LN = int(opts.get("ln", 0)); LP = int(opts.get("lnprof", 0))
    if int(opts.get("fold", 0)):
        a("s_load_dwordx2 s[56:57], s[0:1], 0       ; x")
    if LN:
        a(f"""
        s_load_dwordx2 s[{S_P0}:{S_P0+1}], s[0:1], 0       ; x
        s_load_dwordx2 s[{S_P1}:{S_P1+1}], s[0:1], 112     ; hand-off bytes (zero at launch)
        """)
    a(f"""
    v_lshrrev_b32 v240, 6, v0
    v_and_b32 v0, 63, v0                    ; lane
    v_readfirstlane_b32 s{S_W}, v240         ; wave
    s_and_b32 s7, s2, 7                     ; xcd
    s_lshr_b32 s{S_CG}, s2, 3
    s_and_b32 s{S_RB}, s{S_CG}, 7
    s_lshr_b32 s{S_CG}, s{S_CG}, 3
    s_lshl_b32 s7, s7, 2
    s_add_u32 s{S_CG}, s{S_CG}, s7
    s_lshl_b32 s{S_TW}, s{S_RB}, 12         ; 256*rb*16
    s_lshl_b32 s7, s{S_W}, 9                ; 32*w*16
    s_add_u32 s{S_TW}, s{S_TW}, s7          ; tw*16
    s_mov_b32 s{S_X}, s{S_TW}
    """)
    AL = int(opts.get("al", 0))
    if AL:
        a(f"""
        s_lshr_b32 s7, s{S_CG}, 2
        s_mul_i32 s7, s7, 896
        s_and_b32 s{S_O01}, s{S_CG}, 3
        s_mul_i32 s{S_O01}, s{S_O01}, 96
        s_add_u32 s{S_O01}, s{S_O01}, s7
        """)
    else:
        a(f"s_mul_i32 s{S_O01}, s{S_CG}, 224")
    a(f"""
    s_lshl_b32 s{S_O2}, s{S_CG}, 16
    s_lshl_b32 s{S_M0}, s{S_W}, 10
    s_add_u32 s{S_M1}, s{S_M0}, 8192
    s_add_u32 s{S_M2}, s{S_M0}, 12288
    s_cmp_lt_u32 s{S_W}, 4
    s_cselect_b32 s{S_M1}, s{S_M1}, 20480
    ; ---- DMA lane offsets.  GLU type: q = 64 i' + lane, rho = q / 6, ch = q % 6, k = swap23(rho)
    s_sub_u32 s7, s{S_W}, 6
    s_cmp_lt_u32 s{S_W}, 6
    s_cselect_b32 s7, s{S_W}, s7
    s_lshl_b32 s7, s7, 6                    ; 64 i' (u=0)
    s_lshl_b32 s{S_T}, s{S_W}, 6
    s_add_u32 s{S_T}, s{S_T}, 128           ; 64 i' (u=1)
    v_add_u32 v241, s7, v0
    v_add_u32 v242, s{S_T}, v0
    """)
    for (q, d) in ((241, V_D0), (242, V_D1)):
        a(f"""
        v_mul_u32_u24 v243, 10923, v{q}
        v_lshrrev_b32 v243, 16, v243              ; rho
        v_mul_u32_u24 v244, 6, v243
        v_sub_u32 v244, v{q}, v244                ; ch
        v_and_b32 v245, 0x33, v243
        v_and_b32 v246, 4, v243
        v_lshl_or_b32 v245, v246, 1, v245
        v_and_b32 v246, 8, v243
        v_lshrrev_b32 v246, 1, v246
        v_or_b32 v245, v245, v246                  ; k
        v_mul_u32_u24 v245, 7168, v245
        v_lshl_add_u32 v{d}, v244, 4, v245
        """)
    a(f"""
    s_and_b32 s7, s{S_W}, 3
    s_lshl_b32 s7, s7, 3
    v_lshrrev_b32 v243, 3, v0
    v_add_u32 v243, s7, v243                  ; row
    v_lshrrev_b32 v244, 1, v243
    v_xor_b32 v244, v244, v0
    v_and_b32 v244, 7, v244
    v_lshlrev_b32 v244, 4, v244
    v_lshl_add_u32 v{V_D2}, v243, 11, v244
    ; X: (l>>4)*32768 + (l&15)*16
    v_lshrrev_b32 v243, 4, v0                ; g
    v_and_b32 v244, 15, v0                   ; n
    v_lshlrev_b32 v245, 4, v244
    v_lshl_add_u32 v{V_XO}, v243, 15, v245
    s_waitcnt lgkmcnt(0)
    """)
    FOLD = int(opts.get("fold", 0))
    if FOLD:
        a(f"""
        v_lshrrev_b32 v245, 2, v244
        v_and_b32 v246, 3, v244
        v_lshl_add_u32 v245, v245, 3, v246
        v_lshlrev_b32 v245, 11, v245
        v_lshl_add_u32 v{V_XO}, v243, 4, v245
        v_add_u32 v{V_XO2}, 8192, v{V_XO}
        s_lshl_b32 s{S_TW}, s{S_TW}, 7
        s_mov_b32 s{S_X}, s{S_TW}
        """)
        srd(a, S_XN, 56, 57, 0x400000)
    else:
        srd(a, S_XN, 70, 71, XN_SZ, XN_OFF)
    a(f"""
    s_cmp_lt_u32 s{S_W}, 6
    s_cselect_b32 s{S_D0}, s72, s74
    s_cselect_b32 s{S_D0+1}, s73, s75
    s_mov_b32 s{S_D0+2}, 0x700000
    s_mov_b32 s{S_D0+3}, 0x00020000
    s_cmp_lt_u32 s{S_W}, 4
    s_mov_b32 s{S_D1}, s74
    s_mov_b32 s{S_D1+1}, s75
    s_cselect_b32 s{S_D1+2}, 0x700000, 0
    s_mov_b32 s{S_D1+3}, 0x00020000
    s_cselect_b32 s{S_D2}, s64, s66
    s_cselect_b32 s{S_D2+1}, s65, s67
    s_mov_b32 s{S_D2+2}, 0x200000
    s_mov_b32 s{S_D2+3}, 0x00020000
    """)
    a(f"s_mov_b32 s{S_CNT}, 0")
    st = Stream(a)
    def dma(s):
        slot = (s % NSLOT) * SLOT
        g = []
        if s < 16:
            g.append([f"s_add_u32 m0, s{S_M0}, {slot}", "s_nop 0", (f"buffer_load_dwordx4 v{V_D0}, s[{S_D0}:{S_D0+3}], s{S_O01} offen lds", ("D", s, 0))])
            g.append([f"s_add_u32 m0, s{S_M1}, {slot}", "s_nop 0", (f"buffer_load_dwordx4 v{V_D1}, s[{S_D1}:{S_D1+3}], s{S_O01} offen lds", ("D", s, 1)),
                      f"s_add_u32 s{S_O01}, s{S_O01}, 458752"])
            g.append([f"s_add_u32 m0, s{S_M2}, {slot}", "s_nop 0", (f"buffer_load_dwordx4 v{V_D2}, s[{S_D2}:{S_D2+3}], s{S_O2} offen lds", ("D", s, 2)),
                      f"s_add_u32 s{S_O2}, s{S_O2}, 128"])
        else:
            pre = [f"s_mov_b32 s{S_O01}, s{S_O96}"] if s == 16 else []
            if REV[0]:
                pre = [f"s_add_u32 s{S_O01}, s{S_O96}, {15*458752}"] if s == 16 else []
            g.append(pre + [f"s_add_u32 m0, s{S_M0}, {slot}", "s_nop 0", (f"buffer_load_dwordx4 v{V_D0B}, s[{S_G}:{S_G+3}], s{S_O01} offen lds", ("D", s, 0))])
            g.append([f"s_add_u32 m0, s{S_M0}, {slot+8192}", "s_nop 0", (f"buffer_load_dwordx4 v{V_D0B}, s[{S_U}:{S_U+3}], s{S_O01} offen lds", ("D", s, 1)),
                      f"s_{'sub' if REV[0] else 'add'}_u32 s{S_O01}, s{S_O01}, 458752"])
        if int(opts.get("dfix", 0)):
            g = [[x for x in grp if not (isinstance(x, str) and (x.startswith(f"s_add_u32 s{S_O01},") or x.startswith(f"s_add_u32 s{S_O2},")))] for grp in g]
        return g
    def dtags(s): return [("D", s, u) for u in range(3 if s < 16 else 2)]
    def xload(n):
        if FOLD:
            if n & 1: return []
            g = []
            for (va, tb) in ((V_XO, 0), (V_XO2, 1)):
                for h in (0, 1):
                    g.append((f"buffer_load_dwordx4 {vr(xr(n+h,tb),4)}, v{va}, s[{S_XN}:{S_XN+3}], s{S_X} offen offset:{64*h}", ("X", n+h, tb)))
            if n == 30: g.append(f"s_mov_b32 s{S_X}, s{S_TW}")
            else: g.append(f"s_add_u32 s{S_X}, s{S_X}, 128")
            if int(opts.get("xsplit", 0)): return [g[:2], g[2:]]
            return [g]
        g = [(f"buffer_load_dwordx4 {vr(xr(n,0),4)}, v{V_XO}, s[{S_XN}:{S_XN+3}], s{S_X} offen", ("X", n, 0)),
             (f"buffer_load_dwordx4 {vr(xr(n,1),4)}, v{V_XO}, s[{S_XN}:{S_XN+3}], s{S_X} offen offset:256", ("X", n, 1))]
        if REV[0] and 32 <= n < 38: return []
        if REV[0] and n == 31: g.append(f"s_add_u32 s{S_X}, s{S_TW}, {25*131072}")
        elif REV[0] and n >= 38: g.append(f"s_sub_u32 s{S_X}, s{S_X}, 131072")
        elif n == 31: g.append(f"s_mov_b32 s{S_X}, s{S_TW}")
        elif not int(opts.get("xfix", 0)): g.append(f"s_add_u32 s{S_X}, s{S_X}, 131072")
        return [g]
    def emit_group(g):
        for x in g:
            if isinstance(x, tuple): st.ins(x[0], x[1])
            elif x.endswith(":"): a.label(x[:-1])
            else: st.ins(x)
    DLA = int(opts.get("dla", 4))
    NPRO = int(opts.get("npro", 100))
    def raw_group(g):
        for x in g: a(x[0] if isinstance(x, tuple) else x)
    def param_srds():
        srd(a, S_P0, 60, 61, 2048)
        srd(a, S_P1, 62, 63, 2048)
        srd(a, S_P2, 68, 69, 2048)
    PL = T1
    def param_loads(tracked):
        a(f"""
        v_and_b32 v250, 15, v0
        v_lshlrev_b32 v250, 1, v250
        s_lshl_b32 s7, s{S_CG}, 6
        """)
        for i, sp in enumerate((S_P0, S_P1, S_P2)):
            for b in (0, 1):
                x = f"buffer_load_ushort v{PL+2*i+b}, v250, s[{sp}:{sp+3}], s7 offen offset:{32*b}"
                if tracked: st.ins(x, ("PL", i, b))
                else: a(x)
    if LN:
        NPRO = 100
        wgroups = dma(0) + dma(1) + dma(2) + dma(3) + dma(4) + dma(5)
        srd(a, S_G, 72, 73, 0x700000)
        srd(a, S_U, 74, 75, 0x700000)
        srd(a, S_EXR, 70, 71, EX_SZ, EX_OFF)
        a(f"""
        s_cmp_lt_u32 s{S_W}, 4
        s_cbranch_scc0 K2_PFW
        """)
        ln_code(a, opts, P, (lambda: [raw_group(g) for g in wgroups]), 18)
        param_srds()
        param_loads(False)
        a("s_branch K2_JOIN")
        a.label("K2_PFW")
        for g in wgroups: emit_group(g)
        param_srds()
        param_loads(True)
        PF = opts.get("pf", "bgu")
        a(f"""
        s_sub_u32 s7, s{S_W}, 4
        s_lshl_b32 s7, s7, 6
        s_lshl_b32 s{S_T}, s2, 8
        s_add_u32 s{S_T}, s{S_T}, s7
        v_add_u32 v41, s{S_T}, v0
        v_lshlrev_b32 v41, 7, v41               ; (wg*256 + t) * 128
        s_lshr_b32 s{S_T}, s2, 1
        s_lshl_b32 s{S_T}, s{S_T}, 8
        s_add_u32 s{S_T}, s{S_T}, s7
        v_add_u32 v42, s{S_T}, v0
        v_lshlrev_b32 v42, 7, v42               ; ((wg>>1)*256 + t) * 128
        s_and_b32 s7, s2, 1
        s_cmp_eq_u32 s7, 0
        s_cselect_b32 s{S_ACT}, s64, s66
        s_cselect_b32 s{S_ACT+1}, s65, s67
        s_mov_b32 s{S_ACT+2}, 0x200000
        s_mov_b32 s{S_ACT+3}, 0x00020000
        """)
        for c in PF:
            if c == "b": a(f"buffer_load_dword v43, v42, s[{S_ACT}:{S_ACT+3}], 0 offen")
            if c == "g": a(f"buffer_load_dword v44, v41, s[{S_G}:{S_G+3}], 0 offen")
            if c == "u": a(f"buffer_load_dword v45, v41, s[{S_U}:{S_U+3}], 0 offen")
        for _ in range(3): a("s_barrier")
        a.label("K2_JOIN")
        P.stamp(4 if LP else 2)
        a(f"""
        s_cmp_eq_u32 s{S_W}, 0
        s_cbranch_scc0 K2_GO
        """)
        a(f"""
        s_mov_b32 s{S_CNT}, 0
        v_lshlrev_b32 v41, 2, v0
        K2_POLL:
        buffer_load_dword v42, v41, s[{S_XB}:{S_XB+3}], 0 offen sc1
        s_add_u32 s{S_CNT}, s{S_CNT}, 1
        s_waitcnt vmcnt(0)
        v_cmp_ne_u32 vcc, 0x01010101, v42
        s_nop 1
        s_cmp_eq_u64 vcc, 0
        s_cbranch_scc1 K2_GO
        s_cmp_lt_u32 s{S_CNT}, 100000
        s_cbranch_scc1 K2_POLL
        K2_GO:
        s_barrier
        """)
        if LP: P.stamp(5)
        if LP: a(f"s_mov_b32 s{P.regs[8]}, s{S_CNT}")
        for n in range(6):
            for g in xload(n): emit_group(g)
        pro_rest = []
    else:
        order = dma(0) + xload(0) + xload(1) + dma(1) + xload(2) + xload(3) + dma(2) + xload(4) + xload(5) + dma(3)
        if NPRO == 100:
            order += dma(4) + dma(5)
        pro_rest = order[NPRO:]
        for grp in order[:NPRO]: emit_group(grp)
        P.stamp(2)
        if FOLD:
            PF = opts.get("pf", "xbgu")
            srd(a, S_G, 72, 73, 0x700000)
            srd(a, S_U, 74, 75, 0x700000)
            a(f"""
            s_and_b32 s7, s{S_W}, 3
            s_lshl_b32 s7, s7, 6
            s_lshl_b32 s{S_T}, s2, 8
            s_add_u32 s{S_T}, s{S_T}, s7
            v_add_u32 v241, s{S_T}, v0
            v_lshlrev_b32 v241, 7, v241               ; (wg*256 + t) * 128
            s_lshr_b32 s{S_T}, s2, 1
            s_lshl_b32 s{S_T}, s{S_T}, 8
            s_add_u32 s{S_T}, s{S_T}, s7
            v_add_u32 v242, s{S_T}, v0
            v_lshlrev_b32 v242, 7, v242               ; ((wg>>1)*256 + t) * 128
            s_and_b32 s7, s2, 1
            s_cmp_eq_u32 s7, 0
            s_cselect_b32 s{S_ACT}, s64, s66
            s_cselect_b32 s{S_ACT+1}, s65, s67
            s_mov_b32 s{S_ACT+2}, 0x200000
            s_mov_b32 s{S_ACT+3}, 0x00020000
            ; waves 0..3: first = x (waves 0, 1; 16 KB per workgroup), second = w_gate ; waves 4..7: first = B, second = w_up
            s_lshl_b32 s7, s2, 14
            s_lshl_b32 s{S_T}, s{S_W}, 13
            s_add_u32 s7, s7, s{S_T}
            v_lshlrev_b32 v240, 7, v0
            v_add_u32 v240, s7, v240
            s_cmp_lt_u32 s{S_W}, 2
            s_cselect_b32 s7, 0x400000, 0
            s_cmp_lt_u32 s{S_W}, 4
            s_cselect_b32 s{S_EXW}, s{S_XN}, s{S_ACT}
            s_cselect_b32 s{S_EXW+1}, s{S_XN+1}, s{S_ACT+1}
            s_cselect_b32 s{S_EXW+2}, s7, s{S_ACT+2}
            s_mov_b32 s{S_EXW+3}, 0x00020000
            s_cselect_b32 s{S_XB}, s72, s74
            s_cselect_b32 s{S_XB+1}, s73, s75
            s_mov_b32 s{S_XB+2}, 0x700000
            s_mov_b32 s{S_XB+3}, 0x00020000
            s_cselect_b64 vcc, -1, 0
            v_cndmask_b32 v240, v242, v240, vcc
            """)
            if "x" in PF: st.ins(f"buffer_load_dword v255, v240, s[{S_EXW}:{S_EXW+3}], 0 offen", ("PF", 8))
            if "g" in PF: st.ins(f"buffer_load_dword v255, v241, s[{S_XB}:{S_XB+3}], 0 offen", ("PF", 9))
    if not LN:
        srd(a, S_G, 72, 73, 0x700000)
        srd(a, S_U, 74, 75, 0x700000)
        srd(a, S_EXR, 70, 71, EX_SZ, EX_OFF)
    srd(a, S_ACT, 70, 71, ACT_SZ, ACT_OFF)
    srd(a, S_EXW, 70, 71, EX_SZ, EX_OFF)
    a(f"""
    s_cmp_eq_u32 s{S_W}, 7
    s_cselect_b32 s{S_EXW+2}, 0x{EX_SZ:x}, 0
    """)
    srd(a, S_XB, 70, 71, XB_SZ, XB_OFF)
    if not LN: param_srds()
    PF3 = int(opts.get("pf3", -1)); NPF3 = int(opts.get("npf3", 1)); PF3D = int(opts.get("pf3d", 50))
    PF2A = int(opts.get("pf2a", -1)); PF2B = int(opts.get("pf2b", -1)); PFR = int(opts.get("pf1rows", 256))
    O96 = f"""s_mul_i32 s{S_O96}, s{S_CG}, 224
    s_add_u32 s{S_O96}, s{S_O96}, 96"""
    if AL:
        O96 = f"""s_lshr_b32 s7, s{S_CG}, 2
        s_mul_i32 s7, s7, 896
        s_and_b32 s{S_O96}, s{S_CG}, 3
        s_lshl_b32 s{S_O96}, s{S_O96}, 7
        s_add_u32 s{S_O96}, s{S_O96}, s7
        s_add_u32 s{S_O96}, s{S_O96}, 384"""
    a(f"""
    s_lshl_b32 s7, s2, 2
    s_add_u32 s7, s7, s{S_W}
    s_mov_b32 s62, 0x700000
    s_cmp_lt_u32 s{S_W}, 4
    s_cselect_b32 s60, s82, s84
    s_cselect_b32 s61, s83, s85
    s_cselect_b32 s62, s62, 0x200000
    s_cselect_b32 s68, s7, s2
    s_lshl_b32 s68, s68, 13
    s_cmp_eq_u32 s{S_W}, 5
    s_cselect_b32 s60, s86, s60
    s_cselect_b32 s61, s87, s61
    s_cmp_lt_u32 s{S_W}, 6
    s_cselect_b32 s62, s62, 0
    s_mov_b32 s63, 0x00020000
    {O96}
    v_and_b32 v254, {64 // NPF3 - 1}, v0
    v_lshlrev_b32 v254, 7, v254
    ; warm-up of this launch's later weight rows: 4 rows x 14 lines of w_gate (even waves) / w_up (odd waves)
    s_and_b32 s7, s{S_W}, 1
    s_cmp_eq_u32 s7, 0
    s_cselect_b32 s64, s72, s74
    s_cselect_b32 s65, s73, s75
    s_mov_b32 s66, 0x700000
    s_mov_b32 s67, 0x00020000
    s_lshr_b32 s7, s2, 3
    s_lshl_b32 s7, s7, 2
    s_lshr_b32 s69, s{S_W}, 1
    s_add_u32 s69, s69, s7
    s_lshl_b32 s69, s69, 2
    s_add_u32 s69, s69, {PFR}
    s_mul_i32 s69, s69, 7168
    s_and_b32 s7, s2, 7
    s_mul_i32 s7, s7, 1792
    s_add_u32 s69, s69, s7
    v_and_b32 v253, 15, v0
    v_min_u32 v253, 13, v253
    v_lshlrev_b32 v253, 7, v253
    v_lshrrev_b32 v252, 4, v0
    v_mul_u32_u24 v252, 7168, v252
    v_add_u32 v253, v253, v252
    """)
    a(f"""
    v_lshrrev_b32 v246, 2, v0
    v_and_b32 v246, 3, v246                   ; r
    v_and_b32 v247, 3, v0                    ; c
    v_and_b32 v248, 1, v243
    v_lshl_add_u32 v248, v248, 2, v246
    v_lshrrev_b32 v249, 1, v243
    v_lshl_add_u32 v248, v249, 4, v248
    v_mul_u32_u24 v248, 96, v248
    v_lshl_add_u32 v{V_GA}, v247, 3, v248
    ; S address: 12288 + n*128 + ((g ^ (n>>1))*16)
    v_lshrrev_b32 v248, 1, v244
    v_xor_b32 v248, v248, v243
    v_lshlrev_b32 v248, 4, v248
    v_lshl_add_u32 v248, v244, 7, v248
    v_add_u32 v{V_SA0}, 12288, v248
    v_xor_b32 v{V_SA1}, 64, v{V_SA0}
    """)
    if not LN: param_loads(True)
    F1 = []
    def I(q, lst):
        for x in lst: q.append(("i", x))
    t = T1 + 8
    I(F1, [
        f"v_lshrrev_b32 v{t}, 4, v0",
        f"v_lshrrev_b32 v{t+1}, 2, v0",
        f"v_and_b32 v{t+1}, 3, v{t+1}",
        f"v_and_b32 v{t+2}, 3, v0",
        f"v_lshl_add_u32 v{t+3}, v{t}, 3, v{t+1}",
        f"v_lshlrev_b32 v{t+3}, 7, v{t+3}",
        f"v_lshl_add_u32 v{t+3}, v{t+2}, 3, v{t+3}",
        f"v_lshrrev_b32 v{t+4}, 1, v{t+1}",
        f"v_and_b32 v{t+5}, 1, v{t}",
        f"v_lshl_or_b32 v{t+4}, v{t+5}, 1, v{t+4}",
    ])
    for w in range(4):
        I(F1, [f"v_xor_b32 v{t+5}, {w}, v{t+4}", f"v_lshl_add_u32 v{GA2[w]}, v{t+5}, 5, v{t+3}"])
    I(F1, [
        f"s_lshl_b32 s7, s{S_W}, 3",
        f"v_lshrrev_b32 v{t+6}, 3, v0",
        f"v_add_u32 v{t+6}, s7, v{t+6}",
        f"v_mul_u32_u24 v{t+6}, 7168, v{t+6}",
        f"s_and_b32 s7, s{S_W}, 1",
        f"s_lshl_b32 s7, s7, 1",
        f"v_and_b32 v{t+7}, 1, v{t}",
        f"v_or_b32 v{t+7}, s7, v{t+7}",
        f"v_lshrrev_b32 v{t+8}, 1, v0",
        f"v_and_b32 v{t+8}, 3, v{t+8}",
        f"v_xor_b32 v{t+7}, v{t+7}, v{t+8}",
        f"v_lshl_add_u32 v{t+6}, v{t+7}, 5, v{t+6}",
        f"v_and_b32 v{t+8}, 1, v0",
        f"v_lshl_add_u32 v{V_D0B}, v{t+8}, 4, v{t+6}",
        f"v_and_b32 v{t+2}, 15, v0",
        f"v_lshrrev_b32 v{t+6}, 2, v{t+2}",
        f"v_lshlrev_b32 v{t+6}, 3, v{t+6}",
        f"v_lshl_add_u32 v{t+6}, v{t+5-5+0}, 0, v{t+6}" if False else f"v_and_b32 v{t+7}, 1, v{t}",
        f"v_lshl_add_u32 v{t+6}, v{t+7}, 2, v{t+6}",
        f"v_and_b32 v{t+7}, 3, v{t+2}",
        f"v_add_u32 v{t+6}, v{t+6}, v{t+7}",
        f"v_lshlrev_b32 v{t+6}, 4, v{t+6}",
        f"v_lshrrev_b32 v{t+7}, 1, v{t}",
        f"v_lshl_add_u32 v{V_ST}, v{t+7}, 15, v{t+6}",
        f"v_lshlrev_b32 v{V_P16}, 4, v{t+2}",
        f"s_mul_i32 s7, s{S_W}, 1792",
        f"s_add_u32 s7, s7, {SCR_W}",
        f"v_lshl_add_u32 v{V_SW}, v{t}, 8, v{V_P16}",
        f"v_add_u32 v{V_SW}, s7, v{V_SW}",
        f"s_lshl_b32 s7, s{S_W}, 8",
        f"s_add_u32 s7, s7, {TABLE}",
        f"v_add_u32 v{V_TB}, s7, v{V_P16}",
        *([f"s_mul_i32 s{S_ST}, s{S_CG}, {14*32768}"] if not AL else
          [f"s_lshr_b32 s{S_T}, s{S_CG}, 2", f"s_mul_i32 s{S_T}, s{S_T}, {56*32768}", f"s_and_b32 s{S_ST}, s{S_CG}, 3",
           f"s_mul_i32 s{S_ST}, s{S_ST}, {6*32768}", f"s_add_u32 s{S_ST}, s{S_ST}, s{S_T}"]),
        f"s_add_u32 s{S_ST}, s{S_ST}, s{S_TW}",
        f"s_lshl_b32 s{S_SS}, s{S_CG}, 17",
        f"s_add_u32 s{S_SS}, s{S_SS}, s{S_TW}",
        f"s_add_u32 s{S_SS}, s{S_SS}, {448*32768}",
        f"s_lshl_b32 s{S_ER}, s{S_CG}, 12",
        f"s_lshl_b32 s7, s{S_RB}, 8",
        f"s_add_u32 s{S_ER}, s{S_ER}, s7",
        f"s_add_u32 s{S_EW}, s{S_ER}, {7*256}",
        (f"s_mul_i32 s{S_XBO}, s2, 49152" if K3V == 2 else f"s_lshl_b32 s{S_XBO}, s2, {14 if XB16 else 15}"),
        (f"s_mul_i32 s7, s{S_W}, 6144" if K3V == 2 else f"s_lshl_b32 s7, s{S_W}, {11 if XB16 else 12}"),
        f"s_add_u32 s{S_XBO}, s{S_XBO}, s7",
        f"v_mov_b32 v{t+12}, 0", f"v_mov_b32 v{t+13}, 0", f"v_mov_b32 v{t+14}, 0", f"v_mov_b32 v{t+15}, 0",
        f"ds_write_b128 v{V_SW}, {vr(t+12,4)}",
        f"ds_write_b128 v{V_TB}, {vr(t+12,4)}",
        f"v_mov_b32 v{t+16}, -1", f"v_mov_b32 v{t+17}, -1", f"v_mov_b32 v{t+18}, -1", f"v_mov_b32 v{t+19}, -1",
        f"v_lshlrev_b32 v{t+20}, 4, v0",
    ])
    for k in range((2 if XB16 else 4) if not int(opts.get("noxb", 0)) else 0):
        I(F1, [f"buffer_store_dwordx4 {vr(t+16,4)}, v{t+20}, s[{S_XB}:{S_XB+3}], s{S_XBO} offen offset:{k*1024} {opts.get('pfst','')}".rstrip()])
    if K3V == 2:
        for k in range(2):
            I(F1, ([f"s_add_u32 s{S_XBO}, s{S_XBO}, 4096"] if k == 0 else []) + [f"buffer_store_dwordx4 {vr(t+16,4)}, v{t+20}, s[{S_XB}:{S_XB+3}], s{S_XBO} offen offset:{k*1024} {opts.get('pfst','')}".rstrip()])
    F1.append(("need", [("PL", i, b) for i in range(3) for b in (0, 1)]))
    u = T1 + 32
    for b in (0, 1):
        lre, lim, dt = PL + b, PL + 2 + b, PL + 4 + b
        q = u + 8 * b
        I(F1, [
            f"v_lshlrev_b32 v{lre}, 16, v{lre}",
            f"v_lshlrev_b32 v{lim}, 16, v{lim}",
            f"v_lshlrev_b32 v{dt}, 16, v{dt}",
            f"v_mul_f32 v{dt}, {L2E}, v{dt}",
            f"v_exp_f32 v{dt}, v{dt}",
            f"v_cvt_pk_bf16_f32 v{dt}, v{dt}, v{dt}",
            f"v_and_b32 v{dt}, 0xffff0000, v{dt}",
            f"v_mul_f32 v{q}, v{dt}, v{lre}",
            f"v_mul_f32 v{q+1}, v{dt}, v{lim}",
            f"v_mul_f32 v{LAM+b}, {L2E}, v{q}",
            f"v_mul_f32 v{TH+b}, 0x3e22f983, v{q+1}",
        ])
    I(F1, power(A1, "1.0", u + 16))
    for b in (0, 1):
        lre, lim = PL + b, PL + 2 + b
        ar, ai = A1 + 2 * b, A1 + 2 * b + 1
        q = u + 8 * b
        I(F1, [
            f"v_add_f32 v{q}, -1.0, v{ar}",
            f"v_mul_f32 v{q+1}, v{lre}, v{lre}",
            f"v_fmac_f32 v{q+1}, v{lim}, v{lim}",
            f"v_rcp_f32 v{q+1}, v{q+1}",
            f"v_mul_f32 v{q+2}, v{q}, v{lre}",
            f"v_fmac_f32 v{q+2}, v{ai}, v{lim}",
            f"v_mul_f32 v{q+3}, v{ai}, v{lre}",
            f"v_fma_f32 v{q+3}, -v{q}, v{lim}, v{q+3}",
            f"v_add_f32 v{q+1}, v{q+1}, v{q+1}",
            f"v_mul_f32 v{CF+2*b}, v{q+2}, v{q+1}",
            f"v_mul_f32 v{CF+2*b+1}, v{q+3}, v{q+1}",
        ])
    I(F1, power(A8, "0x41000000", u + 16))
    I(F1, power(A32, "0x42000000", u + 16))

    F2 = []
    R0, R1, R2 = PG(0), PG(1), PG(2)
    I(F2, glu(0, flags))
    F2.append(("atS",))
    cur = [(SRE(b), SIM(b)) for b in (0, 1)]
    for j in range(1, 8):
        d = R0 if (j & 1) else R0 + 4
        for b in (0, 1):
            F2.append(("i", f"v_fma_f32 v{d+2*b}, v{A1+2*b}, v{cur[b][0]}, v{SRE(b)+j}"))
            F2.append(("i", f"v_fma_f32 v{d+2*b+1}, v{A1+2*b}, v{cur[b][1]}, v{SIM(b)+j}"))
        for b in (0, 1):
            F2.append(("i", f"v_fma_f32 v{d+2*b}, -v{A1+2*b+1}, v{cur[b][1]}, v{d+2*b}"))
            F2.append(("i", f"v_fma_f32 v{d+2*b+1}, v{A1+2*b+1}, v{cur[b][0]}, v{d+2*b+1}"))
        cur = [(d + 2 * b, d + 2 * b + 1) for b in (0, 1)]
    I(F2, [f"ds_write_b128 v{V_SW}, {vr(R0,4)} offset:768"])
    for k in range(3):
        F2.append(("t", f"ds_read_b128 {vr(R0+4+4*k,4)}, v{V_SW} offset:{256*k}", ("SW", k)))
    F2.append(("gapn", 3))
    F2.append(("need", [("SW", 2)]))
    I(F2, quad_mac(R0 + 8, A8, R0 + 4))
    I(F2, quad_mac(R0 + 12, A8, R0 + 8))
    I(F2, quad_mac(R0, A8, R0 + 12))
    F2.append(("g", ["s_mov_b32 exec_lo, 0", "s_mov_b32 exec_hi, 0xffff0000",
                     (f"ds_write_b128 v{V_TB}, {vr(R0,4)} offset:{7*256}", "TW"), "s_mov_b64 exec, -1"]))
    F2.append(("mark", "TW"))
    F2.append(("at1",))
    I(F2, glu(1, flags))
    F2.append(("afterbar", "TW"))
    rows = [R1, R1 + 4, R1 + 8, R1 + 12, R0 + 4, R0 + 8, Q0]
    for k in range(7):
        F2.append(("t", f"ds_read_b128 {vr(rows[k],4)}, v{V_TB} offset:{256*k}", ("TR", k)))
    F2.append(("gapn", 2))
    for k in range(1, 7):
        F2.append(("need", [("TR", k - 1), ("TR", k)]))
        I(F2, quad_mac(rows[k], A32, rows[k-1]))
    I(F2, quad_mac(R0, A32, Q0))
    I(F2, [f"s_mov_b32 s7, 0xfffffffe"])
    I(F2, [f"v_min_u32 v{R0+r}, s7, v{R0+r}" for r in range(4)])
    F2.append(("g", ["s_mov_b32 exec_lo, 0", "s_mov_b32 exec_hi, 0xffff0000",
                     f"buffer_store_dwordx4 {vr(R0,4)}, v{V_P16}, s[{S_EXW}:{S_EXW+3}], s{S_EW} offen sc1", "s_mov_b64 exec, -1"]))
    if not LP: F2.append(("stamp", 4))
    I(F2, [f"v_lshrrev_b32 v{R1+12}, 4, v0", f"v_lshlrev_b32 v{R1+12}, 3, v{R1+12}", f"v_cvt_f32_u32 v{R1+13}, v{R1+12}"])
    I(F2, power(R1, f"v{R1+13}", R1 + 4))
    I(F2, quad_mac(R0 + 12, R1, Q0))
    I(F2, [f"s_lshl_b32 s7, s{S_W}, 5", f"v_add_u32 v{V_D0}, s7, v{R1+12}", f"v_cvt_f32_u32 v{V_D0}, v{V_D0}"])
    F2.append(("at", int(opts.get("pollat", 0))))
    prow = [R1, R1 + 4, R1 + 8, R1 + 12, R0, R0 + 4, R0 + 8]
    def poll_loads(tagged):
        o = []
        for k in range(7):
            s = f"buffer_load_dwordx4 {vr(prow[k],4)}, v{V_P16}, s[{S_EXR}:{S_EXR+3}], s{S_ER} offen offset:{256*k} sc1"
            o.append((s, ("PR", k)) if tagged else s)
        return o
    if POLLFIRST:
        for x in poll_loads(True): F2.append(("t", x[0], x[1]))
    I(F2, glu(2, flags))
    I(F2, power(R2, "0x43800000", R2 + 8))
    I(F2, power(R2 + 4, f"v{V_D0}", R2 + 8))
    if not POLLFIRST:
        for x in poll_loads(True): F2.append(("t", x[0], x[1]))
    F2.append(("gapn", int(opts.get("pollgap", 0))))
    F2.append(("need", [("PR", 6)]))
    def maxchain():
        m = V_D2
        regs = [r + i for r in prow for i in range(4)]
        o = [f"v_max3_u32 v{m}, v{regs[0]}, v{regs[1]}, v{regs[2]}"]
        for k in range(3, 27, 2):
            o.append(f"v_max3_u32 v{m}, v{m}, v{regs[k]}, v{regs[k+1]}")
        o.append(f"v_max_u32 v{m}, v{m}, v{regs[27]}")
        o.append(f"v_cmp_eq_u32 vcc, -1, v{m}")
        return o
    I(F2, maxchain())
    F2.append(("g", ["s_nop 3", "s_cmp_eq_u64 vcc, 0", "s_cbranch_scc0 K2_SLOW", "K2_BACK:"]))
    for k in range(1, 7):
        I(F2, quad_mac(prow[k], R2, prow[k-1]))
    I(F2, quad_mac(R0 + 12, R2 + 4, R0 + 8))
    H = [R0 + 12, R2 + 8]
    TT = R2 + 12
    for j in range(8):
        s_, d = H[j & 1], H[(j + 1) & 1]
        for b in (0, 1):
            F2.append(("i", f"v_fma_f32 v{d+2*b}, v{A1+2*b}, v{s_+2*b}, v{SRE(b)+j}"))
            F2.append(("i", f"v_fma_f32 v{d+2*b+1}, v{A1+2*b}, v{s_+2*b+1}, v{SIM(b)+j}"))
        for b in (0, 1):
            F2.append(("i", f"v_fma_f32 v{d+2*b}, -v{A1+2*b+1}, v{s_+2*b+1}, v{d+2*b}"))
            F2.append(("i", f"v_fma_f32 v{d+2*b+1}, v{A1+2*b+1}, v{s_+2*b}, v{d+2*b+1}"))
        for b in (0, 1):
            F2.append(("i", f"v_mul_f32 v{TT+2*b}, v{CF+2*b+1}, v{d+2*b+1}"))
            F2.append(("i", f"v_mul_f32 v{TT+2*b+1}, v{CF+2*b+1}, v{d+2*b}"))
        for b in (0, 1):
            F2.append(("i", f"v_fma_f32 v{SRE(b)+j}, v{CF+2*b}, v{d+2*b}, -v{TT+2*b}"))
            F2.append(("i", f"v_fma_f32 v{SIM(b)+j}, -v{CF+2*b}, v{d+2*b+1}, -v{TT+2*b+1}"))
    SEL = R1
    I(F2, [
        f"v_and_b32 v{R1+8}, 15, v0",
        f"v_lshrrev_b32 v{R1+9}, 2, v{R1+8}",
        f"v_lshrrev_b32 v{R1+10}, 4, v0",
        f"v_and_b32 v{R1+11}, 1, v0",
        f"v_lshlrev_b32 v{R1+11}, 4, v{R1+11}",
        f"v_mov_b32 v{R1+12}, 0x3f80",
        f"v_lshlrev_b32 v{R1+12}, v{R1+11}, v{R1+12}",
        f"v_cmp_eq_u32 vcc, v{R1+9}, v{R1+10}",
        f"v_mov_b32 v{SEL}, 0", f"v_mov_b32 v{SEL+1}, 0",
        f"v_cndmask_b32 v{R1+12}, 0, v{R1+12}, vcc",
        f"v_and_b32 v{R1+13}, 2, v0",
        f"v_cmp_eq_u32 vcc, 0, v{R1+13}",
        f"v_mov_b32 v{SEL+4}, 0", f"v_mov_b32 v{SEL+5}, 0",
        f"v_cndmask_b32 v{SEL+2}, 0, v{R1+12}, vcc",
        f"v_cndmask_b32 v{SEL+3}, v{R1+12}, 0, vcc",
    ])
    outs = [(SRE(0), 0), (SRE(1), 65536), (SIM(0), 4194304), (SIM(1), 4194304 + 65536)]
    for k, (X, off) in enumerate(outs):
        for q in range(4):
            F2.append(("i", f"v_cvt_pk_bf16_f32 v{X+q}, v{X+2*q}, v{X+2*q+1}"))
    for k, (X, off) in enumerate(outs):
        d1 = R1 + 8 + 4 * (k & 1)
        F2.append(("i", f"v_mfma_f32_16x16x32_bf16 {vr(X+4,4)}, {vr(X,4)}, {vr(SEL+2,4)}, 0"))
        F2.append(("i", f"v_mfma_f32_16x16x32_bf16 {vr(d1,4)}, {vr(X,4)}, {vr(SEL,4)}, 0"))
        if k >= 1:
            Xp, offp = outs[k-1]
            I(F2, pack_store(Xp, Xp + 4, R1 + 8 + 4 * ((k - 1) & 1), f"s_add_u32 s{S_T}, s{S_SS}, {offp}", flags))
        else:
            F2.append(("gapn", 3))
    F2.append(("gapn", 3))
    Xp, offp = outs[3]
    I(F2, pack_store(Xp, Xp + 4, R1 + 12, f"s_add_u32 s{S_T}, s{S_SS}, {offp}", flags))
    if NOEPI:
        F2 = [("label", "K2_BACK")]

    pairs = []
    def mm(d, A, B, first):
        return f"v_mfma_f32_16x16x32_bf16 {vr(d,4)}, {vr(A,4)}, {vr(B,4)}, {'0' if first else vr(d,4)}"
    def add_pair(n, kind, idx):
        s = n // 2; h = n & 1
        slot = (s % NSLOT) * SLOT
        first = (n % 32 == 0)
        if kind == "S":
            im, b = idx
            rd = [("ds_read_b128", (V_SA0, V_SA1)[h], slot, im * 4096 + b * 2048, 0, 4)]
            D = SIM(b) if im else SRE(b)
        elif kind == "W1":
            j, up = idx
            o = up * 6144 + h * 3072 + j * 32
            rd = [("ds_read_b64_tr_b16", V_GA, slot, o, 0, 2), ("ds_read_b64_tr_b16", V_GA, slot, o + 768, 2, 2)]
            D = PU(j) if up else PG(j)
        else:
            j, up = idx
            o = up * 8192 + (1 - h if REV[0] else h) * 4096
            rd = [("ds_read_b64_tr_b16", GA2[j-3], slot, o, 0, 2), ("ds_read_b64_tr_b16", GA2[j-3], slot, o + 512, 2, 2)]
            D = PU(j) if up else PG(j)
        pairs.append(dict(n=n, stage=s, kind=kind, rd=rd, D=D, first=first, idx=idx))
    def add_S(n):
        for im in (0, 1):
            for b in (0, 1): add_pair(n, "S", (im, b))
    for n in range(32 - NT1):
        add_S(n)
        for j in range(3):
            for up in (0, 1): add_pair(n, "W1", (j, up))
    for n in range(32 - NT1, 32):
        for up in (0, 1): add_pair(n, "W1", (0, up))
    F2START = len(pairs) + (1 if NT1 else 0)
    for n in range(32 - NT1, 32): add_S(n)
    SDONE = len(pairs) + 1
    for j in (1, 2):
        for n in range(32 - NT1, 32):
            for up in (0, 1): add_pair(n, "W1", (j, up))
    if NT1 == 0: F2START = SDONE = len(pairs) + 1
    P1END = len(pairs)
    NTAIL = int(opts.get("ntail", 4))
    for n in range(32, 64 - NTAIL):
        for j in range(3, 7):
            for up in (0, 1): add_pair(n, "W2", (j, up))
    tail0 = len(pairs)
    for j in range(3, 7):
        for n in range(64 - NTAIL, 64):
            for up in (0, 1): add_pair(n, "W2", (j, up))
    NP = len(pairs)
    F3 = []
    if AL:
        I(F3, [f"s_and_b32 s{S_O96}, s{S_CG}, 3", f"s_lshl_b32 s{S_O96}, s{S_O96}, 16", f"s_add_u32 s{S_O96}, s{S_O96}, {18*32768}",
               f"s_add_u32 s{S_ST}, s{S_ST}, s{S_O96}"])
    for j in range(3, 6):
        F3.append(("at", tail0 + (j - 2) * 2 * NTAIL + 1))
        I(F3, glu(j, flags))

    base = {}
    state = dict(bar=-1, marks={}, nbar=0)
    hq = []
    pend = []
    BAR2 = int(opts.get("bar2", 0))
    def barrier_for(stage):
        while state["bar"] < stage:
            s = state["bar"] + 1
            two = (BAR2 == 1 and s < 16) or BAR2 == 2 or (BAR2 == 3 and s >= 16)
            if two and (s & 1):
                state["bar"] = s
            else:
                st.need(*(dtags(s) + (dtags(s + 1) if two else []) + pend))
                pend.clear()
                st.ins("s_barrier")
                state["bar"] = s; state["nbar"] += 1
            if (s >= 2 or NPRO != 100) and s + 4 < 32:
                hq.extend(dma(s + 4))
    def read_ins(k):
        p = pairs[k]
        barrier_for(p["stage"])
        o = []
        for (op, areg, slot, off, ro, cnt) in p["rd"]:
            cur = base.get(areg, 0)
            rel = slot + off - cur
            if rel < 0 or rel > 65535 - 1024:
                delta = slot - cur
                o.append((f"v_add_u32 v{areg}, {delta & 0xffffffff}, v{areg}" if delta >= 0 else f"v_subrev_u32 v{areg}, {-delta}, v{areg}", None))
                base[areg] = slot
                rel = off
            if SKIP and k % SKIP == SKIP - 1: continue
            o.append((f"{op} {vr(wr(k)+ro,cnt)}, v{areg} offset:{rel}", ("W", k, ro)))
        return o
    SKIP = int(opts.get("skiprd", 0))
    def wtags(k): return [("W", k, r[4]) for r in pairs[k]["rd"]] if not (SKIP and k % SKIP == SKIP - 1) else []
    PROGAP = int(opts.get("progap", 2))
    fq = dict(q=F1, pos=0, credit=0.0, hold=0)
    def run_fillers(i, budget):
        used = 0
        if pro_rest and budget < 10**8:
            state["pg"] = state.get("pg", 0) + 1
            if state["pg"] >= PROGAP:
                state["pg"] = 0
                emit_group(pro_rest.pop(0)); used += 1
        while hq and not pro_rest and used < max(budget, 1) + 1:
            g = hq.pop(0); emit_group(g); used += 1
        q = fq["q"]
        while fq["pos"] < len(q) and used < budget:
            it = q[fq["pos"]]
            k = it[0]
            if k == "i": st.ins(it[1]); used += 1
            elif k == "t": st.ins(it[1], it[2]); used += 1
            elif k == "g": emit_group(it[1]); used += 2
            elif k == "need": st.need(*it[1])
            elif k == "mark": pend.append(it[1]); state["marks"][it[1]] = state["nbar"]
            elif k == "afterbar":
                if state["nbar"] <= state["marks"][it[1]]: return
            elif k == "at":
                if i < it[1]: return
            elif k == "atS":
                if i < SDONE: return
            elif k == "at1":
                if i < P1END + 1: return
            elif k == "gapn":
                if fq["hold"] < it[1]:
                    fq["hold"] += 1; return
                fq["hold"] = 0
            elif k == "label": a.label(it[1])
            elif k == "stamp": P.stamp(it[1])
            fq["pos"] += 1
    def flush_fillers():
        while hq or fq["pos"] < len(fq["q"]):
            before = (len(hq), fq["pos"], fq["hold"])
            run_fillers(10**9, 1000)
            if (len(hq), fq["pos"], fq["hold"]) == before:
                raise RuntimeError("filler stuck %r" % (fq["q"][fq["pos"]],))
            if fq["hold"]: st.ins("s_nop 3")
    for k in range(NWR - 1):
        for ins, tag in read_ins(k): st.ins(ins, tag)
    if not LP: P.stamp(3)
    acc_credit = 0.0
    last_use = {}
    for i, p in enumerate(pairs): last_use[p["n"]] = i
    xat = {}
    for m in range(NXR, 64): xat.setdefault(last_use[m - NXR + (1 if FOLD else 0)] + 1 if m + 1 < 64 or not FOLD else 0, []).append(m)
    for i in range(NP):
        p = pairs[i]
        if i == F2START:
            flush_fillers()
            fq.update(q=F2, pos=0, hold=0)
        if i == P1END and not LP:
            P.stamp(5)
        if i == 1 and LP:
            P.stamp(6)
        if PF3 >= tail0 and i == PF3:
            hq.append([f"v_lshlrev_b32 v145, 7, v0", ("buffer_load_dword v144, v145, s[60:63], s68 offen", ("PF", 4))])
        for q in range(NPF3):
            if 0 <= PF3 < tail0 and i == PF3 + q * PF3D:
                hq.append([(f"buffer_load_dword v255, v254, s[60:63], s68 offen offset:{q * (64 // NPF3) * 128 if q * (64 // NPF3) * 128 < 4096 else 0}", ("PF", 3))] if q * (64 // NPF3) * 128 < 4096 else
                          [f"s_add_u32 s{S_T}, s68, {q * (64 // NPF3) * 128}", (f"buffer_load_dword v255, v254, s[60:63], s{S_T} offen", ("PF", 3))])
        if i == PF2A:
            hq.append([("buffer_load_dword v255, v253, s[64:67], s69 offen", ("PF", 1))])
        if i == PF2B:
            hq.append([f"s_add_u32 s69, s69, {512*7168}", ("buffer_load_dword v255, v253, s[64:67], s69 offen", ("PF", 2))])
        if i == P1END - 1:
            st.need(*[t for t in (("PF", 1), ("PF", 2), ("PF", 3)) if t in st.tags])
        if i == tail0:
            if fq["pos"] < len(fq["q"]): print("K2: %d scan fillers left at tail" % (len(fq["q"]) - fq["pos"]))
            flush_fillers()
            fq.update(q=F3, pos=0, hold=0)
        rate = 1.0 if i < F2START else (RATE2 if i < tail0 else RATE3)
        n = p["n"]
        nx = 63 - n if (REV[0] and 32 <= n < 38) else n
        tg = wtags(i) + [("X", nx, 0), ("X", nx, 1)]
        if i % 2 == 0 and i + 1 < NP:
            tg += wtags(i + 1)
        st.need(*tg)
        rd = read_ins(i + NWR - 1) if i + NWR - 1 < NP else []
        g1 = []; g2 = []
        seen = 0
        for x in rd:
            if x[1] is None: (g1 if seen == 0 else g2).append(x)
            else:
                (g1 if seen == 0 else g2).append(x); seen += 1
        W, D = wr(i), p["D"]
        for tb in (0, 1):
            X = xr(n, tb - 0)
            if p["kind"] == "S": st.ins(mm(D + 4 * tb, X, W, p["first"]))
            else: st.ins(mm(D + 4 * tb, W, X, p["first"]))
            for ins, tag in (g1 if tb == 0 else g2): st.ins(ins, tag)
            if tb == 0:
                for m in xat.get(i, []): hq.extend(xload(m))
            acc_credit += rate
            bud = int(acc_credit); acc_credit -= bud
            run_fillers(i, bud)
    a("s_nop 7"); st.n += 8
    if not LP: P.stamp(6)
    flush_fillers()
    for x in glu(6, flags): st.ins(x)
    print("K2: nops inserted", st.nops, "slots", st.n)
    P.stamp(7)
    if P.on:
        if not LP: a(f"s_mov_b32 s{P.regs[8]}, s{S_CNT}")
        a("s_waitcnt vmcnt(0)")
    P.stamp(9, real=True)
    P.flush(70, 71, 60, S_W, 40, 41)
    a("s_endpgm")
    a.label("K2_SLOW")
    a(f"s_mov_b32 s{S_CNT}, 0")
    a.label("K2_SLOWL")
    for x in poll_loads(False): a(x)
    a("s_waitcnt vmcnt(0)")
    for x in maxchain(): a(x)
    a(f"""
    s_add_u32 s{S_CNT}, s{S_CNT}, 1
    s_nop 3
    s_cmp_eq_u64 vcc, 0
    s_cbranch_scc1 K2_BACK
    s_cmp_lt_u32 s{S_CNT}, 100000
    s_cbranch_scc1 K2_SLOWL
    s_branch K2_BACK
    """)
    a.label("K2_END")
    a("s_endpgm")
    return 256
```

```python
from common import *

K3 = "ssm_gemm2_kernel"
SLOT = 32768
NSLOT = 5
K3_LDS = NSLOT * SLOT

V_VOFF = 1
G_AD = 2
C_AD = 10
V_OUT = 14
V_XB = 15
TR = 16
VR = 48
ACC = 112
TMP = 176
V_BX, V_BN, V_BD = 216, 217, 218
NV = 220
def tf(b): return TR + 4 * b
def vf(s, tb): return VR + 8 * s + 4 * tb
def acc(b, tb): return ACC + 4 * (2 * b + tb)

S_WD, S_CRE, S_CIM, S_ACT, S_X, S_XN, S_D, S_XB, S_FL, S_OUT = 8, 12, 16, 20, 24, 28, 32, 36, 40, 44
S_T0, S_D0, S_V, S_CUR, S_DEL, S_CNT, S_PS, S_PM = 64, 65, 66, 67, 68, 69, 70, 71
S_XBO, S_XBP, S_XO1, S_FP, S_OS = 72, 73, 74, 75, 76

NOT = False
WRAP = 0
PACE = 0
TFL = ''
def t_read(kind, b, st):
    if kind == "G":
        return [f"ds_read_b64_tr_b16 {vr(tf(b),2)}, v{G_AD+b} offset:{st*8192}",
                f"ds_read_b64_tr_b16 {vr(tf(b)+2,2)}, v{G_AD+b} offset:{st*8192+1024}"]
    return [f"ds_read_b128 {vr(tf(b),4)}, v{C_AD+st} offset:{(b ^ 4)*4096}"]

def body(a, kind, nxt, opt, loop=False):
    nov = opt.get("nov")
    per = {"G": 2, "C": 1, None: 0}
    extra_vm = 0
    base_q = list(opt["base_loads"]) if nxt is None else []
    for sg in range(2):
        nk = kind if sg == 0 else nxt
        last_stage = (sg == 1 and nxt is None)
        fill = {}
        def put(st, b, g, ins):
            fill.setdefault((st, b, g), []).append(ins)
        for st in range(4):
            n = sg * 4 + st
            pv = (n - 1) % 8
            if not nov and (nxt is not None or n == 0):
                put(st, 1, 1, f"buffer_load_dwordx4 {vr(vf(pv,0),4)}, v{V_VOFF}, s[{S_ACT}:{S_ACT+3}], s{S_V} offen {opt['vfl']}")
                put(st, 2, 1, f"buffer_load_dwordx4 {vr(vf(pv,1),4)}, v{V_VOFF}, s[{S_ACT}:{S_ACT+3}], s{S_V} offen offset:{opt['voff2']} {opt['vfl']}")
                if opt.get("wrap"):
                    put(st, 2, 2, f"s_add_u32 s78, s78, 131072")
                    put(st, 3, 1, f"s_and_b32 s78, s78, 0x{opt['wrap']*4*131072-1:x}")
                    put(st, 3, 2, f"s_add_u32 s{S_V}, s77, s78")
                else:
                    put(st, 2, 2, f"s_add_u32 s{S_V}, s{S_V}, 131072")
            elif nxt is None:
                for slot in ((1, 1), (2, 1), (3, 1), (4, 1), (5, 1), (6, 1)):
                    while base_q and not base_q[0].startswith("buffer"):
                        put(st, slot[0], slot[1], base_q.pop(0))
                    if base_q:
                        put(st, slot[0], slot[1], base_q.pop(0))
        if not last_stage:
            put(0, 0, 1, f"s_cmp_eq_u32 s{S_CUR}, {(NSLOT-1)*SLOT}")
            put(0, 0, 2, f"s_cselect_b32 s{S_DEL}, s81, s80")
            put(1, 4, 1, f"s_add_u32 s{S_CUR}, s{S_CUR}, s{S_DEL}")
            if kind == "G" and nk == "G":
                for r, pos in enumerate([(2,3,1), (2,4,1), (2,4,2), (2,5,1), (2,6,1), (2,7,1), (3,3,1), (3,4,1)]):
                    put(*pos, f"v_add_u32 v{G_AD+r}, s{S_DEL}, v{G_AD+r}")
            if kind == "G" and nk == "C":
                for r, pos in enumerate([(2,4,1), (2,4,2), (2,5,1), (2,6,1)]):
                    put(*pos, f"v_add_u32 v{C_AD+r}, s{S_CUR}, v{C_AD+r}")
            if kind == "C":
                for st in range(4):
                    put(st, 4, 1, f"v_add_u32 v{C_AD+st}, s{S_DEL}, v{C_AD+st}")
            if opt.get("pace"):
                for st in range(4): put(st, 0, 2, "s_barrier")
            else:
                put(3, 0, 2, "s_barrier")
        if loop and sg == 1:
            put(3, 5, 1, f"s_sub_u32 s{S_CNT}, s{S_CNT}, 1")
            put(3, 6, 1, f"s_cmp_lg_u32 s{S_CNT}, 0")
        for st in range(4):
            n = sg * 4 + st
            nxk = kind if st < 3 else nk
            nxst = st + 1 if st < 3 else 0
            for b in range(8):
                if b % 2 == 0:
                    pc, pn = per[kind], per[nxk]
                    lg = {0: 5 * pc, 2: 4 * pc + pn, 4: 2 * pc + 3 * pn, 6: 5 * pn}[b]
                    w = f"lgkmcnt({min(lg,15)})"
                    if b == 0 and not nov:
                        if nxt is not None or n == 0:
                            vm = 12
                        else:
                            vm = 2 * (7 - n) + extra_vm
                        w = f"vmcnt({min(vm,63)}) " + w
                    a("s_waitcnt " + w)
                if b == 0:
                    rd = t_read(kind, 7, st)
                elif nxk is not None:
                    rd = t_read(nxk, b - 1, nxst)
                else:
                    rd = []
                g1 = rd[:1] + fill.get((st, b, 1), []); g2 = rd[1:] + fill.get((st, b, 2), [])
                for ins in g1 + g2:
                    if ins.startswith("buffer_load_dwordx2"): extra_vm += 1
                A, C0, C1 = tf(b), acc(b, 0), acc(b, 1)
                if opt["nomfma"]:
                    g1 = [x for x in g1 if not x.startswith("ds_read")]; g2 = [x for x in g2 if not x.startswith("ds_read")]
                    a.emit(g1); a.emit(g2)
                    continue
                a(f"v_mfma_f32_16x16x32_bf16 {vr(C0,4)}, {vr(A,4)}, {vr(vf(n,0),4)}, {vr(C0,4)}")
                a.emit(g1)
                a(f"v_mfma_f32_16x16x32_bf16 {vr(C1,4)}, {vr(A,4)}, {vr(vf(n,1),4)}, {vr(C1,4)}")
                a.emit(g2)
    if nxt is None:
        assert not base_q, base_q

def tail8(a, kind, opt):
    E = [(0, b) for b in range(8)] + [(s_, b) for s_ in range(1, 8) for b in range(4, 8)] + [(s_, b) for s_ in range(1, 8) for b in range(4)]
    N = len(E)
    def rd_of(p):
        s_, b = E[p]
        e = tf(p % 8); xo = (s_ >> 2) * SLOT; st = s_ & 3
        if kind == "G":
            return [f"ds_read_b64_tr_b16 {vr(e,2)}, v{G_AD+b} offset:{st*8192+xo}",
                    f"ds_read_b64_tr_b16 {vr(e+2,2)}, v{G_AD+b} offset:{st*8192+1024+xo}"]
        return [f"ds_read_b128 {vr(e,4)}, v{C_AD+st} offset:{(b ^ 4)*4096+xo}"]
    fill = {}
    def put(p, h, ins): fill.setdefault((p, h), []).append(ins)
    def spread(lst, p0, p1):
        hs = [(p, h) for p in range(p0, p1) for h in (1, 2)]
        for i, ins in enumerate(lst):
            put(*hs[i * len(hs) // len(lst)], ins)
    put(1, 1, f"buffer_load_dwordx4 {vr(vf(7,0),4)}, v{V_VOFF}, s[{S_ACT}:{S_ACT+3}], s{S_V} offen {opt['vfl']}")
    put(2, 1, f"buffer_load_dwordx4 {vr(vf(7,1),4)}, v{V_VOFF}, s[{S_ACT}:{S_ACT+3}], s{S_V} offen offset:{opt['voff2']} {opt['vfl']}")
    put(12, 2, "s_barrier")
    sg = opt["sgap"]
    spread(opt["send"], 36 + sg, 36 + sg + opt["sspan"])
    spread(opt["calc"], 3, 36 + sg)
    pl = opt["ppos"]
    for i, ins in enumerate(opt["ploads"]):
        put(min(pl + i // 2, N - 1), 1 + i % 2, ins)
    vmq = [("V", s_) for s_ in range(7) for _ in range(2)]
    per = {"G": 2, "C": 1}[kind]
    seen = set()
    for p, (s_, b) in enumerate(E):
        if p % 2 == 0:
            lg = per * len([j for j in range(p + 2, p + 7) if j < N])
            w = f"lgkmcnt({min(lg,15)})"
            if s_ not in seen:
                seen.add(s_)
                last = max(x for x, t in enumerate(vmq) if t == ("V", s_))
                w = f"vmcnt({min(len(vmq)-1-last,63)}) " + w
            a("s_waitcnt " + w)
        rd = rd_of(p + 7) if p + 7 < N else []
        for h in (1, 2):
            C = acc(b, h - 1)
            a(f"v_mfma_f32_16x16x32_bf16 {vr(C,4)}, {vr(tf(p % 8),4)}, {vr(vf(s_,h-1),4)}, {vr(C,4)}")
            for ins in (rd[:1] if h == 1 else rd[1:]) + fill.get((p, h), []):
                if ins.startswith("buffer"): vmq.append(("V", 7) if f"{vr(vf(7,0),4)}," in ins or f"{vr(vf(7,1),4)}," in ins else ("O", 0))
                a(ins)

def prod_issue(a, kind, paced=False):
    srdn = {"G": S_WD, "R": S_CRE, "I": S_CIM}[kind]
    vb = 16 if kind == "G" else 24
    for j in range(8):
        if paced and PACE and j in (2, 4, 6):
            a("s_barrier")
        if NOT: continue
        if j == 0:
            a(f"s_mov_b32 m0, s{S_PM}")
            a("s_nop 0")
        if j == 4:
            a(f"s_add_u32 m0, s{S_PM}, 4096")
            a("s_nop 0")
        a(f"buffer_load_dwordx4 v{vb+j}, s[{srdn}:{srdn+3}], s{S_PS} offen offset:{(j&3)*1024} {TFL} lds")
    if WRAP:
        inc = 262144 if kind == 'G' else 256
        a(f"s_add_u32 s82, s82, {inc}")
        a(f"s_and_b32 s82, s82, 0x{WRAP*inc-1:x}")
        a(f"s_add_u32 s{S_PS}, s83, s82")
    else:
        a(f"s_add_u32 s{S_PS}, s{S_PS}, {262144 if kind == 'G' else 256}")
    a(f"s_add_u32 s{S_PM}, s{S_PM}, {SLOT}")
    a(f"s_cmp_ge_u32 s{S_PM}, {NSLOT*SLOT}")
    a(f"s_cselect_b32 s7, {NSLOT*SLOT}, 0")
    a(f"s_sub_u32 s{S_PM}, s{S_PM}, s7")

def prod_loop(a, kind, n):
    if n == 0: return
    l = a.newlabel("K3_PL")
    a(f"s_mov_b32 s{S_CNT}, {n}")
    a.label(l)
    a("s_waitcnt vmcnt(16)")
    a("s_barrier")
    prod_issue(a, kind, True)
    a(f"s_sub_u32 s{S_CNT}, s{S_CNT}, 1")
    a(f"s_cmp_lg_u32 s{S_CNT}, 0")
    a(f"s_cbranch_scc1 {l}")

def cons_loop(a, kind, n, opt):
    if n == 0: return
    l = a.newlabel("K3_CL")
    a(f"s_mov_b32 s{S_CNT}, {n}")
    a.label(l)
    body(a, kind, kind, opt, loop=True)
    a(f"s_cbranch_scc1 {l}")

def gen_k3(a, out_flags="", prof=False, opts=None):
    opts = opts or {}
    opt = {"nov": int(opts.get("nov", 0))}
    global NOT, WRAP, PACE, TFL
    TFL = opts.get("tfl", "").replace("+", " ")
    opt["vfl"] = opts.get("vfl", "").replace("+", " ")
    opt["nomfma"] = int(opts.get("nomfma", 0))
    opt["vlin"] = int(opts.get("vlin", 0))
    opt["voff2"] = 1024 if opt["vlin"] else 256
    PACE = int(opts.get("pace", 0))
    opt["pace"] = PACE
    WRAP = int(opts.get("wrap", 0))
    opt["wrap"] = WRAP
    NOT = bool(int(opts.get("not", 0)))
    XB16 = int(opts.get("xb16", 0))
    TAIL = int(opts.get("tail", 0))
    assert not TAIL or XB16
    opt["sgap"] = int(opts.get("sgap", 3)); opt["sspan"] = int(opts.get("sspan", 8)); opt["ppos"] = int(opts.get("ppos", 60))
    xsf = opts.get("xsf", "sc1").replace("+", " "); xlf = opts.get("xlf", "sc1").replace("+", " ")
    kernel_begin(a, K3)
    P = Prof(a, prof, 2, list(range(84, 100)), 100)
    a("""
    s_cmp_ge_u32 s2, 256
    s_cbranch_scc1 K3_END
    """)
    P.stamp(0, real=True)
    P.stamp(1)
    a(f"""
    s_load_dwordx2 s[48:49], s[0:1], 96     ; w_down
    s_load_dwordx4 s[52:55], s[0:1], 40
    s_load_dwordx2 s[56:57], s[0:1], 120    ; ws
    s_load_dwordx2 s[58:59], s[0:1], 0      ; x
    s_load_dwordx2 s[60:61], s[0:1], 64     ; Dskip
    s_load_dwordx2 s[62:63], s[0:1], 104    ; out
    v_lshrrev_b32 v16, 6, v0
    v_and_b32 v0, 63, v0
    v_readfirstlane_b32 s3, v16             ; wave
    s_and_b32 s7, s2, 7                     ; xcd
    s_lshr_b32 s77, s2, 3                   ; j
    s_and_b32 s6, s7, 1                     ; hf
    s_lshr_b32 s78, s7, 1
    s_and_b32 s78, s78, 1                   ; nh
    s_lshr_b32 s79, s7, 2                   ; mh
    s_and_b32 s4, s77, 7
    s_lshl_b32 s79, s79, 3
    s_add_u32 s4, s4, s79
    s_lshr_b32 s5, s77, 3
    s_lshl_b32 s78, s78, 2
    s_add_u32 s5, s5, s78
    s_lshl_b32 s{S_T0}, s4, 7               ; t0
    s_lshl_b32 s{S_D0}, s5, 7               ; d0
    s_mov_b32 s80, {SLOT}
    s_mov_b32 s81, {-(NSLOT-1)*SLOT}
    s_mov_b32 s{S_FP}, 0xfffffffe
    v_and_b32 v17, 15, v0                   ; n
    v_lshrrev_b32 v18, 4, v0                ; g
    s_cmp_lt_u32 s3, 4
    s_cbranch_scc0 K3_PROD
    """)
    a(f"""
    v_lshlrev_b32 v19, 4, v17
    v_lshl_add_u32 v{V_VOFF}, v18, 15, v19          ; g*32768 + n*16
    s_lshl_b32 s77, s3, 5
    s_add_u32 s77, s77, s{S_T0}                     ; tw = t0 + 32w
    s_mul_i32 s{S_V}, s6, {352*32768}
    s_lshl_b32 s7, s77, 4
    s_add_u32 s{S_V}, s{S_V}, s7
    s_waitcnt lgkmcnt(0)
    """)
    if opt["vlin"]:
        a(f"v_lshlrev_b32 v{V_VOFF}, 4, v0")
        a(f"s_mul_i32 s{S_V}, s6, {352*32768}")
        a("s_lshl_b32 s7, s77, 6")
        a(f"s_add_u32 s{S_V}, s{S_V}, s7")
    srd(a, S_ACT, 56, 57, ACT_SZ, ACT_OFF)
    def vpro(n):
        a(f"buffer_load_dwordx4 {vr(vf(n,0),4)}, v{V_VOFF}, s[{S_ACT}:{S_ACT+3}], s{S_V} offen")
        a(f"buffer_load_dwordx4 {vr(vf(n,1),4)}, v{V_VOFF}, s[{S_ACT}:{S_ACT+3}], s{S_V} offen offset:256")
        a(f"s_add_u32 s{S_V}, s{S_V}, 131072")
    for n in range(1 if TAIL else 7): vpro(n)
    a(f"""
    v_lshlrev_b32 v20, 11, v17
    v_lshl_add_u32 v{V_BX}, v18, 3, v20             ; x: n*2048 + g*8
    v_lshrrev_b32 v21, 2, v17
    v_and_b32 v21, 1, v21
    v_lshlrev_b32 v21, 2, v21                       ; 4*((n>>2)&1)
    v_lshrrev_b32 v22, 3, v17
    v_add_u32 v21, v21, v22                         ; + (n>>3)
    v_and_b32 v22, 3, v17
    v_lshl_add_u32 v21, v21, 2, v22                 ; 16((n>>2)&1) + 4(n>>3) + (n&3)
    v_lshlrev_b32 v21, 4, v21
    v_lshrrev_b32 v22, 1, v18
    v_lshl_add_u32 v21, v22, 15, v21
    v_and_b32 v22, 1, v18
    v_lshl_add_u32 v{V_BN}, v22, 3, v21
    v_lshlrev_b32 v{V_BD}, 3, v18                   ; D: g*8
    s_lshl_b32 s78, s6, 6
    s_add_u32 s78, s78, s{S_D0}
    s_lshl_b32 s79, s77, 11
    s_lshl_b32 s7, s78, 1
    s_add_u32 s79, s79, s7
    s_add_u32 s{S_XO1}, s79, 32768
    s_lshl_b32 s82, s78, 12                         ; (dk/8)*32768
    s_lshl_b32 s7, s77, 4
    s_add_u32 s82, s82, s7
    s_lshl_b32 s83, s78, 1                          ; D soffset
    s_lshl_b32 s{S_OS}, s77, 12
    s_lshl_b32 s7, s78, 2
    s_add_u32 s{S_OS}, s{S_OS}, s7
    """)
    srd(a, S_X, 58, 59, 0x400000)
    srd(a, S_XN, 56, 57, XN_SZ, XN_OFF)
    srd(a, S_D, 60, 61, 2048)
    X0, N0, D0 = TMP, TMP + 16, TMP + 32
    bl = []
    for i in range(4):
        bl.append(f"buffer_load_dwordx2 {vr(X0+4*i,2)}, v{V_BX}, s[{S_X}:{S_X+3}], s79 offen offset:{32*i}")
        bl.append(f"buffer_load_dwordx2 {vr(X0+4*i+2,2)}, v{V_BX}, s[{S_X}:{S_X+3}], s{S_XO1} offen offset:{32*i}")
    for i in range(4):
        bl.append(f"buffer_load_dwordx2 {vr(N0+4*i,2)}, v{V_BN}, s[{S_XN}:{S_XN+3}], s82 offen")
        bl.append(f"buffer_load_dwordx2 {vr(N0+4*i+2,2)}, v{V_BN}, s[{S_XN}:{S_XN+3}], s82 offen offset:128")
        bl.append(f"buffer_load_dwordx2 {vr(D0+2*i,2)}, v{V_BD}, s[{S_D}:{S_D+3}], s83 offen offset:{32*i}")
        if i < 3: bl.append(f"s_add_u32 s82, s82, 65536")
    opt["base_loads"] = bl
    if TAIL:
        a.emit(bl)
        for n in range(1, 7): vpro(n)
        T = 220
        send = []
        for i in range(4):
            p, q_ = acc(4+i, 0), acc(4+i, 1)
            send += [f"v_cvt_pk_bf16_f32 v{p}, v{p}, v{p+1}", f"v_cvt_pk_bf16_f32 v{p+1}, v{p+2}, v{p+3}",
                     f"v_cvt_pk_bf16_f32 v{p+2}, v{q_}, v{q_+1}", f"v_cvt_pk_bf16_f32 v{p+3}, v{q_+2}, v{q_+3}"]
            send += [f"v_min_u32 v{p+r}, s{S_FP}, v{p+r}" for r in range(4)]
            send.append(f"buffer_store_dwordx4 {vr(p,4)}, v{V_XB}, s[{S_XB}:{S_XB+3}], s{S_XBO} offen offset:{i*1024} {xsf}")
        calc = []
        for i in range(4):
            calc += [f"v_lshlrev_b32 v{T}, 16, v{D0+2*i}", f"v_and_b32 v{T+1}, 0xffff0000, v{D0+2*i}",
                     f"v_lshlrev_b32 v{T+2}, 16, v{D0+2*i+1}", f"v_and_b32 v{T+3}, 0xffff0000, v{D0+2*i+1}"]
            for tb in range(2):
                nn = N0 + 4*i + 2*tb; xx = X0 + 4*i + 2*tb
                calc += [f"v_lshlrev_b32 v{T+4}, 16, v{nn}", f"v_and_b32 v{T+5}, 0xffff0000, v{nn}",
                         f"v_lshlrev_b32 v{T+6}, 16, v{nn+1}", f"v_and_b32 v{T+7}, 0xffff0000, v{nn+1}"]
                calc += [f"v_mul_f32 v{T+4+q}, v{T+4+q}, v{T+q}" for q in range(4)]
                calc += [f"v_cvt_pk_bf16_f32 v{T+4}, v{T+4}, v{T+5}", f"v_cvt_pk_bf16_f32 v{T+6}, v{T+6}, v{T+7}",
                         f"v_lshlrev_b32 v{nn}, 16, v{xx}", f"v_and_b32 v{nn+1}, 0xffff0000, v{xx}",
                         f"v_lshlrev_b32 v{xx}, 16, v{xx+1}", f"v_and_b32 v{xx+1}, 0xffff0000, v{xx+1}",
                         f"v_lshlrev_b32 v{T+5}, 16, v{T+4}", f"v_and_b32 v{T+4}, 0xffff0000, v{T+4}",
                         f"v_lshlrev_b32 v{T+7}, 16, v{T+6}", f"v_and_b32 v{T+6}, 0xffff0000, v{T+6}",
                         f"v_add_f32 v{nn}, v{nn}, v{T+5}", f"v_add_f32 v{nn+1}, v{nn+1}, v{T+4}",
                         f"v_add_f32 v{xx}, v{xx}, v{T+7}", f"v_add_f32 v{xx+1}, v{xx+1}, v{T+6}"]
        LD = [acc(4+i, 1) for i in range(4)]
        pl = [f"buffer_load_dwordx4 {vr(LD[k],4)}, v{V_XB}, s[{S_XB}:{S_XB+3}], s{S_XBP} offen offset:{k*1024} {xlf}" for k in range(4)]
        opt["send"], opt["calc"], opt["ploads"] = send, calc, pl
    srd(a, S_XB, 56, 57, XB_SZ, XB_OFF)
    srd(a, S_OUT, 62, 63, 0x800000)
    a(f"""
    v_lshrrev_b32 v23, 2, v0
    v_and_b32 v23, 3, v23                   ; r
    v_and_b32 v24, 3, v0                    ; c
    v_lshl_add_u32 v25, v18, 3, v23         ; 8g + r
    v_lshlrev_b32 v25, 8, v25
    v_lshl_add_u32 v25, v24, 3, v25         ; + 8c
    v_and_b32 v26, 1, v18
    v_lshl_add_u32 v26, v26, 2, v23         ; f = r | (g&1)<<2
    s_lshl_b32 s7, s6, 2
    v_xor_b32 v26, s7, v26                  ; f ^ 4hf
    """)
    for b in range(8):
        a(f"v_xor_b32 v27, {b}, v26")
        a(f"v_lshl_add_u32 v{G_AD+b}, v27, 5, v25")
    a("v_xor_b32 v27, v18, v17")
    a("v_lshlrev_b32 v28, 8, v17")
    for st in range(4):
        a(f"v_xor_b32 v29, {4*st}, v27")
        a(f"v_lshl_add_u32 v{C_AD+st}, v29, 4, v28")
    a(f"""
    v_lshlrev_b32 v{V_OUT}, 12, v17
    v_lshl_add_u32 v{V_OUT}, v18, 4, v{V_OUT}        ; n*4096 + g*16
    v_lshlrev_b32 v{V_XB}, 4, v0
    s_lshl_b32 s7, s2, 2
    s_add_u32 s7, s7, s3                    ; wg*4 + w
    s_lshl_b32 s{S_XBO}, s7, {12 if XB16 else 13}
    s_xor_b32 s{S_XBP}, s{S_XBO}, {1 << (14 if XB16 else 15)}
    s_mov_b32 s40, 0x00003f80
    s_mov_b32 s41, 0x3f800000
    s_mov_b32 s{S_CUR}, 0
    """)
    for b in range(8):
        for tb in range(2):
            for r in range(4):
                a(f"v_mov_b32 v{acc(b,tb)+r}, 0")
    P.stamp(2)
    if WRAP:
        a(f"s_mov_b32 s77, s{S_V}")
        a("s_mov_b32 s78, 0")
    a("s_barrier")
    P.stamp(3)
    for b in range(7):
        a.emit(t_read("G", b, 0))
    a("s_cmp_eq_u32 s6, 0")
    a("s_cbranch_scc0 K3_H1")
    cons_loop(a, "G", 10, opt)
    if TAIL: tail8(a, "G", opt)
    else: body(a, "G", None, opt)
    a("s_branch K3_EPI")
    a.label("K3_H1")
    cons_loop(a, "G", 2, opt)
    body(a, "G", "C", opt)
    cons_loop(a, "C", 7, opt)
    if TAIL: tail8(a, "C", opt)
    else: body(a, "C", None, opt)
    if TAIL:
        a.label("K3_EPI")
        a("s_nop 15")
        P.stamp(4)
        for i in range(4):
            for tb in range(2):
                nn = N0 + 4*i + 2*tb; xx = X0 + 4*i + 2*tb; o = acc(i, tb)
                for r, src in enumerate((nn, nn + 1, xx, xx + 1)):
                    a(f"v_add_f32 v{o+r}, v{o+r}, v{src}")
        P.stamp(5)
        lp = a.newlabel("K3_POLL"); ck = a.newlabel("K3_PCK"); ok = a.newlabel("K3_POK")
        a(f"s_mov_b32 s{S_CNT}, 0")
        a(f"s_branch {ck}")
        a.label(lp)
        a.emit(pl)
        a.label(ck)
        a("s_waitcnt vmcnt(0)")
        regs = [LD[k] + r for k in range(4) for r in range(4)]
        m = G_AD
        a(f"v_max3_u32 v{m}, v{regs[0]}, v{regs[1]}, v{regs[2]}")
        for k in range(3, 15, 2):
            a(f"v_max3_u32 v{m}, v{m}, v{regs[k]}, v{regs[k+1]}")
        a(f"v_max_u32 v{m}, v{m}, v{regs[15]}")
        a(f"""
        s_nop 0
        v_cmp_eq_u32 vcc, -1, v{m}
        s_add_u32 s{S_CNT}, s{S_CNT}, 1
        s_nop 1
        s_cbranch_vccz {ok}
        s_cmp_lt_u32 s{S_CNT}, 100000
        s_cbranch_scc1 {lp}
        """)
        a.label(ok)
        P.stamp(6)
        if P.on:
            a(f"s_mov_b32 s{P.regs[9]}, s{S_CNT}")
        a(f"s_add_u32 s7, s{S_OS}, 65536")
        U = 220
        def ostore(i):
            for tb in range(2):
                a(f"buffer_store_dwordx4 {vr(acc(i,tb),4)}, v{V_OUT}, s[{S_OUT}:{S_OUT+3}], s{S_OS if tb == 0 else 7} offen offset:{64*i} {out_flags}")
        for i in range(4):
            L = LD[i]
            for k in range(4):
                a(f"v_lshlrev_b32 v{U+2*k}, 16, v{L+k}")
                a(f"v_and_b32 v{U+2*k+1}, 0xffff0000, v{L+k}")
            for k in range(4):
                o = acc(i, k >> 1) + 2 * (k & 1)
                a(f"v_add_f32 v{o}, v{o}, v{U+2*k}")
                a(f"v_add_f32 v{o+1}, v{o+1}, v{U+2*k+1}")
            ostore(i)
        P.stamp(7)
        if P.on:
            a("s_waitcnt vmcnt(0)")
        P.stamp(8)
        P.stamp(10, real=True)
        P.flush(56, 57, 48, 3, 9, 10)
        a("s_endpgm")
    else:
        old_epi(a, P, opt, XB16, xsf, xlf, X0, N0, D0, out_flags)
    a.label("K3_PROD")
    a(f"""
    s_sub_u32 s77, s3, 4                    ; pw
    v_and_b32 v19, 15, v0                   ; p
    v_lshrrev_b32 v20, 1, v19               ; window
    v_and_b32 v21, 1, v19                   ; half
    v_lshlrev_b32 v21, 4, v21
    v_lshl_add_u32 v21, v18, 11, v21
    v_xor_b32 v22, v20, v18
    v_xor_b32 v23, 4, v22
    v_lshl_add_u32 v22, v22, 5, v21
    v_lshl_add_u32 v23, v23, 5, v21
    """)
    for j in range(8):
        src = 22 if ((j >> 1) & 1) == 0 else 23
        a(f"v_add_u32 v{16+j+16}, {8192*j - 1024*(j&3)}, v{src}")
    a("v_xor_b32 v22, v19, v18")
    a("v_lshlrev_b32 v21, 11, v18")
    for j in range(8):
        a(f"v_xor_b32 v23, {4*(j&3)}, v22")
        a(f"v_lshl_add_u32 v23, v23, 4, v21")
        a(f"v_add_u32 v{24+j+16}, {8192*j - 1024*(j&3)}, v23")
    for j in range(16):
        a(f"v_mov_b32 v{16+j}, v{32+j}")
    a(f"""
    s_lshl_b32 s{S_PM}, s77, 13             ; pw*8192
    s_mul_i32 s{S_PS}, s6, 2816
    s_lshl_b32 s7, s77, 5
    s_add_u32 s{S_PS}, s{S_PS}, s7
    s_lshl_b32 s{S_PS}, s{S_PS}, 11
    s_lshl_b32 s7, s{S_D0}, 1
    s_add_u32 s{S_PS}, s{S_PS}, s7
    s_lshl_b32 s79, s77, 5
    s_add_u32 s79, s79, s{S_D0}
    s_lshl_b32 s79, s79, 11
    s_waitcnt lgkmcnt(0)
    """)
    srd(a, S_WD, 48, 49, 0x700000)
    srd(a, S_CRE, 52, 53, 0x200000)
    srd(a, S_CIM, 54, 55, 0x200000)
    P.stamp(11)
    if WRAP:
        a(f"s_mov_b32 s83, s{S_PS}")
        a("s_mov_b32 s82, 0")
    for _ in range(2):
        prod_issue(a, "G")
    a("s_waitcnt vmcnt(8)")
    P.stamp(2)
    a("s_barrier")
    if PACE:
        prod_issue(a, "G", True)
        prod_issue(a, "G")
    else:
        for _ in range(2):
            prod_issue(a, "G")
    a("s_cmp_eq_u32 s6, 0")
    a("s_cbranch_scc0 K3_PH1")
    prod_loop(a, "G", 18)
    a("s_branch K3_PTAIL")
    a.label("K3_PH1")
    prod_loop(a, "G", 2)
    a(f"s_mov_b32 s{S_PS}, s79")
    if WRAP:
        a(f"s_mov_b32 s83, s79")
        a("s_mov_b32 s82, 0")
    prod_loop(a, "R", 8)
    a(f"s_mov_b32 s{S_PS}, s79")
    prod_loop(a, "I", 8)
    a.label("K3_PTAIL")
    if TAIL and int(opts.get("vtouch", 1)):
        a(f"""
        v_and_b32 v32, 15, v0
        v_lshrrev_b32 v33, 4, v0
        v_lshlrev_b32 v32, 4, v32
        v_lshl_add_u32 v32, v33, 15, v32
        s_mul_i32 s78, s6, {352*32768}
        s_lshl_b32 s7, s77, 5
        s_add_u32 s7, s7, s{S_T0}
        s_lshl_b32 s7, s7, 4
        s_add_u32 s78, s78, s7
        s_add_u32 s78, s78, {87*131072}
        """)
        srd(a, S_ACT, 56, 57, ACT_SZ, ACT_OFF)
        a(f"buffer_load_dwordx4 v[36:39], v32, s[{S_ACT}:{S_ACT+3}], s78 offen")
        a(f"buffer_load_dwordx4 v[40:43], v32, s[{S_ACT}:{S_ACT+3}], s78 offen offset:256")
    for vm in ((18, 10, 2) if TAIL and int(opts.get("vtouch", 1)) else (16, 8, 0)):
        a(f"s_waitcnt vmcnt({vm})")
        a("s_barrier")
        if PACE and vm:
            for _ in range(3): a("s_barrier")
    a("s_waitcnt vmcnt(0)")
    P.stamp(4)
    P.stamp(10, real=True)
    P.flush(56, 57, 48, 3, 9, 10)
    a.label("K3_END")
    a("s_endpgm")
    return 228 if TAIL else NV


def old_epi(a, P, opt, XB16, xsf, xlf, X0, N0, D0, out_flags):
    a.label("K3_EPI")
    a("s_nop 15")
    P.stamp(4)
    if XB16:
        for i in range(4):
            p, q_ = acc(4+i, 0), acc(4+i, 1)
            a(f"v_cvt_pk_bf16_f32 v{p}, v{p}, v{p+1}")
            a(f"v_cvt_pk_bf16_f32 v{p+1}, v{p+2}, v{p+3}")
            a(f"v_cvt_pk_bf16_f32 v{p+2}, v{q_}, v{q_+1}")
            a(f"v_cvt_pk_bf16_f32 v{p+3}, v{q_+2}, v{q_+3}")
            for r in range(4):
                a(f"v_min_u32 v{p+r}, s{S_FP}, v{p+r}")
            a(f"buffer_store_dwordx4 {vr(p,4)}, v{V_XB}, s[{S_XB}:{S_XB+3}], s{S_XBO} offen offset:{i*1024} {xsf}")
    else:
        a(f"s_add_u32 s7, s{S_XBO}, 4096")
        for i in range(4):
            for tb in range(2):
                k = 2*i + tb
                for r in range(4):
                    a(f"v_min_u32 v{acc(4+i,tb)+r}, s{S_FP}, v{acc(4+i,tb)+r}")
                a(f"buffer_store_dwordx4 {vr(acc(4+i,tb),4)}, v{V_XB}, s[{S_XB}:{S_XB+3}], s{S_XBO if k < 4 else 7} offen offset:{(k&3)*1024} {xsf}")
    NL = 4 if XB16 else 8
    def ploads():
        if not XB16: a(f"s_add_u32 s7, s{S_XBP}, 4096")
        for k in range(NL):
            a(f"buffer_load_dwordx4 {vr(VR+4*k,4)}, v{V_XB}, s[{S_XB}:{S_XB+3}], s{S_XBP if k < 4 else 7} offen offset:{(k&3)*1024} {xlf}")
    a(f"s_waitcnt vmcnt({NL})")
    T = G_AD
    for i in range(4):
        a(f"v_lshlrev_b32 v{T}, 16, v{D0+2*i}")
        a(f"v_and_b32 v{T+1}, 0xffff0000, v{D0+2*i}")
        a(f"v_lshlrev_b32 v{T+2}, 16, v{D0+2*i+1}")
        a(f"v_and_b32 v{T+3}, 0xffff0000, v{D0+2*i+1}")
        for tb in range(2):
            nn = N0 + 4*i + 2*tb; xx = X0 + 4*i + 2*tb; o = acc(i, tb)
            a(f"v_lshlrev_b32 v{T+4}, 16, v{nn}")
            a(f"v_and_b32 v{T+5}, 0xffff0000, v{nn}")
            a(f"v_lshlrev_b32 v{T+6}, 16, v{nn+1}")
            a(f"v_and_b32 v{T+7}, 0xffff0000, v{nn+1}")
            for q in range(4):
                a(f"v_mul_f32 v{T+4+q}, v{T+4+q}, v{T+q}")
            a(f"v_cvt_pk_bf16_f32 v{T+4}, v{T+4}, v{T+5}")
            a(f"v_cvt_pk_bf16_f32 v{T+6}, v{T+6}, v{T+7}")
            a(f"v_lshlrev_b32 v{nn}, 16, v{xx}")
            a(f"v_and_b32 v{nn+1}, 0xffff0000, v{xx}")
            a(f"v_lshlrev_b32 v{xx}, 16, v{xx+1}")
            a(f"v_and_b32 v{xx+1}, 0xffff0000, v{xx+1}")
            a(f"v_lshlrev_b32 v{T+5}, 16, v{T+4}")
            a(f"v_and_b32 v{T+4}, 0xffff0000, v{T+4}")
            a(f"v_lshlrev_b32 v{T+7}, 16, v{T+6}")
            a(f"v_and_b32 v{T+6}, 0xffff0000, v{T+6}")
            a(f"v_add_f32 v{nn}, v{nn}, v{T+5}")
            a(f"v_add_f32 v{nn+1}, v{nn+1}, v{T+4}")
            a(f"v_add_f32 v{xx}, v{xx}, v{T+7}")
            a(f"v_add_f32 v{xx+1}, v{xx+1}, v{T+6}")
            a(f"v_add_f32 v{o}, v{o}, v{nn}")
            a(f"v_add_f32 v{o+1}, v{o+1}, v{nn+1}")
            a(f"v_add_f32 v{o+2}, v{o+2}, v{xx}")
            a(f"v_add_f32 v{o+3}, v{o+3}, v{xx+1}")
    P.stamp(5)
    lp = a.newlabel("K3_POLL"); ok = a.newlabel("K3_POK")
    a(f"s_mov_b32 s{S_CNT}, 0")
    a.label(lp)
    ploads()
    a("s_waitcnt vmcnt(0)")
    m = T
    a(f"v_max3_u32 v{m}, v{VR}, v{VR+1}, v{VR+2}")
    for k in range(3, 4*NL-1, 2):
        a(f"v_max3_u32 v{m}, v{m}, v{VR+k}, v{VR+k+1}")
    a(f"v_max_u32 v{m}, v{m}, v{VR+4*NL-1}")
    a(f"""
    v_cmp_eq_u32 vcc, -1, v{m}
    s_add_u32 s{S_CNT}, s{S_CNT}, 1
    s_cbranch_vccz {ok}
    s_cmp_lt_u32 s{S_CNT}, 100000
    s_cbranch_scc1 {lp}
    """)
    a.label(ok)
    P.stamp(6)
    if P.on:
        a(f"s_mov_b32 s{P.regs[9]}, s{S_CNT}")
    a(f"s_add_u32 s7, s{S_OS}, 65536")
    for i in range(4):
        for tb in range(2):
            k = 2*i + tb
            if XB16:
                for h in range(2):
                    o = acc(i, tb) + 2*h
                    a(f"v_dot2_f32_bf16 v{o}, v{VR+4*i+2*tb+h}, s40, v{o}")
                    a(f"v_dot2_f32_bf16 v{o+1}, v{VR+4*i+2*tb+h}, s41, v{o+1}")
                a("s_nop 3")
            else:
                for r in range(4):
                    a(f"v_add_f32 v{acc(i,tb)+r}, v{acc(i,tb)+r}, v{VR+4*k+r}")
            a(f"buffer_store_dwordx4 {vr(acc(i,tb),4)}, v{V_OUT}, s[{S_OUT}:{S_OUT+3}], s{S_OS if tb == 0 else 7} offen offset:{64*i} {out_flags}")
    P.stamp(7)
    if P.on:
        a("s_waitcnt vmcnt(0)")
    P.stamp(8)
    P.stamp(10, real=True)
    P.flush(56, 57, 48, 3, 9, 10)
    a("s_endpgm")
```

```python
from common import *
K3 = "ssm_gemm2_kernel"
SLOT = 32768
NSLOT = 5
K3_LDS = NSLOT * SLOT
WGX = 49152

V_VOFF = 1
G_AD = 2
C_AD = 10
V_OUT, V_XB, V_BX, V_BN, V_BD = 12, 13, 14, 15, 16
TR = 20
ACC = 52
VR = 180
TMP = 212
NV = 252
RV = 4
def tf(b): return TR + 4 * (b % 8)
def vf(s, tb): return VR + 8 * (s % RV) + 4 * tb
def acc(b, tb): return ACC + 4 * (2 * b + tb)

S_WD, S_CRE, S_CIM, S_ACT, S_X, S_XN, S_D, S_XB, S_OUT = 8, 12, 16, 20, 24, 28, 32, 36, 44
S_T0, S_D0, S_V, S_CUR, S_DEL, S_CNT, S_PS, S_PM = 64, 65, 66, 67, 68, 69, 70, 71
S_XBO, S_KL, S_XO1, S_FP, S_OS, S_KH = 72, 73, 74, 75, 76, 40
S_Q = 6

PER = {"G": 2, "C": 1, None: 0}
def t_read(kind, b, st, ent=None, xo=0):
    e = tf(b if ent is None else ent)
    if kind == "G":
        off = (b >> 3) * 16384 + st * 8192 + xo
        return [f"ds_read_b64_tr_b16 {vr(e,2)}, v{G_AD+(b&7)} offset:{off}",
                f"ds_read_b64_tr_b16 {vr(e+2,2)}, v{G_AD+(b&7)} offset:{off+1024}"]
    return [f"ds_read_b128 {vr(e,4)}, v{C_AD+st} offset:{b*2048+xo}"]

def body(a, kinds, after, left, opt, trackC, loop=False, base_loads=None, nxt_el=None):
    ns = 2 * len(kinds)
    def kind_at(i):
        n = i // 16
        if n < ns: return kinds[n // 2]
        return after
    fill = {}
    def put(n, b, g, ins): fill.setdefault((n, b, g), []).append(ins)
    vmq = []
    for m in range(RV - 1):
        if left is None or m < left: vmq += [("V", m)] * 2
    base_q = list(base_loads or [])
    for n in range(ns):
        m = n + RV - 1
        if left is None or m < left:
            put(n, 1, 1, ("V", m, f"buffer_load_dwordx4 {vr(vf(n-1,0),4)}, v{V_VOFF}, s[{S_ACT}:{S_ACT+3}], s{S_V} offen {opt['vfl']}"))
            put(n, 2, 1, ("V", m, f"buffer_load_dwordx4 {vr(vf(n-1,1),4)}, v{V_VOFF}, s[{S_ACT}:{S_ACT+3}], s{S_V} offen offset:256 {opt['vfl']}"))
            put(n, 2, 2, f"s_add_u32 s{S_V}, s{S_V}, 131072")
        elif base_q:
            for b in range(1, 14):
                while base_q and not base_q[0].startswith("buffer"):
                    put(n, b, 1, base_q.pop(0))
                if base_q:
                    put(n, b, 1, ("B", 0, base_q.pop(0)))
    assert not base_q
    for sg, k in enumerate(kinds):
        nk = kinds[sg + 1] if sg + 1 < len(kinds) else after
        if nk is None: continue
        n0, n1 = 2 * sg, 2 * sg + 1
        put(n0, 0, 1, f"s_cmp_eq_u32 s{S_CUR}, {(NSLOT-1)*SLOT}")
        put(n0, 0, 2, f"s_cselect_b32 s{S_DEL}, s81, s80")
        put(n0, 4, 1, f"s_add_u32 s{S_CUR}, s{S_CUR}, s{S_DEL}")
        if nk == "G":
            for r in range(8):
                put(n1, r + 3, 2, f"v_add_u32 v{G_AD+r}, s{S_DEL}, v{G_AD+r}")
        if trackC:
            put(n1, 2, 2, f"v_add_u32 v{C_AD}, s{S_DEL}, v{C_AD}")
            put(n1, 11, 2, f"v_add_u32 v{C_AD+1}, s{S_DEL}, v{C_AD+1}")
        put(n1, 8, 2, "s_barrier")
    if loop:
        put(ns - 1, 12, 1, f"s_sub_u32 s{S_CNT}, s{S_CNT}, 1")
        put(ns - 1, 13, 1, f"s_cmp_lg_u32 s{S_CNT}, 0")
    def emit(g):
        for ins in g:
            if isinstance(ins, tuple):
                vmq.append(ins[:2]); a(ins[2])
            else:
                a(ins)
    for n in range(ns):
        for b in range(16):
            i = 16 * n + b
            if b % 2 == 0:
                lg = sum(PER[kind_at(j)] for j in range(i + 2, i + 7))
                w = f"lgkmcnt({min(lg,15)})"
                if b == 0:
                    last = max(x for x, t in enumerate(vmq) if t == ("V", n))
                    w = f"vmcnt({min(len(vmq)-1-last,63)}) " + w
                a("s_waitcnt " + w)
            j = i + 7
            kj = kind_at(j)
            rd = t_read(kj, j % 16, (j // 16) % 2) if kj is not None else []
            if nxt_el is not None and j >= 16 * ns:
                rd = nxt_el[j - 16 * ns]
            g1 = rd[:1] + fill.get((n, b, 1), []); g2 = rd[1:] + fill.get((n, b, 2), [])
            A, C0, C1 = tf(b), acc(b, 0), acc(b, 1)
            a(f"v_mfma_f32_16x16x32_bf16 {vr(C0,4)}, {vr(A,4)}, {vr(vf(n,0),4)}, {vr(C0,4)}")
            emit(g1)
            a(f"v_mfma_f32_16x16x32_bf16 {vr(C1,4)}, {vr(A,4)}, {vr(vf(n,1),4)}, {vr(C1,4)}")
            emit(g2)

def send_group(g):
    o = [f"s_xor_b32 s7, s2, {g}", f"s_mul_i32 s7, s7, {WGX}", f"s_add_u32 s7, s7, s{S_XBO}"]
    if g > 1: o.append(f"s_add_u32 s7, s7, {(g-1)*16384}")
    for k in range(4):
        b = 4 * g + k
        p, q_ = acc(b, 0), acc(b, 1)
        o += [f"v_cvt_pk_bf16_f32 v{p}, v{p}, v{p+1}", f"v_cvt_pk_bf16_f32 v{p+1}, v{p+2}, v{p+3}",
              f"v_cvt_pk_bf16_f32 v{p+2}, v{q_}, v{q_+1}", f"v_cvt_pk_bf16_f32 v{p+3}, v{q_+2}, v{q_+3}"]
        o += [f"v_min_u32 v{p+r}, s{S_FP}, v{p+r}" for r in range(4)]
        o.append(f"buffer_store_dwordx4 {vr(p,4)}, v{V_XB}, s[{S_XB}:{S_XB+3}], s7 offen offset:{k*1024} sc1")
    return o

def tail(a, kind, E, rds, opt, base_loads):
    vmq = [("V", s_) for s_ in range(4) for _ in range(2)]
    fill = {}
    def spread(lst, p0, per):
        p = p0
        while lst:
            for h in (1, 2):
                for _ in range(per):
                    if lst: fill.setdefault((p, h), []).append(lst.pop(0))
            p += 1
        return p
    fill[(0, 2)] = ["s_barrier"]
    st = opt["sgap"]
    spread(send_group(1), 16 + st, 2)
    pe = spread(send_group(2), 32 + st, 2)
    spread(list(base_loads), pe, 1)
    spread(send_group(3), 48 + st + 2, 2)
    per = PER[kind]
    N = len(E)
    for p, (g, s_, blk) in enumerate(E):
        if p % 2 == 0:
            lg = per * len([j for j in range(p + 2, p + 7) if j < N])
            w = f"lgkmcnt({min(lg,15)})"
            if g == 1 and blk == 0:
                last = max(x for x, t in enumerate(vmq) if t == ("V", s_))
                w = f"vmcnt({min(len(vmq)-1-last,63)}) " + w
            a("s_waitcnt " + w)
        rd = rds[p + 7] if p + 7 < N else []
        b = 4 * g + blk
        A, C0, C1 = tf(p), acc(b, 0), acc(b, 1)
        for h, C in ((1, C0), (2, C1)):
            a(f"v_mfma_f32_16x16x32_bf16 {vr(C,4)}, {vr(A,4)}, {vr(vf(s_,h-1),4)}, {vr(C,4)}")
            for ins in (rd[:1] if h == 1 else rd[1:]) + fill.get((p, h), []):
                if ins.startswith("buffer"): vmq.append(("B", 0) if ins.startswith("buffer_load") else ("O", 0))
                a(ins)
    assert max(p for p, h in fill) < N, max(fill)
    opt["after_base"] = len(vmq) - 1 - max(x for x, t in enumerate(vmq) if t[0] == "B")

def cons_path(a, kinds, opt, base_loads):
    SB = RV // 2
    trackC = "C" in kinds
    for b in range(7):
        a.emit(t_read(kinds[0], b, 0))
    ntail = 2 if RV == 4 else 6
    front = kinds[:len(kinds) - ntail]
    chunks = []
    for c in range(0, len(front), SB):
        sig = (tuple(front[c:c+SB]), kinds[c + SB])
        if chunks and chunks[-1][0] == sig: chunks[-1][1] += 1
        else: chunks.append([sig, 1])
    for (ks, aft), cnt in chunks:
        if cnt == 1:
            body(a, list(ks), aft, None, opt, trackC)
        else:
            l = a.newlabel("K3_CL")
            a(f"s_mov_b32 s{S_CNT}, {cnt}")
            a.label(l)
            body(a, list(ks), aft, None, opt, trackC, loop=True)
            a(f"s_cbranch_scc1 {l}")
    if opt["tail"]:
        k = kinds[-1]
        E = [(g, s_, blk) for g in (1, 2, 3, 0) for s_ in range(4) for blk in range(4)]
        rds = [t_read(k, 4 * g + blk, s_ & 1, ent=p % 8, xo=(s_ >> 1) * SLOT) for p, (g, s_, blk) in enumerate(E)]
        body(a, kinds[-6:-2], kinds[-2], 12, opt, trackC, nxt_el=rds)
        tail(a, k, E, rds, opt, base_loads)
        return
    if RV == 8:
        body(a, kinds[-6:-2], kinds[-2], 12, opt, trackC)
    body(a, kinds[-2:], None, 4, opt, trackC, base_loads=base_loads)

def prod_issue(a, kind):
    srdn = {"G": S_WD, "R": S_CRE, "I": S_CIM}[kind]
    vb = 16 if kind == "G" else 24
    for j in range(8):
        if j == 0:
            a(f"s_mov_b32 m0, s{S_PM}")
            a("s_nop 0")
        if j == 4:
            a(f"s_add_u32 m0, s{S_PM}, 4096")
            a("s_nop 0")
        a(f"buffer_load_dwordx4 v{vb+j}, s[{srdn}:{srdn+3}], s{S_PS} offen offset:{(j&3)*1024} lds")
    a(f"s_add_u32 s{S_PS}, s{S_PS}, {131072 if kind == 'G' else 128}")
    a(f"s_add_u32 s{S_PM}, s{S_PM}, {SLOT}")
    a(f"s_cmp_ge_u32 s{S_PM}, {NSLOT*SLOT}")
    a(f"s_cselect_b32 s7, {NSLOT*SLOT}, 0")
    a(f"s_sub_u32 s{S_PM}, s{S_PM}, s7")

def prod_path(a, seq, starts):
    def pre(i):
        if i in starts: a(f"s_mov_b32 s{S_PS}, s{starts[i]}")
    for i in (0, 1):
        pre(i); prod_issue(a, seq[i])
    a("s_waitcnt vmcnt(8)")
    a("s_barrier")
    for i in (2, 3):
        pre(i); prod_issue(a, seq[i])
    i = 4
    while i < len(seq):
        e = i + 1
        while e < len(seq) and seq[e] == seq[i] and e not in starts: e += 1
        pre(i)
        l = a.newlabel("K3_PL")
        a(f"s_mov_b32 s{S_CNT}, {e-i}")
        a.label(l)
        a("s_waitcnt vmcnt(16)")
        a("s_barrier")
        prod_issue(a, seq[i])
        a(f"s_sub_u32 s{S_CNT}, s{S_CNT}, 1")
        a(f"s_cmp_lg_u32 s{S_CNT}, 0")
        a(f"s_cbranch_scc1 {l}")
        i = e
    a("s_branch K3_PTAIL")

def gen_k3(a, out_flags="", prof=False, opts=None):
    global RV
    opts = opts or {}
    RV = int(opts.get("rv", 4))
    opt = {"vfl": opts.get("vfl", "").replace("+", " "), "tail": int(opts.get("tail", 0)), "sgap": int(opts.get("sgap", 3))}
    TAIL = opt["tail"]
    assert not TAIL or RV == 8
    kernel_begin(a, K3)
    P = Prof(a, prof, 2, list(range(84, 100)), 100)
    a("""
    s_cmp_ge_u32 s2, 256
    s_cbranch_scc1 K3_END
    """)
    P.stamp(0, real=True)
    P.stamp(1)
    a(f"""
    s_load_dwordx2 s[48:49], s[0:1], 96     ; w_down
    s_load_dwordx4 s[52:55], s[0:1], 40
    s_load_dwordx2 s[56:57], s[0:1], 120    ; ws
    s_load_dwordx2 s[58:59], s[0:1], 0      ; x
    s_load_dwordx2 s[60:61], s[0:1], 64     ; Dskip
    s_load_dwordx2 s[62:63], s[0:1], 104    ; out
    v_lshrrev_b32 v16, 6, v0
    v_and_b32 v0, 63, v0
    v_readfirstlane_b32 s3, v16             ; wave
    s_and_b32 s{S_Q}, s2, 3                 ; k quarter
    s_lshr_b32 s77, s2, 3                   ; j
    s_lshr_b32 s79, s2, 2
    s_and_b32 s79, s79, 1
    s_and_b32 s4, s77, 7
    s_lshl_b32 s79, s79, 3
    s_add_u32 s4, s4, s79
    s_lshr_b32 s5, s77, 3
    s_lshl_b32 s{S_T0}, s4, 7               ; t0
    s_lshl_b32 s{S_D0}, s5, 8               ; d0
    s_mov_b32 s80, {SLOT}
    s_mov_b32 s81, {-(NSLOT-1)*SLOT}
    s_mov_b32 s{S_FP}, 0xfffffffe
    v_and_b32 v17, 15, v0                   ; n
    v_lshrrev_b32 v18, 4, v0                ; g
    s_cmp_lt_u32 s3, 4
    s_cbranch_scc0 K3_PROD
    """)
    a(f"""
    v_lshlrev_b32 v19, 4, v17
    v_lshl_add_u32 v{V_VOFF}, v18, 15, v19          ; g*32768 + n*16
    s_lshl_b32 s77, s3, 5
    s_add_u32 s77, s77, s{S_T0}                     ; tw = t0 + 32w
    s_mul_i32 s{S_V}, s{S_Q}, {176*32768}
    s_lshl_b32 s7, s77, 4
    s_add_u32 s{S_V}, s{S_V}, s7
    s_waitcnt lgkmcnt(0)
    """)
    srd(a, S_ACT, 56, 57, ACT_SZ, ACT_OFF)
    for n in range(RV - 1):
        a(f"buffer_load_dwordx4 {vr(vf(n,0),4)}, v{V_VOFF}, s[{S_ACT}:{S_ACT+3}], s{S_V} offen")
        a(f"buffer_load_dwordx4 {vr(vf(n,1),4)}, v{V_VOFF}, s[{S_ACT}:{S_ACT+3}], s{S_V} offen offset:256")
        a(f"s_add_u32 s{S_V}, s{S_V}, 131072")
    a(f"""
    v_lshlrev_b32 v20, 11, v17
    v_lshl_add_u32 v{V_BX}, v18, 3, v20             ; x: n*2048 + g*8
    v_lshrrev_b32 v21, 2, v17
    v_and_b32 v21, 1, v21
    v_lshlrev_b32 v21, 2, v21                       ; 4*((n>>2)&1)
    v_lshrrev_b32 v22, 3, v17
    v_add_u32 v21, v21, v22                         ; + (n>>3)
    v_and_b32 v22, 3, v17
    v_lshl_add_u32 v21, v21, 2, v22                 ; 16((n>>2)&1) + 4(n>>3) + (n&3)
    v_lshlrev_b32 v21, 4, v21
    v_lshrrev_b32 v22, 1, v18
    v_lshl_add_u32 v21, v22, 15, v21
    v_and_b32 v22, 1, v18
    v_lshl_add_u32 v{V_BN}, v22, 3, v21
    v_lshlrev_b32 v{V_BD}, 3, v18                   ; D: g*8
    s_lshl_b32 s78, s{S_Q}, 6
    s_add_u32 s78, s78, s{S_D0}                     ; dk = d0 + 64q
    s_lshl_b32 s79, s77, 11
    s_lshl_b32 s7, s78, 1
    s_add_u32 s79, s79, s7
    s_add_u32 s{S_XO1}, s79, 32768
    s_lshl_b32 s82, s78, 12                         ; (dk/8)*32768
    s_lshl_b32 s7, s77, 4
    s_add_u32 s82, s82, s7
    s_lshl_b32 s83, s78, 1                          ; D soffset
    s_lshl_b32 s{S_OS}, s77, 12
    s_lshl_b32 s7, s78, 2
    s_add_u32 s{S_OS}, s{S_OS}, s7
    s_mov_b32 s{S_KL}, 0x00003f80
    s_mov_b32 s{S_KH}, 0x3f800000
    """)
    srd(a, S_X, 58, 59, 0x400000)
    srd(a, S_XN, 56, 57, XN_SZ, XN_OFF)
    srd(a, S_D, 60, 61, 2048)
    X0, N0, D0 = TMP, TMP + 16, TMP + 32
    if TAIL: X0, N0 = acc(4, 0), acc(6, 0)
    def base_loads():
        bl = []
        for i in range(4):
            bl.append(f"buffer_load_dwordx2 {vr(X0+4*i,2)}, v{V_BX}, s[{S_X}:{S_X+3}], s79 offen offset:{32*i}")
            bl.append(f"buffer_load_dwordx2 {vr(X0+4*i+2,2)}, v{V_BX}, s[{S_X}:{S_X+3}], s{S_XO1} offen offset:{32*i}")
        for i in range(4):
            bl.append(f"buffer_load_dwordx2 {vr(N0+4*i,2)}, v{V_BN}, s[{S_XN}:{S_XN+3}], s82 offen")
            bl.append(f"buffer_load_dwordx2 {vr(N0+4*i+2,2)}, v{V_BN}, s[{S_XN}:{S_XN+3}], s82 offen offset:128")
            bl.append(f"buffer_load_dwordx2 {vr(D0+2*i,2)}, v{V_BD}, s[{S_D}:{S_D+3}], s83 offen offset:{32*i}")
            if i < 3: bl.append(f"s_add_u32 s82, s82, 65536")
        return bl
    srd(a, S_XB, 56, 57, XB_SZ, XB_OFF)
    srd(a, S_OUT, 62, 63, 0x800000)
    a(f"""
    v_lshrrev_b32 v23, 2, v0
    v_and_b32 v23, 3, v23                   ; r
    v_and_b32 v24, 3, v0                    ; c
    v_lshl_add_u32 v25, v18, 3, v23         ; 8g + r
    v_lshlrev_b32 v25, 8, v25
    v_lshl_add_u32 v25, v24, 3, v25         ; + 8c
    v_and_b32 v26, 1, v18
    v_lshl_add_u32 v26, v26, 2, v23         ; f = r | (g&1)<<2
    """)
    for b in range(8):
        a(f"v_xor_b32 v27, {b}, v26")
        a(f"v_lshl_add_u32 v{G_AD+b}, v27, 5, v25")
    a(f"""
    v_lshrrev_b32 v27, 1, v17
    v_xor_b32 v27, v18, v27                 ; g ^ (n>>1)
    v_lshlrev_b32 v28, 7, v17               ; n*128
    v_lshl_add_u32 v{C_AD}, v27, 4, v28
    v_xor_b32 v27, 4, v27
    v_lshl_add_u32 v{C_AD+1}, v27, 4, v28
    v_lshlrev_b32 v{V_OUT}, 12, v17
    v_lshl_add_u32 v{V_OUT}, v18, 4, v{V_OUT}        ; n*4096 + g*16
    v_lshlrev_b32 v{V_XB}, 4, v0
    s_lshl_b32 s{S_XBO}, s3, 12             ; wave*4096
    s_mov_b32 s{S_CUR}, 0
    """)
    for b in range(16):
        for tb in range(2):
            for r in range(4):
                a(f"v_mov_b32 v{acc(b,tb)+r}, 0")
    P.stamp(2)
    a("s_barrier")
    P.stamp(3)
    a(f"s_cmp_lt_u32 s{S_Q}, 2")
    a("s_cbranch_scc0 K3_H2")
    cons_path(a, ["G"] * 22, opt, base_loads())
    a("s_branch K3_EPI")
    a.label("K3_H2")
    a(f"s_cmp_eq_u32 s{S_Q}, 2")
    a("s_cbranch_scc0 K3_H3")
    cons_path(a, ["G"] * 12 + ["C"] * 10, opt, base_loads())
    a("s_branch K3_EPI")
    a.label("K3_H3")
    cons_path(a, ["C"] * 22, opt, base_loads())
    a.label("K3_EPI")
    a("s_nop 15")
    P.stamp(4)
    if not TAIL:
        for g in (1, 2, 3):
            a.emit(send_group(g))
    a(f"s_mul_i32 s7, s2, {WGX}")
    a(f"s_add_u32 s{S_XBO}, s{S_XBO}, s7")
    a(f"s_add_u32 s77, s{S_XBO}, 16384")
    a(f"s_add_u32 s78, s{S_XBO}, 32768")
    LD = [acc(4 + k, 1) for k in range(12)]
    if TAIL: LD = [acc(8 + k // 2, k % 2) for k in range(12)]
    def ploads():
        for k in range(12):
            a(f"buffer_load_dwordx4 {vr(LD[k],4)}, v{V_XB}, s[{S_XB}:{S_XB+3}], s{(S_XBO, 77, 78)[k // 4]} offen offset:{(k&3)*1024} sc1")
    a(f"s_waitcnt vmcnt({opt['after_base'] if TAIL else 12})")
    T = G_AD
    for i in range(4):
        a(f"v_lshlrev_b32 v{T}, 16, v{D0+2*i}")
        a(f"v_and_b32 v{T+1}, 0xffff0000, v{D0+2*i}")
        a(f"v_lshlrev_b32 v{T+2}, 16, v{D0+2*i+1}")
        a(f"v_and_b32 v{T+3}, 0xffff0000, v{D0+2*i+1}")
        for tb in range(2):
            nn = N0 + 4*i + 2*tb; xx = X0 + 4*i + 2*tb; o = acc(i, tb)
            a(f"v_lshlrev_b32 v{T+4}, 16, v{nn}")
            a(f"v_and_b32 v{T+5}, 0xffff0000, v{nn}")
            a(f"v_lshlrev_b32 v{T+6}, 16, v{nn+1}")
            a(f"v_and_b32 v{T+7}, 0xffff0000, v{nn+1}")
            for q in range(4):
                a(f"v_mul_f32 v{T+4+q}, v{T+4+q}, v{T+q}")
            a(f"v_cvt_pk_bf16_f32 v{T+4}, v{T+4}, v{T+5}")
            a(f"v_cvt_pk_bf16_f32 v{T+6}, v{T+6}, v{T+7}")
            a(f"v_lshlrev_b32 v{nn}, 16, v{xx}")
            a(f"v_and_b32 v{nn+1}, 0xffff0000, v{xx}")
            a(f"v_lshlrev_b32 v{xx}, 16, v{xx+1}")
            a(f"v_and_b32 v{xx+1}, 0xffff0000, v{xx+1}")
            a(f"v_lshlrev_b32 v{T+5}, 16, v{T+4}")
            a(f"v_and_b32 v{T+4}, 0xffff0000, v{T+4}")
            a(f"v_lshlrev_b32 v{T+7}, 16, v{T+6}")
            a(f"v_and_b32 v{T+6}, 0xffff0000, v{T+6}")
            a(f"v_add_f32 v{nn}, v{nn}, v{T+5}")
            a(f"v_add_f32 v{nn+1}, v{nn+1}, v{T+4}")
            a(f"v_add_f32 v{xx}, v{xx}, v{T+7}")
            a(f"v_add_f32 v{xx+1}, v{xx+1}, v{T+6}")
            a(f"v_add_f32 v{o}, v{o}, v{nn}")
            a(f"v_add_f32 v{o+1}, v{o+1}, v{nn+1}")
            a(f"v_add_f32 v{o+2}, v{o+2}, v{xx}")
            a(f"v_add_f32 v{o+3}, v{o+3}, v{xx+1}")
    P.stamp(5)
    lp = a.newlabel("K3_POLL"); ok = a.newlabel("K3_POK")
    a(f"s_mov_b32 s{S_CNT}, 0")
    a.label(lp)
    ploads()
    a("s_waitcnt vmcnt(0)")
    regs = [LD[k] + r for k in range(12) for r in range(4)]
    m = T
    a(f"v_max3_u32 v{m}, v{regs[0]}, v{regs[1]}, v{regs[2]}")
    for k in range(3, 47, 2):
        a(f"v_max3_u32 v{m}, v{m}, v{regs[k]}, v{regs[k+1]}")
    a(f"v_max_u32 v{m}, v{m}, v{regs[47]}")
    a(f"""
    s_nop 0
    v_cmp_eq_u32 vcc, -1, v{m}
    s_add_u32 s{S_CNT}, s{S_CNT}, 1
    s_nop 1
    s_cbranch_vccz {ok}
    s_cmp_lt_u32 s{S_CNT}, 100000
    s_cbranch_scc1 {lp}
    """)
    a.label(ok)
    P.stamp(6)
    if P.on:
        a(f"s_mov_b32 s{P.regs[9]}, s{S_CNT}")
    a(f"s_add_u32 s7, s{S_OS}, 65536")
    for i in range(4):
        for g in range(3):
            L = LD[4 * g + i]
            for tb in range(2):
                for h in range(2):
                    o = acc(i, tb) + 2 * h
                    a(f"v_dot2_f32_bf16 v{o}, v{L+2*tb+h}, s{S_KL}, v{o}")
                    a(f"v_dot2_f32_bf16 v{o+1}, v{L+2*tb+h}, s{S_KH}, v{o+1}")
        a("s_nop 3")
        for tb in range(2):
            a(f"buffer_store_dwordx4 {vr(acc(i,tb),4)}, v{V_OUT}, s[{S_OUT}:{S_OUT+3}], s{S_OS if tb == 0 else 7} offen offset:{64*i} {out_flags}")
    P.stamp(7)
    if P.on:
        a("s_waitcnt vmcnt(0)")
    P.stamp(8)
    P.stamp(10, real=True)
    P.flush(56, 57, 48, 3, 19, 18)
    a("s_endpgm")
    a.label("K3_PROD")
    a(f"""
    s_sub_u32 s77, s3, 4                    ; pw
    v_lshrrev_b32 v20, 1, v17               ; window
    v_and_b32 v21, 1, v17                   ; half
    v_lshlrev_b32 v21, 4, v21
    v_lshl_add_u32 v21, v18, 11, v21
    v_xor_b32 v22, v20, v18
    s_and_b32 s7, s{S_Q}, 1
    s_lshl_b32 s7, s7, 2
    v_xor_b32 v22, s7, v22                  ; ^ 4(q&1)
    v_xor_b32 v23, 4, v22
    v_lshl_add_u32 v22, v22, 5, v21
    v_lshl_add_u32 v23, v23, 5, v21
    """)
    for j in range(8):
        src = 22 if ((j >> 1) & 1) == 0 else 23
        a(f"v_add_u32 v{32+j}, {8192*j - 1024*(j&3)}, v{src}")
    a(f"""
    v_lshrrev_b32 v24, 3, v0                ; row8
    v_and_b32 v25, 7, v0                    ; pc
    v_xor_b32 v26, v25, v18                 ; pc ^ g
    v_lshlrev_b32 v24, 11, v24
    """)
    for j in range(8):
        a(f"v_xor_b32 v27, {4*(j&1)}, v26")
        a(f"v_lshl_add_u32 v27, v27, 4, v24")
        a(f"v_add_u32 v{40+j}, {16384*j - 1024*(j&3)}, v27")
    for j in range(16):
        a(f"v_mov_b32 v{16+j}, v{32+j}")
    a(f"""
    s_lshl_b32 s{S_PM}, s77, 13             ; pw*8192
    s_mul_i32 s78, s{S_Q}, 1408
    s_and_b32 s7, s77, 1
    s_lshl_b32 s7, s7, 5
    s_add_u32 s78, s78, s7
    s_lshl_b32 s78, s78, 11
    s_lshl_b32 s7, s{S_D0}, 1
    s_add_u32 s78, s78, s7
    s_xor_b32 s7, s77, s{S_Q}
    s_lshr_b32 s7, s7, 1
    s_lshl_b32 s7, s7, 8
    s_add_u32 s78, s78, s7
    s_xor_b32 s79, s77, s{S_Q}
    s_lshl_b32 s79, s79, 6
    s_add_u32 s79, s79, s{S_D0}
    s_lshl_b32 s79, s79, 11
    s_add_u32 s82, s79, 1280
    s_waitcnt lgkmcnt(0)
    """)
    srd(a, S_WD, 48, 49, 0x700000)
    srd(a, S_CRE, 52, 53, 0x200000)
    srd(a, S_CIM, 54, 55, 0x200000)
    a(f"s_cmp_lt_u32 s{S_Q}, 2")
    a("s_cbranch_scc0 K3_PH2")
    prod_path(a, ["G"] * 22, {0: 78})
    a.label("K3_PH2")
    a(f"s_cmp_eq_u32 s{S_Q}, 2")
    a("s_cbranch_scc0 K3_PH3")
    prod_path(a, ["G"] * 12 + ["R"] * 10, {0: 78, 12: 79})
    a.label("K3_PH3")
    prod_path(a, ["R"] * 6 + ["I"] * 16, {0: 82, 6: 79})
    a.label("K3_PTAIL")
    for vm in (16, 8, 0):
        a(f"s_waitcnt vmcnt({vm})")
        a("s_barrier")
    P.stamp(4)
    P.stamp(10, real=True)
    P.flush(56, 57, 48, 3, 9, 10)
    a.label("K3_END")
    a("s_endpgm")
    return NV
```

```python
from common import *

K3 = "ssm_gemm2_kernel"
SLOT = 32768
NSLOT = 5
K3_LDS = NSLOT * SLOT

V_VOFF = 1
G_AD = 2
C_AD = 10
V_OUT = 14
V_XB = 15
TR = 16
VR = 48
ACC = 112
TMP = 176
V_BX, V_BN, V_BD = 216, 217, 218
NV = 220
def tf(b): return TR + 4 * b
def vf(s, tb): return VR + 8 * s + 4 * tb
def acc(b, tb): return ACC + 4 * (2 * b + tb)

S_WD, S_CRE, S_CIM, S_ACT, S_X, S_XN, S_D, S_XB, S_FL, S_OUT = 8, 12, 16, 20, 24, 28, 32, 36, 40, 44
S_T0, S_D0, S_V, S_CUR, S_DEL, S_CNT, S_PS, S_PM = 64, 65, 66, 67, 68, 69, 70, 71
S_XBO, S_XBP, S_XO1, S_FP, S_OS = 72, 73, 74, 75, 76

NOT = False
WRAP = 0
PACE = 0
TFL = ''
def t_read(kind, b, st):
    if kind == "G":
        return [f"ds_read_b64_tr_b16 {vr(tf(b),2)}, v{G_AD+b} offset:{st*8192}",
                f"ds_read_b64_tr_b16 {vr(tf(b)+2,2)}, v{G_AD+b} offset:{st*8192+1024}"]
    return [f"ds_read_b128 {vr(tf(b),4)}, v{C_AD+st} offset:{(b ^ 4)*4096}"]

def body(a, kind, nxt, opt, loop=False):
    nov = opt.get("nov")
    per = {"G": 2, "C": 1, None: 0}
    extra_vm = 0
    base_q = list(opt["base_loads"]) if nxt is None else []
    for sg in range(2):
        nk = kind if sg == 0 else nxt
        last_stage = (sg == 1 and nxt is None)
        fill = {}
        def put(st, b, g, ins):
            fill.setdefault((st, b, g), []).append(ins)
        for st in range(4):
            n = sg * 4 + st
            pv = (n - 1) % 8
            if not nov and (nxt is not None or n == 0):
                put(st, 1, 1, f"buffer_load_dwordx4 {vr(vf(pv,0),4)}, v{V_VOFF}, s[{S_ACT}:{S_ACT+3}], s{S_V} offen {opt['vfl']}")
                put(st, 2, 1, f"buffer_load_dwordx4 {vr(vf(pv,1),4)}, v{V_VOFF}, s[{S_ACT}:{S_ACT+3}], s{S_V} offen offset:{opt['voff2']} {opt['vfl']}")
                if opt.get("wrap"):
                    put(st, 2, 2, f"s_add_u32 s78, s78, 131072")
                    put(st, 3, 1, f"s_and_b32 s78, s78, 0x{opt['wrap']*4*131072-1:x}")
                    put(st, 3, 2, f"s_add_u32 s{S_V}, s77, s78")
                else:
                    put(st, 2, 2, f"s_add_u32 s{S_V}, s{S_V}, 131072")
            elif nxt is None:
                for slot in ((1, 1), (2, 1), (3, 1), (4, 1), (5, 1), (6, 1)):
                    while base_q and not base_q[0].startswith("buffer"):
                        put(st, slot[0], slot[1], base_q.pop(0))
                    if base_q:
                        put(st, slot[0], slot[1], base_q.pop(0))
        if not last_stage:
            put(0, 0, 1, f"s_cmp_eq_u32 s{S_CUR}, {(NSLOT-1)*SLOT}")
            put(0, 0, 2, f"s_cselect_b32 s{S_DEL}, s81, s80")
            put(1, 4, 1, f"s_add_u32 s{S_CUR}, s{S_CUR}, s{S_DEL}")
            if kind == "G" and nk == "G":
                for r, pos in enumerate([(2,3,1), (2,4,1), (2,4,2), (2,5,1), (2,6,1), (2,7,1), (3,3,1), (3,4,1)]):
                    put(*pos, f"v_add_u32 v{G_AD+r}, s{S_DEL}, v{G_AD+r}")
            if kind == "G" and nk == "C":
                for r, pos in enumerate([(2,4,1), (2,4,2), (2,5,1), (2,6,1)]):
                    put(*pos, f"v_add_u32 v{C_AD+r}, s{S_CUR}, v{C_AD+r}")
            if kind == "C":
                for st in range(4):
                    put(st, 4, 1, f"v_add_u32 v{C_AD+st}, s{S_DEL}, v{C_AD+st}")
            if opt.get("pace"):
                for st in range(4): put(st, 0, 2, "s_barrier")
            else:
                put(3, 0, 2, "s_barrier")
        if loop and sg == 1:
            put(3, 5, 1, f"s_sub_u32 s{S_CNT}, s{S_CNT}, 1")
            put(3, 6, 1, f"s_cmp_lg_u32 s{S_CNT}, 0")
        for st in range(4):
            n = sg * 4 + st
            nxk = kind if st < 3 else nk
            nxst = st + 1 if st < 3 else 0
            for b in range(8):
                if b % 2 == 0:
                    pc, pn = per[kind], per[nxk]
                    lg = {0: 5 * pc, 2: 4 * pc + pn, 4: 2 * pc + 3 * pn, 6: 5 * pn}[b]
                    w = f"lgkmcnt({min(lg,15)})"
                    if b == 0 and not nov:
                        if nxt is not None or n == 0:
                            vm = 12
                        else:
                            vm = 2 * (7 - n) + extra_vm
                        w = f"vmcnt({min(vm,63)}) " + w
                    a("s_waitcnt " + w)
                if b == 0:
                    rd = t_read(kind, 7, st)
                elif nxk is not None:
                    rd = t_read(nxk, b - 1, nxst)
                else:
                    rd = []
                g1 = rd[:1] + fill.get((st, b, 1), []); g2 = rd[1:] + fill.get((st, b, 2), [])
                for ins in g1 + g2:
                    if ins.startswith("buffer_load_dwordx2"): extra_vm += 1
                A, C0, C1 = tf(b), acc(b, 0), acc(b, 1)
                if opt["nomfma"]:
                    g1 = [x for x in g1 if not x.startswith("ds_read")]; g2 = [x for x in g2 if not x.startswith("ds_read")]
                    a.emit(g1); a.emit(g2)
                    continue
                a(f"v_mfma_f32_16x16x32_bf16 {vr(C0,4)}, {vr(A,4)}, {vr(vf(n,0),4)}, {vr(C0,4)}")
                a.emit(g1)
                a(f"v_mfma_f32_16x16x32_bf16 {vr(C1,4)}, {vr(A,4)}, {vr(vf(n,1),4)}, {vr(C1,4)}")
                a.emit(g2)
    if nxt is None:
        assert not base_q, base_q

def tail8(a, kind, opt):
    E = [(0, b) for b in range(8)] + [(s_, b) for s_ in range(1, 8) for b in range(4, 8)] + [(s_, b) for s_ in range(1, 8) for b in range(4)]
    N = len(E)
    def rd_of(p):
        s_, b = E[p]
        e = tf(p % 8); xo = (s_ >> 2) * SLOT; st = s_ & 3
        if kind == "G":
            return [f"ds_read_b64_tr_b16 {vr(e,2)}, v{G_AD+b} offset:{st*8192+xo}",
                    f"ds_read_b64_tr_b16 {vr(e+2,2)}, v{G_AD+b} offset:{st*8192+1024+xo}"]
        return [f"ds_read_b128 {vr(e,4)}, v{C_AD+st} offset:{(b ^ 4)*4096+xo}"]
    fill = {}
    def put(p, h, ins): fill.setdefault((p, h), []).append(ins)
    def spread(lst, p0, p1):
        hs = [(p, h) for p in range(p0, p1) for h in (1, 2)]
        for i, ins in enumerate(lst):
            put(*hs[i * len(hs) // len(lst)], ins)
    put(1, 1, f"buffer_load_dwordx4 {vr(vf(7,0),4)}, v{V_VOFF}, s[{S_ACT}:{S_ACT+3}], s{S_V} offen {opt['vfl']}")
    put(2, 1, f"buffer_load_dwordx4 {vr(vf(7,1),4)}, v{V_VOFF}, s[{S_ACT}:{S_ACT+3}], s{S_V} offen offset:{opt['voff2']} {opt['vfl']}")
    put(12, 2, "s_barrier")
    sg = opt["sgap"]
    spread(opt["send"], 36 + sg, 36 + sg + opt["sspan"])
    if not opt["pb"]: spread(list(opt["base_loads"]), 3, 3 + opt["bspan"])
    pl = opt["ppos"]
    for i, ins in enumerate(opt["ploads"]):
        put(min(pl + i // 2, N - 1), 1 + i % 2, ins)
    vmq = [("V", s_) for s_ in range(7) for _ in range(2)]
    per = {"G": 2, "C": 1}[kind]
    seen = set()
    for p, (s_, b) in enumerate(E):
        if p % 2 == 0:
            lg = per * len([j for j in range(p + 2, p + 7) if j < N])
            w = f"lgkmcnt({min(lg,15)})"
            if s_ not in seen:
                seen.add(s_)
                last = max(x for x, t in enumerate(vmq) if t == ("V", s_))
                w = f"vmcnt({min(len(vmq)-1-last,63)}) " + w
            a("s_waitcnt " + w)
        rd = rd_of(p + 7) if p + 7 < N else []
        for h in (1, 2):
            C = acc(b, h - 1)
            a(f"v_mfma_f32_16x16x32_bf16 {vr(C,4)}, {vr(tf(p % 8),4)}, {vr(vf(s_,h-1),4)}, {vr(C,4)}")
            for ins in (rd[:1] if h == 1 else rd[1:]) + fill.get((p, h), []):
                if ins.startswith("buffer"): vmq.append(("V", 7) if f"{vr(vf(7,0),4)}," in ins or f"{vr(vf(7,1),4)}," in ins else ("O", 0))
                a(ins)

def prod_issue(a, kind, paced=False):
    srdn = {"G": S_WD, "R": S_CRE, "I": S_CIM}[kind]
    vb = 16 if kind == "G" else 24
    for j in range(8):
        if paced and PACE and j in (2, 4, 6):
            a("s_barrier")
        if NOT: continue
        if j == 0:
            a(f"s_mov_b32 m0, s{S_PM}")
            a("s_nop 0")
        if j == 4:
            a(f"s_add_u32 m0, s{S_PM}, 4096")
            a("s_nop 0")
        a(f"buffer_load_dwordx4 v{vb+j}, s[{srdn}:{srdn+3}], s{S_PS} offen offset:{(j&3)*1024} {TFL} lds")
    if WRAP:
        inc = 262144 if kind == 'G' else 256
        a(f"s_add_u32 s82, s82, {inc}")
        a(f"s_and_b32 s82, s82, 0x{WRAP*inc-1:x}")
        a(f"s_add_u32 s{S_PS}, s83, s82")
    else:
        a(f"s_add_u32 s{S_PS}, s{S_PS}, {262144 if kind == 'G' else 256}")
    a(f"s_add_u32 s{S_PM}, s{S_PM}, {SLOT}")
    a(f"s_cmp_ge_u32 s{S_PM}, {NSLOT*SLOT}")
    a(f"s_cselect_b32 s7, {NSLOT*SLOT}, 0")
    a(f"s_sub_u32 s{S_PM}, s{S_PM}, s7")

def prod_loop(a, kind, n):
    if n == 0: return
    l = a.newlabel("K3_PL")
    a(f"s_mov_b32 s{S_CNT}, {n}")
    a.label(l)
    a("s_waitcnt vmcnt(16)")
    a("s_barrier")
    prod_issue(a, kind, True)
    a(f"s_sub_u32 s{S_CNT}, s{S_CNT}, 1")
    a(f"s_cmp_lg_u32 s{S_CNT}, 0")
    a(f"s_cbranch_scc1 {l}")

def cons_loop(a, kind, n, opt):
    if n == 0: return
    l = a.newlabel("K3_CL")
    a(f"s_mov_b32 s{S_CNT}, {n}")
    a.label(l)
    body(a, kind, kind, opt, loop=True)
    a(f"s_cbranch_scc1 {l}")

def gen_k3(a, out_flags="", prof=False, opts=None):
    opts = opts or {}
    opt = {"nov": int(opts.get("nov", 0))}
    global NOT, WRAP, PACE, TFL
    TFL = opts.get("tfl", "").replace("+", " ")
    opt["vfl"] = opts.get("vfl", "").replace("+", " ")
    opt["nomfma"] = int(opts.get("nomfma", 0))
    opt["vlin"] = int(opts.get("vlin", 0))
    opt["voff2"] = 1024 if opt["vlin"] else 256
    PACE = int(opts.get("pace", 0))
    opt["pace"] = PACE
    WRAP = int(opts.get("wrap", 0))
    opt["wrap"] = WRAP
    NOT = bool(int(opts.get("not", 0)))
    XB16 = int(opts.get("xb16", 0))
    TAIL = int(opts.get("tail", 0))
    PB = int(opts.get("pb", 0)); opt["pb"] = PB
    LB = 3 * SLOT; LST = 272
    assert not TAIL or XB16
    opt["sgap"] = int(opts.get("sgap", 3)); opt["sspan"] = int(opts.get("sspan", 8)); opt["ppos"] = int(opts.get("ppos", 60)); opt["bspan"] = int(opts.get("bspan", 14))
    xsf = opts.get("xsf", "sc1").replace("+", " "); xlf = opts.get("xlf", "sc1").replace("+", " ")
    kernel_begin(a, K3)
    P = Prof(a, prof, 2, list(range(84, 100)), 100)
    a("""
    s_cmp_ge_u32 s2, 256
    s_cbranch_scc1 K3_END
    """)
    P.stamp(0, real=True)
    P.stamp(1)
    a(f"""
    s_load_dwordx2 s[48:49], s[0:1], 96     ; w_down
    s_load_dwordx4 s[52:55], s[0:1], 40
    s_load_dwordx2 s[56:57], s[0:1], 120    ; ws
    s_load_dwordx2 s[58:59], s[0:1], 0      ; x
    s_load_dwordx2 s[60:61], s[0:1], 64     ; Dskip
    s_load_dwordx2 s[62:63], s[0:1], 104    ; out
    v_lshrrev_b32 v16, 6, v0
    v_and_b32 v0, 63, v0
    v_readfirstlane_b32 s3, v16             ; wave
    s_and_b32 s7, s2, 7                     ; xcd
    s_lshr_b32 s77, s2, 3                   ; j
    s_and_b32 s6, s7, 1                     ; hf
    s_lshr_b32 s78, s7, 1
    s_and_b32 s78, s78, 1                   ; nh
    s_lshr_b32 s79, s7, 2                   ; mh
    s_and_b32 s4, s77, 7
    s_lshl_b32 s79, s79, 3
    s_add_u32 s4, s4, s79
    s_lshr_b32 s5, s77, 3
    s_lshl_b32 s78, s78, 2
    s_add_u32 s5, s5, s78
    s_lshl_b32 s{S_T0}, s4, 7               ; t0
    s_lshl_b32 s{S_D0}, s5, 7               ; d0
    s_mov_b32 s80, {SLOT}
    s_mov_b32 s81, {-(NSLOT-1)*SLOT}
    s_mov_b32 s{S_FP}, 0xfffffffe
    v_and_b32 v17, 15, v0                   ; n
    v_lshrrev_b32 v18, 4, v0                ; g
    s_cmp_lt_u32 s3, 4
    s_cbranch_scc0 K3_PROD
    """)
    a(f"""
    v_lshlrev_b32 v19, 4, v17
    v_lshl_add_u32 v{V_VOFF}, v18, 15, v19          ; g*32768 + n*16
    s_lshl_b32 s77, s3, 5
    s_add_u32 s77, s77, s{S_T0}                     ; tw = t0 + 32w
    s_mul_i32 s{S_V}, s6, {352*32768}
    s_lshl_b32 s7, s77, 4
    s_add_u32 s{S_V}, s{S_V}, s7
    s_waitcnt lgkmcnt(0)
    """)
    if opt["vlin"]:
        a(f"v_lshlrev_b32 v{V_VOFF}, 4, v0")
        a(f"s_mul_i32 s{S_V}, s6, {352*32768}")
        a("s_lshl_b32 s7, s77, 6")
        a(f"s_add_u32 s{S_V}, s{S_V}, s7")
    srd(a, S_ACT, 56, 57, ACT_SZ, ACT_OFF)
    def vpro(n):
        a(f"buffer_load_dwordx4 {vr(vf(n,0),4)}, v{V_VOFF}, s[{S_ACT}:{S_ACT+3}], s{S_V} offen")
        a(f"buffer_load_dwordx4 {vr(vf(n,1),4)}, v{V_VOFF}, s[{S_ACT}:{S_ACT+3}], s{S_V} offen offset:256")
        a(f"s_add_u32 s{S_V}, s{S_V}, 131072")
    for n in range(7): vpro(n)
    a(f"""
    v_lshlrev_b32 v20, 11, v17
    v_lshl_add_u32 v{V_BX}, v18, 3, v20             ; x: n*2048 + g*8
    v_lshrrev_b32 v21, 2, v17
    v_and_b32 v21, 1, v21
    v_lshlrev_b32 v21, 2, v21                       ; 4*((n>>2)&1)
    v_lshrrev_b32 v22, 3, v17
    v_add_u32 v21, v21, v22                         ; + (n>>3)
    v_and_b32 v22, 3, v17
    v_lshl_add_u32 v21, v21, 2, v22                 ; 16((n>>2)&1) + 4(n>>3) + (n&3)
    v_lshlrev_b32 v21, 4, v21
    v_lshrrev_b32 v22, 1, v18
    v_lshl_add_u32 v21, v22, 15, v21
    v_and_b32 v22, 1, v18
    v_lshl_add_u32 v{V_BN}, v22, 3, v21
    v_lshlrev_b32 v{V_BD}, 3, v18                   ; D: g*8
    s_lshl_b32 s78, s6, 6
    s_add_u32 s78, s78, s{S_D0}
    s_lshl_b32 s79, s77, 11
    s_lshl_b32 s7, s78, 1
    s_add_u32 s79, s79, s7
    s_add_u32 s{S_XO1}, s79, 32768
    s_lshl_b32 s82, s78, 12                         ; (dk/8)*32768
    s_lshl_b32 s7, s77, 4
    s_add_u32 s82, s82, s7
    s_lshl_b32 s83, s78, 1                          ; D soffset
    s_lshl_b32 s{S_OS}, s77, 12
    s_lshl_b32 s7, s78, 2
    s_add_u32 s{S_OS}, s{S_OS}, s7
    """)
    srd(a, S_X, 58, 59, 0x400000)
    srd(a, S_XN, 56, 57, XN_SZ, XN_OFF)
    srd(a, S_D, 60, 61, 2048)
    X0, N0, D0 = TMP, TMP + 16, TMP + 32
    bl = []
    for i in range(4):
        bl.append(f"buffer_load_dwordx2 {vr(X0+4*i,2)}, v{V_BX}, s[{S_X}:{S_X+3}], s79 offen offset:{32*i}")
        bl.append(f"buffer_load_dwordx2 {vr(X0+4*i+2,2)}, v{V_BX}, s[{S_X}:{S_X+3}], s{S_XO1} offen offset:{32*i}")
    for i in range(4):
        bl.append(f"buffer_load_dwordx2 {vr(N0+4*i,2)}, v{V_BN}, s[{S_XN}:{S_XN+3}], s82 offen")
        bl.append(f"buffer_load_dwordx2 {vr(N0+4*i+2,2)}, v{V_BN}, s[{S_XN}:{S_XN+3}], s82 offen offset:128")
        bl.append(f"buffer_load_dwordx2 {vr(D0+2*i,2)}, v{V_BD}, s[{S_D}:{S_D+3}], s83 offen offset:{32*i}")
        if i < 3: bl.append(f"s_add_u32 s82, s82, 65536")
    opt["base_loads"] = bl
    if TAIL:
        T = 220
        def swap(P, Q):
            return ([f"v_mov_b32 v{T+k}, v{P+k}" for k in range(4)] +
                    [f"v_mov_b32_dpp v{P+k}, v{Q+k} row_ror:8 row_mask:0xf bank_mask:0xc" for k in range(4)] +
                    [f"v_mov_b32_dpp v{Q+k}, v{T+k} row_ror:8 row_mask:0xf bank_mask:0x3" for k in range(4)])
        send = []
        for j in range(2):
            for i in (2*j, 2*j+1):
                p, q_ = acc(4+i, 0), acc(4+i, 1)
                send += [f"v_cvt_pk_bf16_f32 v{p}, v{p}, v{p+1}", f"v_cvt_pk_bf16_f32 v{p+1}, v{p+2}, v{p+3}",
                         f"v_cvt_pk_bf16_f32 v{p+2}, v{q_}, v{q_+1}", f"v_cvt_pk_bf16_f32 v{p+3}, v{q_+2}, v{q_+3}"]
                send += [f"v_min_u32 v{p+r}, s{S_FP}, v{p+r}" for r in range(4)]
            send += swap(acc(4+2*j, 0), acc(5+2*j, 0))
            for i in (2*j, 2*j+1):
                send.append(f"buffer_store_dwordx4 {vr(acc(4+i,0),4)}, v{V_XB}, s[{S_XB}:{S_XB+3}], s{S_XBO} offen offset:{i*1024} {xsf}")
        calc = [f"s_waitcnt vmcnt({4+4})"]
        for i in range(4):
            calc += [f"v_lshlrev_b32 v{T}, 16, v{D0+2*i}", f"v_and_b32 v{T+1}, 0xffff0000, v{D0+2*i}",
                     f"v_lshlrev_b32 v{T+2}, 16, v{D0+2*i+1}", f"v_and_b32 v{T+3}, 0xffff0000, v{D0+2*i+1}"]
            for tb in range(2):
                nn = N0 + 4*i + 2*tb; xx = X0 + 4*i + 2*tb; o = acc(i, tb)
                calc += [f"v_lshlrev_b32 v{T+4}, 16, v{nn}", f"v_and_b32 v{T+5}, 0xffff0000, v{nn}",
                         f"v_lshlrev_b32 v{T+6}, 16, v{nn+1}", f"v_and_b32 v{T+7}, 0xffff0000, v{nn+1}"]
                calc += [f"v_mul_f32 v{T+4+q}, v{T+4+q}, v{T+q}" for q in range(4)]
                calc += [f"v_cvt_pk_bf16_f32 v{T+4}, v{T+4}, v{T+5}", f"v_cvt_pk_bf16_f32 v{T+6}, v{T+6}, v{T+7}",
                         f"v_lshlrev_b32 v{nn}, 16, v{xx}", f"v_and_b32 v{nn+1}, 0xffff0000, v{xx}",
                         f"v_lshlrev_b32 v{xx}, 16, v{xx+1}", f"v_and_b32 v{xx+1}, 0xffff0000, v{xx+1}",
                         f"v_lshlrev_b32 v{T+5}, 16, v{T+4}", f"v_and_b32 v{T+4}, 0xffff0000, v{T+4}",
                         f"v_lshlrev_b32 v{T+7}, 16, v{T+6}", f"v_and_b32 v{T+6}, 0xffff0000, v{T+6}",
                         f"v_add_f32 v{nn}, v{nn}, v{T+5}", f"v_add_f32 v{nn+1}, v{nn+1}, v{T+4}",
                         f"v_add_f32 v{xx}, v{xx}, v{T+7}", f"v_add_f32 v{xx+1}, v{xx+1}, v{T+6}",
                         f"v_add_f32 v{o}, v{o}, v{nn}", f"v_add_f32 v{o+1}, v{o+1}, v{nn+1}",
                         f"v_add_f32 v{o+2}, v{o+2}, v{xx}", f"v_add_f32 v{o+3}, v{o+3}, v{xx+1}"]
        for j in range(2):
            for tb in range(2):
                calc += swap(acc(2*j, tb), acc(2*j+1, tb))
        if PB:
            calc = []
            for j in range(2):
                for tb in range(2):
                    calc += swap(acc(2*j, tb), acc(2*j+1, tb))
            calc.append("s_barrier")
            for i in range(4):
                for tb in range(2):
                    calc.append(f"ds_read_b128 {vr(TMP+4*(2*i+tb),4)}, v{V_BX} offset:{(16*tb + 8*(i&1))*LST + 128*(i>>1)}")
            for i in range(4):
                for tb in range(2):
                    k = 2*i + tb
                    calc.append(f"s_waitcnt lgkmcnt({7-k})")
                    calc += [f"v_add_f32 v{acc(i,tb)+r}, v{acc(i,tb)+r}, v{TMP+4*k+r}" for r in range(4)]
        LD = [acc(4+i, 1) for i in range(4)]
        pl = [f"buffer_load_dwordx4 {vr(LD[k],4)}, v{V_XB}, s[{S_XB}:{S_XB+3}], s{S_XBP} offen offset:{k*1024} {xlf}" for k in range(4)]
        opt["send"], opt["ploads"] = send, pl
    srd(a, S_XB, 56, 57, XB_SZ, XB_OFF)
    srd(a, S_OUT, 62, 63, 0x800000)
    a(f"""
    v_lshrrev_b32 v23, 2, v0
    v_and_b32 v23, 3, v23                   ; r
    v_and_b32 v24, 3, v0                    ; c
    v_lshl_add_u32 v25, v18, 3, v23         ; 8g + r
    v_lshlrev_b32 v25, 8, v25
    v_lshl_add_u32 v25, v24, 3, v25         ; + 8c
    v_and_b32 v26, 1, v18
    v_lshl_add_u32 v26, v26, 2, v23         ; f = r | (g&1)<<2
    s_lshl_b32 s7, s6, 2
    v_xor_b32 v26, s7, v26                  ; f ^ 4hf
    """)
    for b in range(8):
        a(f"v_xor_b32 v27, {b}, v26")
        a(f"v_lshl_add_u32 v{G_AD+b}, v27, 5, v25")
    a("v_xor_b32 v27, v18, v17")
    a("v_lshlrev_b32 v28, 8, v17")
    for st in range(4):
        a(f"v_xor_b32 v29, {4*st}, v27")
        a(f"v_lshl_add_u32 v{C_AD+st}, v29, 4, v28")
    a(f"""
    v_lshlrev_b32 v{V_OUT}, 12, v17
    v_lshl_add_u32 v{V_OUT}, v18, 4, v{V_OUT}        ; n*4096 + g*16
    v_lshlrev_b32 v{V_XB}, 4, v0
    s_lshl_b32 s7, s2, 2
    s_add_u32 s7, s7, s3                    ; wg*4 + w
    s_lshl_b32 s{S_XBO}, s7, {12 if XB16 else 13}
    s_xor_b32 s{S_XBP}, s{S_XBO}, {1 << (14 if XB16 else 15)}
    s_mov_b32 s40, 0x00003f80
    s_mov_b32 s41, 0x3f800000
    s_mov_b32 s{S_CUR}, 0
    """)
    if TAIL:
        a(f"""
        v_and_b32 v27, 7, v17
        v_lshlrev_b32 v27, 12, v27
        v_lshrrev_b32 v28, 3, v17
        v_lshl_add_u32 v27, v28, 6, v27
        v_lshl_add_u32 v{V_OUT}, v18, 4, v27        ; (n&7)*4096 + (n>>3)*64 + g*16
        """)
        if PB:
            a(f"""
            v_and_b32 v27, 7, v17
            s_lshl_b32 s7, s3, 5
            v_add_u32 v27, s7, v27                  ; 32w + (n&7)
            v_mul_u32_u24 v27, {LST}, v27
            v_lshl_add_u32 v27, v28, 6, v27
            v_lshl_add_u32 v27, v18, 4, v27
            v_add_u32 v{V_BX}, {LB}, v27
            """)
    for b in range(8):
        for tb in range(2):
            for r in range(4):
                a(f"v_mov_b32 v{acc(b,tb)+r}, 0")
    P.stamp(2)
    if WRAP:
        a(f"s_mov_b32 s77, s{S_V}")
        a("s_mov_b32 s78, 0")
    a("s_barrier")
    P.stamp(3)
    for b in range(7):
        a.emit(t_read("G", b, 0))
    a("s_cmp_eq_u32 s6, 0")
    a("s_cbranch_scc0 K3_H1")
    cons_loop(a, "G", 10, opt)
    if TAIL: tail8(a, "G", opt)
    else: body(a, "G", None, opt)
    a("s_branch K3_EPI")
    a.label("K3_H1")
    cons_loop(a, "G", 2, opt)
    body(a, "G", "C", opt)
    cons_loop(a, "C", 7, opt)
    if TAIL: tail8(a, "C", opt)
    else: body(a, "C", None, opt)
    if TAIL:
        a.label("K3_EPI")
        a("s_nop 15")
        P.stamp(4)
        a(f"s_add_u32 s77, s{S_OS}, 32768")
        a(f"s_add_u32 s78, s{S_OS}, 65536")
        a(f"s_add_u32 s79, s{S_OS}, 98304")
        a.emit(calc)
        P.stamp(5)
        lp = a.newlabel("K3_POLL"); ck = a.newlabel("K3_PCK"); ok = a.newlabel("K3_POK")
        a(f"s_mov_b32 s{S_CNT}, 0")
        a(f"s_branch {ck}")
        a.label(lp)
        a.emit(pl)
        a.label(ck)
        a("s_waitcnt vmcnt(0)")
        regs = [LD[k] + r for k in range(4) for r in range(4)]
        m = G_AD
        a(f"v_max3_u32 v{m}, v{regs[0]}, v{regs[1]}, v{regs[2]}")
        for k in range(3, 15, 2):
            a(f"v_max3_u32 v{m}, v{m}, v{regs[k]}, v{regs[k+1]}")
        a(f"v_max_u32 v{m}, v{m}, v{regs[15]}")
        a(f"""
        s_nop 0
        v_cmp_eq_u32 vcc, -1, v{m}
        s_add_u32 s{S_CNT}, s{S_CNT}, 1
        s_nop 1
        s_cbranch_vccz {ok}
        s_cmp_lt_u32 s{S_CNT}, 100000
        s_cbranch_scc1 {lp}
        """)
        a.label(ok)
        P.stamp(6)
        if P.on:
            a(f"s_mov_b32 s{P.regs[9]}, s{S_CNT}")
        U = 220
        def ostore(i):
            for tb in range(2):
                so = (S_OS, 77, 78, 79)[2 * tb + (i & 1)]
                a(f"buffer_store_dwordx4 {vr(acc(i,tb),4)}, v{V_OUT}, s[{S_OUT}:{S_OUT+3}], s{so} offen offset:{128*(i>>1)} {out_flags}")
        for i in range(4):
            L = LD[i]
            for k in range(4):
                a(f"v_lshlrev_b32 v{U+2*k}, 16, v{L+k}")
                a(f"v_and_b32 v{U+2*k+1}, 0xffff0000, v{L+k}")
            for k in range(4):
                o = acc(i, k >> 1) + 2 * (k & 1)
                a(f"v_add_f32 v{o}, v{o}, v{U+2*k}")
                a(f"v_add_f32 v{o+1}, v{o+1}, v{U+2*k+1}")
            ostore(i)
        P.stamp(7)
        if P.on:
            a("s_waitcnt vmcnt(0)")
        P.stamp(8)
        P.stamp(10, real=True)
        P.flush(56, 57, 48, 3, 9, 10)
        a("s_endpgm")
    else:
        old_epi(a, P, opt, XB16, xsf, xlf, X0, N0, D0, out_flags)
    a.label("K3_PROD")
    a(f"""
    s_sub_u32 s77, s3, 4                    ; pw
    v_and_b32 v19, 15, v0                   ; p
    v_lshrrev_b32 v20, 1, v19               ; window
    v_and_b32 v21, 1, v19                   ; half
    v_lshlrev_b32 v21, 4, v21
    v_lshl_add_u32 v21, v18, 11, v21
    v_xor_b32 v22, v20, v18
    v_xor_b32 v23, 4, v22
    v_lshl_add_u32 v22, v22, 5, v21
    v_lshl_add_u32 v23, v23, 5, v21
    """)
    for j in range(8):
        src = 22 if ((j >> 1) & 1) == 0 else 23
        a(f"v_add_u32 v{16+j+16}, {8192*j - 1024*(j&3)}, v{src}")
    a("v_xor_b32 v22, v19, v18")
    a("v_lshlrev_b32 v21, 11, v18")
    for j in range(8):
        a(f"v_xor_b32 v23, {4*(j&3)}, v22")
        a(f"v_lshl_add_u32 v23, v23, 4, v21")
        a(f"v_add_u32 v{24+j+16}, {8192*j - 1024*(j&3)}, v23")
    for j in range(16):
        a(f"v_mov_b32 v{16+j}, v{32+j}")
    a(f"""
    s_lshl_b32 s{S_PM}, s77, 13             ; pw*8192
    s_mul_i32 s{S_PS}, s6, 2816
    s_lshl_b32 s7, s77, 5
    s_add_u32 s{S_PS}, s{S_PS}, s7
    s_lshl_b32 s{S_PS}, s{S_PS}, 11
    s_lshl_b32 s7, s{S_D0}, 1
    s_add_u32 s{S_PS}, s{S_PS}, s7
    s_lshl_b32 s79, s77, 5
    s_add_u32 s79, s79, s{S_D0}
    s_lshl_b32 s79, s79, 11
    s_waitcnt lgkmcnt(0)
    """)
    srd(a, S_WD, 48, 49, 0x700000)
    srd(a, S_CRE, 52, 53, 0x200000)
    srd(a, S_CIM, 54, 55, 0x200000)
    P.stamp(11)
    if WRAP:
        a(f"s_mov_b32 s83, s{S_PS}")
        a("s_mov_b32 s82, 0")
    for _ in range(2):
        prod_issue(a, "G")
    a("s_waitcnt vmcnt(8)")
    P.stamp(2)
    a("s_barrier")
    if PACE:
        prod_issue(a, "G", True)
        prod_issue(a, "G")
    else:
        for _ in range(2):
            prod_issue(a, "G")
    a("s_cmp_eq_u32 s6, 0")
    a("s_cbranch_scc0 K3_PH1")
    prod_loop(a, "G", 18)
    a("s_branch K3_PTAIL")
    a.label("K3_PH1")
    prod_loop(a, "G", 2)
    a(f"s_mov_b32 s{S_PS}, s79")
    if WRAP:
        a(f"s_mov_b32 s83, s79")
        a("s_mov_b32 s82, 0")
    prod_loop(a, "R", 8)
    a(f"s_mov_b32 s{S_PS}, s79")
    prod_loop(a, "I", 8)
    a.label("K3_PTAIL")
    if TAIL and int(opts.get("vtouch", 1)):
        a(f"""
        v_and_b32 v32, 15, v0
        v_lshrrev_b32 v33, 4, v0
        v_lshlrev_b32 v32, 4, v32
        v_lshl_add_u32 v32, v33, 15, v32
        s_mul_i32 s78, s6, {352*32768}
        s_lshl_b32 s7, s77, 5
        s_add_u32 s7, s7, s{S_T0}
        s_lshl_b32 s7, s7, 4
        s_add_u32 s78, s78, s7
        s_add_u32 s78, s78, {87*131072}
        """)
        srd(a, S_ACT, 56, 57, ACT_SZ, ACT_OFF)
        a(f"buffer_load_dwordx4 v[36:39], v32, s[{S_ACT}:{S_ACT+3}], s78 offen")
        a(f"buffer_load_dwordx4 v[40:43], v32, s[{S_ACT}:{S_ACT+3}], s78 offen offset:256")
    if TAIL and int(opts.get('vtouch', 1)) and PB:
        srd(a, S_X, 58, 59, 0x400000)
        srd(a, S_XN, 56, 57, XN_SZ, XN_OFF)
        srd(a, S_D, 60, 61, 2048)
        NR, XR_, DP, DF, RR, TT = 48, 64, 80, 84, 92, 124
        a(f"""
        s_lshl_b32 s78, s6, 6
        s_add_u32 s78, s78, s{S_D0}                     ; dk
        s_lshl_b32 s79, s77, 5
        s_add_u32 s79, s79, s{S_T0}                     ; tw
        v_and_b32 v130, 7, v0                            ; c
        v_lshrrev_b32 v131, 3, v0                        ; p8
        v_lshlrev_b32 v132, 15, v130
        v_lshl_add_u32 v132, v131, 4, v132                 ; xn: c*32768 + p8*16
        s_lshl_b32 s82, s78, 12
        s_lshl_b32 s7, s79, 4
        s_add_u32 s82, s82, s7
        """)
        for m in range(4):
            a(f"buffer_load_dwordx4 {vr(NR+4*m,4)}, v132, s[{S_XN}:{S_XN+3}], s82 offen offset:{128*m}")
        a(f"""
        v_lshrrev_b32 v133, 2, v131
        v_lshlrev_b32 v133, 3, v133
        v_and_b32 v134, 3, v131
        v_add_u32 v133, v133, v134
        v_lshlrev_b32 v134, 11, v133
        v_lshl_add_u32 v134, v130, 4, v134                 ; x: row*2048 + c*16
        s_lshl_b32 s82, s79, 11
        s_lshl_b32 s7, s78, 1
        s_add_u32 s82, s82, s7
        """)
        for m in range(4):
            a(f"s_add_u32 s83, s82, {(m&1)*32768 + (m>>1)*8192}")
            a(f"buffer_load_dwordx4 {vr(XR_+4*m,4)}, v134, s[{S_X}:{S_X+3}], s83 offen")
        a(f"""
        v_lshlrev_b32 v135, 4, v130
        buffer_load_dwordx4 {vr(DP,4)}, v135, s[{S_D}:{S_D+3}], s7 offen
        s_lshl_b32 s7, s77, 5
        v_add_u32 v133, s7, v133
        v_mul_u32_u24 v133, {LST}, v133
        v_lshl_add_u32 v133, v130, 5, v133
        v_add_u32 v133, {LB}, v133
        """)
    if TAIL and int(opts.get('vtouch', 1)) and not PB:
        srd(a, S_X, 58, 59, 0x400000)
        srd(a, S_XN, 56, 57, XN_SZ, XN_OFF)
        srd(a, S_D, 60, 61, 2048)
        a(f"""
        s_lshl_b32 s78, s6, 6
        s_add_u32 s78, s78, s{S_D0}                     ; dk
        s_lshl_b32 s79, s77, 5
        s_add_u32 s79, s79, s{S_T0}                     ; tw
        s_lshl_b32 s82, s79, 11
        s_lshl_b32 s7, s78, 1
        s_add_u32 s82, s82, s7
        v_and_b32 v33, 31, v0
        v_lshlrev_b32 v34, 11, v33
        buffer_load_dword v44, v34, s[{S_X}:{S_X+3}], s82 offen
        s_lshl_b32 s82, s78, 12
        s_lshl_b32 s83, s79, 4
        s_add_u32 s82, s82, s83
        v_lshrrev_b32 v34, 2, v33
        v_lshlrev_b32 v34, 15, v34
        v_and_b32 v35, 3, v33
        v_lshl_add_u32 v34, v35, 7, v34
        buffer_load_dword v45, v34, s[{S_XN}:{S_XN+3}], s82 offen
        v_mov_b32 v35, 0
        buffer_load_dword v46, v35, s[{S_D}:{S_D+3}], s7 offen
        """)
    ex = (11 if PB else 5) if TAIL and int(opts.get("vtouch", 1)) else 0
    for vm in (16 + ex, 8 + ex, ex):
        a(f"s_waitcnt vmcnt({vm})")
        a("s_barrier")
        if PACE and vm:
            for _ in range(3): a("s_barrier")
    a("s_waitcnt vmcnt(0)")
    if PB:
        for k in range(4):
            a(f"v_lshlrev_b32 v{DF+2*k}, 16, v{DP+k}")
            a(f"v_and_b32 v{DF+2*k+1}, 0xffff0000, v{DP+k}")
        for m in range(4):
            R = RR + 8*m
            for k in range(4):
                n_, x_ = NR + 4*m + k, XR_ + 4*m + k
                a(f"v_lshlrev_b32 v{TT}, 16, v{n_}")
                a(f"v_and_b32 v{TT+1}, 0xffff0000, v{n_}")
                a(f"v_mul_f32 v{TT}, v{TT}, v{DF+2*k}")
                a(f"v_mul_f32 v{TT+1}, v{TT+1}, v{DF+2*k+1}")
                a(f"v_lshlrev_b32 v{R+2*k}, 16, v{x_}")
                a(f"v_cvt_pk_bf16_f32 v{TT}, v{TT}, v{TT+1}")
                a(f"v_and_b32 v{R+2*k+1}, 0xffff0000, v{x_}")
                a(f"v_lshlrev_b32 v{TT+2}, 16, v{TT}")
                a(f"v_and_b32 v{TT+3}, 0xffff0000, v{TT}")
                a(f"v_add_f32 v{R+2*k}, v{R+2*k}, v{TT+2}")
                a(f"v_add_f32 v{R+2*k+1}, v{R+2*k+1}, v{TT+3}")
            off = (16*(m&1) + 4*(m>>1)) * LST
            a(f"ds_write_b128 v133, {vr(R,4)} offset:{off}")
            a(f"ds_write_b128 v133, {vr(R+4,4)} offset:{off+16}")
        a("s_waitcnt lgkmcnt(0)")
        a("s_barrier")
    P.stamp(4)
    P.stamp(10, real=True)
    P.flush(56, 57, 48, 3, 9, 10)
    a.label("K3_END")
    a("s_endpgm")
    return 228 if TAIL else NV


def old_epi(a, P, opt, XB16, xsf, xlf, X0, N0, D0, out_flags):
    a.label("K3_EPI")
    a("s_nop 15")
    P.stamp(4)
    if XB16:
        for i in range(4):
            p, q_ = acc(4+i, 0), acc(4+i, 1)
            a(f"v_cvt_pk_bf16_f32 v{p}, v{p}, v{p+1}")
            a(f"v_cvt_pk_bf16_f32 v{p+1}, v{p+2}, v{p+3}")
            a(f"v_cvt_pk_bf16_f32 v{p+2}, v{q_}, v{q_+1}")
            a(f"v_cvt_pk_bf16_f32 v{p+3}, v{q_+2}, v{q_+3}")
            for r in range(4):
                a(f"v_min_u32 v{p+r}, s{S_FP}, v{p+r}")
            a(f"buffer_store_dwordx4 {vr(p,4)}, v{V_XB}, s[{S_XB}:{S_XB+3}], s{S_XBO} offen offset:{i*1024} {xsf}")
    else:
        a(f"s_add_u32 s7, s{S_XBO}, 4096")
        for i in range(4):
            for tb in range(2):
                k = 2*i + tb
                for r in range(4):
                    a(f"v_min_u32 v{acc(4+i,tb)+r}, s{S_FP}, v{acc(4+i,tb)+r}")
                a(f"buffer_store_dwordx4 {vr(acc(4+i,tb),4)}, v{V_XB}, s[{S_XB}:{S_XB+3}], s{S_XBO if k < 4 else 7} offen offset:{(k&3)*1024} {xsf}")
    NL = 4 if XB16 else 8
    def ploads():
        if not XB16: a(f"s_add_u32 s7, s{S_XBP}, 4096")
        for k in range(NL):
            a(f"buffer_load_dwordx4 {vr(VR+4*k,4)}, v{V_XB}, s[{S_XB}:{S_XB+3}], s{S_XBP if k < 4 else 7} offen offset:{(k&3)*1024} {xlf}")
    a(f"s_waitcnt vmcnt({NL})")
    T = G_AD
    for i in range(4):
        a(f"v_lshlrev_b32 v{T}, 16, v{D0+2*i}")
        a(f"v_and_b32 v{T+1}, 0xffff0000, v{D0+2*i}")
        a(f"v_lshlrev_b32 v{T+2}, 16, v{D0+2*i+1}")
        a(f"v_and_b32 v{T+3}, 0xffff0000, v{D0+2*i+1}")
        for tb in range(2):
            nn = N0 + 4*i + 2*tb; xx = X0 + 4*i + 2*tb; o = acc(i, tb)
            a(f"v_lshlrev_b32 v{T+4}, 16, v{nn}")
            a(f"v_and_b32 v{T+5}, 0xffff0000, v{nn}")
            a(f"v_lshlrev_b32 v{T+6}, 16, v{nn+1}")
            a(f"v_and_b32 v{T+7}, 0xffff0000, v{nn+1}")
            for q in range(4):
                a(f"v_mul_f32 v{T+4+q}, v{T+4+q}, v{T+q}")
            a(f"v_cvt_pk_bf16_f32 v{T+4}, v{T+4}, v{T+5}")
            a(f"v_cvt_pk_bf16_f32 v{T+6}, v{T+6}, v{T+7}")
            a(f"v_lshlrev_b32 v{nn}, 16, v{xx}")
            a(f"v_and_b32 v{nn+1}, 0xffff0000, v{xx}")
            a(f"v_lshlrev_b32 v{xx}, 16, v{xx+1}")
            a(f"v_and_b32 v{xx+1}, 0xffff0000, v{xx+1}")
            a(f"v_lshlrev_b32 v{T+5}, 16, v{T+4}")
            a(f"v_and_b32 v{T+4}, 0xffff0000, v{T+4}")
            a(f"v_lshlrev_b32 v{T+7}, 16, v{T+6}")
            a(f"v_and_b32 v{T+6}, 0xffff0000, v{T+6}")
            a(f"v_add_f32 v{nn}, v{nn}, v{T+5}")
            a(f"v_add_f32 v{nn+1}, v{nn+1}, v{T+4}")
            a(f"v_add_f32 v{xx}, v{xx}, v{T+7}")
            a(f"v_add_f32 v{xx+1}, v{xx+1}, v{T+6}")
            a(f"v_add_f32 v{o}, v{o}, v{nn}")
            a(f"v_add_f32 v{o+1}, v{o+1}, v{nn+1}")
            a(f"v_add_f32 v{o+2}, v{o+2}, v{xx}")
            a(f"v_add_f32 v{o+3}, v{o+3}, v{xx+1}")
    P.stamp(5)
    lp = a.newlabel("K3_POLL"); ok = a.newlabel("K3_POK")
    a(f"s_mov_b32 s{S_CNT}, 0")
    a.label(lp)
    ploads()
    a("s_waitcnt vmcnt(0)")
    m = T
    a(f"v_max3_u32 v{m}, v{VR}, v{VR+1}, v{VR+2}")
    for k in range(3, 4*NL-1, 2):
        a(f"v_max3_u32 v{m}, v{m}, v{VR+k}, v{VR+k+1}")
    a(f"v_max_u32 v{m}, v{m}, v{VR+4*NL-1}")
    a(f"""
    v_cmp_eq_u32 vcc, -1, v{m}
    s_add_u32 s{S_CNT}, s{S_CNT}, 1
    s_cbranch_vccz {ok}
    s_cmp_lt_u32 s{S_CNT}, 100000
    s_cbranch_scc1 {lp}
    """)
    a.label(ok)
    P.stamp(6)
    if P.on:
        a(f"s_mov_b32 s{P.regs[9]}, s{S_CNT}")
    a(f"s_add_u32 s7, s{S_OS}, 65536")
    for i in range(4):
        for tb in range(2):
            k = 2*i + tb
            if XB16:
                for h in range(2):
                    o = acc(i, tb) + 2*h
                    a(f"v_dot2_f32_bf16 v{o}, v{VR+4*i+2*tb+h}, s40, v{o}")
                    a(f"v_dot2_f32_bf16 v{o+1}, v{VR+4*i+2*tb+h}, s41, v{o+1}")
                a("s_nop 3")
            else:
                for r in range(4):
                    a(f"v_add_f32 v{acc(i,tb)+r}, v{acc(i,tb)+r}, v{VR+4*k+r}")
            a(f"buffer_store_dwordx4 {vr(acc(i,tb),4)}, v{V_OUT}, s[{S_OUT}:{S_OUT+3}], s{S_OS if tb == 0 else 7} offen offset:{64*i} {out_flags}")
    P.stamp(7)
    if P.on:
        a("s_waitcnt vmcnt(0)")
    P.stamp(8)
    P.stamp(10, real=True)
    P.flush(56, 57, 48, 3, 9, 10)
    a("s_endpgm")
```

```python
from common import *

K1 = "ssm_ln_kernel"
K1_LDS = 2560
TK = {24: (88, 89), 32: (90, 91), 40: (92, 93), 48: (94, 95), 80: (96, 97), 88: (98, 99), 96: (24, 25), 104: (26, 27), 120: (6, 7)}

def gen_k1(a, prof=False, opts=None):
    opts = opts or {}
    kernel_begin(a, K1)
    P = Prof(a, prof, 0, list(range(40, 50)), 50)
    a("""
    s_cmp_ge_u32 s2, 256
    s_cbranch_scc1 K1_END
    """)
    P.stamp(0, real=True)
    P.stamp(1)
    a("""
    s_load_dwordx2 s[4:5], s[0:1], 0
    s_load_dwordx2 s[6:7], s[0:1], 120
    s_load_dwordx8 s[88:95], s[0:1], 24
    s_load_dwordx4 s[96:99], s[0:1], 80
    s_load_dwordx4 s[24:27], s[0:1], 96
    s_load_dwordx4 s[28:31], s[0:1], 8
    s_load_dwordx4 s[32:35], s[0:1], 56
    v_and_b32 v1, 63, v0
    v_lshrrev_b32 v2, 6, v0
    v_and_b32 v3, 7, v1                 ; r
    v_lshrrev_b32 v4, 3, v1             ; part
    v_lshlrev_b32 v5, 5, v2
    v_add_u32 v5, v5, v4
    s_lshl_b32 s3, s2, 3
    v_add_u32 v6, s3, v3
    s_lshr_b32 s20, s2, 2
    s_lshl_b32 s20, s20, 5
    s_and_b32 s21, s2, 1
    s_lshl_b32 s21, s21, 4
    s_add_u32 s20, s20, s21
    s_and_b32 s21, s2, 2
    s_lshl_b32 s21, s21, 1
    s_add_u32 s20, s20, s21
    v_lshrrev_b32 v7, 2, v3
    v_and_b32 v8, 3, v3
    v_lshl_add_u32 v7, v7, 3, v8
    v_add_u32 v7, s20, v7               ; row
    v_lshlrev_b32 v7, 11, v7
    v_lshl_add_u32 v7, v5, 4, v7
    v_lshlrev_b32 v8, 15, v5
    v_lshl_add_u32 v8, v6, 4, v8
    v_mul_u32_u24 v9, 144, v3
    v_lshl_add_u32 v10, v2, 3, v4       ; w*8+part
    v_lshl_add_u32 v10, v10, 2, v9
    s_waitcnt lgkmcnt(0)
    """)
    srd(a, 8, 4, 5, 0x400000)
    srd(a, 12, 6, 7, XN_SZ, XN_OFF)
    srd(a, 16, 6, 7, EX_SZ + 0x400, EX_OFF)
    for j in range(4):
        a(f"buffer_load_dwordx4 v[{16+4*j}:{19+4*j}], v7, s[8:11], 0 offen offset:{128*j}")
    TOUCH = int(opts.get("touch", 0))
    ntouch = 0
    if TOUCH:
        a(f"""
        s_lshr_b32 s3, s2, 3
        v_lshl_add_u32 v110, v0, 5, s3
        v_mul_u32_u24 v110, {TOUCH}, v110
        """)
        lst = [(80, 0x700000), (88, 0x700000), (24, 0x200000), (32, 0x200000), (96, 0x700000), (40, 0x200000), (48, 0x200000), (120, 0x2300000), (104, 0x800000)]
        sel = opts.get("tsel", "012345678")
        for i, (ko, size) in enumerate(lst):
            if str(i) not in sel: continue
            b = 52 + 4 * i
            lo, hi = TK[ko]
            srd(a, b, lo, hi, size)
            for rep in range((size + 8192 * TOUCH - 1) // (8192 * TOUCH)):
                a(f"s_mov_b32 s23, {rep * 8192 * TOUCH}")
                a(f"buffer_load_dword v{111 + (ntouch & 7)}, v110, s[{b}:{b+3}], s23 offen")
                ntouch += 1
    PF = opts.get("pf", "")
    if PF:
        LS = int(opts.get("pfs", 128))
        per = max(1, 0x800000 // (65536 * LS))
        a(f"""
        s_lshl_b32 s3, s2, 8
        v_add_u32 v110, s3, v0
        v_mul_u32_u24 v110, {LS}, v110
        s_lshr_b32 s3, s2, 2
        s_lshl_b32 s3, s3, 8
        v_add_u32 v109, s3, v0
        v_mul_u32_u24 v109, {LS}, v109
        """)
        for i, c in enumerate(PF):
            b = 52 + 4 * i
            if c in "gud":
                lo, hi = TK[{"g": 80, "u": 88, "d": 96}[c]]
                srd(a, b, lo, hi, 0x700000)
                for rep in range(per):
                    a(f"s_mov_b32 s23, {rep * 65536 * LS}")
                    a(f"buffer_load_dword v{111 + (ntouch & 7)}, v110, s[{b}:{b+3}], s23 offen")
                    ntouch += 1
            elif c == "s":
                a(f"""
                s_and_b32 s3, s2, 3
                s_cmp_lt_u32 s3, 2
                s_cselect_b32 s20, s88, s92
                s_cselect_b32 s21, s89, s93
                s_cselect_b32 s22, s90, s94
                s_cselect_b32 s23, s91, s95
                s_and_b32 s3, s2, 1
                s_cmp_eq_u32 s3, 0
                s_cselect_b32 s{b}, s20, s22
                s_cselect_b32 s{b+1}, s21, s23
                s_mov_b32 s{b+2}, 0x200000
                s_mov_b32 s{b+3}, 0x00020000
                """)
                for rep in range(per):
                    a(f"s_mov_b32 s23, {rep * 16384 * LS}")
                    a(f"buffer_load_dword v{111 + (ntouch & 7)}, v109, s[{b}:{b+3}], s23 offen")
                    ntouch += 1
            elif c == "p":
                a(f"""
                s_cmp_eq_u32 s2, 1
                s_cselect_b32 s{b}, s30, s28
                s_cselect_b32 s{b+1}, s31, s29
                s_cmp_eq_u32 s2, 2
                s_cselect_b32 s{b}, s32, s{b}
                s_cselect_b32 s{b+1}, s33, s{b+1}
                s_cmp_eq_u32 s2, 3
                s_cselect_b32 s{b}, s34, s{b}
                s_cselect_b32 s{b+1}, s35, s{b+1}
                s_cmp_lt_u32 s2, 4
                s_cselect_b32 s{b+2}, 2048, 0
                s_mov_b32 s{b+3}, 0x00020000
                v_lshlrev_b32 v107, 7, v0
                buffer_load_dword v{111 + (ntouch & 7)}, v107, s[{b}:{b+3}], 0 offen
                """)
                ntouch += 1
            elif c == "b":
                a(f"""
                s_lshr_b32 s3, s2, 1
                s_lshl_b32 s3, s3, 8
                v_add_u32 v108, s3, v0
                v_mul_u32_u24 v108, {LS}, v108
                s_and_b32 s3, s2, 1
                s_cmp_eq_u32 s3, 0
                s_cselect_b32 s{b}, s88, s90
                s_cselect_b32 s{b+1}, s89, s91
                s_mov_b32 s{b+2}, 0x200000
                s_mov_b32 s{b+3}, 0x00020000
                """)
                for rep in range(per):
                    a(f"s_mov_b32 s23, {rep * 32768 * LS}")
                    a(f"buffer_load_dword v{111 + (ntouch & 7)}, v108, s[{b}:{b+3}], s23 offen")
                    ntouch += 1
    if int(opts.get("pf1", 0)):
        R1 = int(opts.get("pf1rows", 256))
        a(f"""
        v_readfirstlane_b32 s3, v2
        v_lshlrev_b32 v110, 8, v1
        v_add_u32 v110, s2, v110
        v_lshlrev_b32 v110, 7, v110
        s_cmp_lt_u32 s3, 2
        s_cselect_b32 s20, s96, s88
        s_cselect_b32 s21, s97, s89
        s_cselect_b32 s22, s98, s90
        s_cselect_b32 s23, s99, s91
        s_mov_b32 s54, {R1 * 7168}
        s_cselect_b32 s54, s54, 0x200000
        s_and_b32 s3, s3, 1
        s_cmp_eq_u32 s3, 0
        s_cselect_b32 s52, s20, s22
        s_cselect_b32 s53, s21, s23
        s_mov_b32 s55, 0x00020000
        buffer_load_dword v111, v110, s[52:55], 0 offen
        """)
        ntouch += 1
    a(f"s_waitcnt vmcnt({ntouch})")
    for d in range(16):
        a(f"v_lshlrev_b32 v{32+2*d}, 16, v{16+d}")
        a(f"v_and_b32 v{33+2*d}, 0xffff0000, v{16+d}")
    for q in range(4):
        a(f"v_add_f32 v{64+q}, v{32+q}, v{36+q}")
    for d in range(8, 32, 4):
        for q in range(4):
            a(f"v_add_f32 v{64+q}, v{64+q}, v{32+d+q}")
    a("v_add_f32 v64, v64, v65")
    a("v_add_f32 v66, v66, v67")
    a("v_add_f32 v64, v64, v66")
    a("ds_write_b32 v10, v64")
    a("s_waitcnt lgkmcnt(0)")
    a("s_barrier")
    def reduce32(off, dst):
        for q in range(8):
            a(f"ds_read_b128 v[{68+4*q}:{71+4*q}], v9 offset:{off+16*q}")
        a("s_waitcnt lgkmcnt(0)")
        for n in (16, 8, 4, 2, 1):
            for q in range(n):
                a(f"v_add_f32 v{68+q}, v{68+q}, v{68+n+q}")
        a(f"v_mul_f32 v{dst}, 0x3a800000, v68")
    reduce32(0, 100)
    for d in range(32):
        a(f"v_sub_f32 v{68+d}, v{32+d}, v100")
    for q in range(4):
        a(f"v_mul_f32 v{64+q}, v{68+q}, v{68+q}")
    for d in range(4, 32, 4):
        for q in range(4):
            a(f"v_fmac_f32 v{64+q}, v{68+d+q}, v{68+d+q}")
    a("v_add_f32 v64, v64, v65")
    a("v_add_f32 v66, v66, v67")
    a("v_add_f32 v64, v64, v66")
    a("ds_write_b32 v10, v64 offset:1152")
    a("s_waitcnt lgkmcnt(0)")
    a("s_barrier")
    reduce32(1152, 101)
    a("""
    v_cvt_pk_bf16_f32 v102, v100, v101
    v_lshlrev_b32 v100, 16, v102
    v_and_b32 v101, 0xffff0000, v102
    v_add_f32 v101, 0x3727c5ac, v101        ; + 1e-5
    v_cvt_pk_bf16_f32 v101, v101, v101
    v_and_b32 v101, 0xffff0000, v101
    v_sqrt_f32 v101, v101
    s_nop 0
    v_cvt_pk_bf16_f32 v101, v101, v101
    v_and_b32 v101, 0xffff0000, v101
    v_rcp_f32 v101, v101
    s_nop 0
    """)
    for d in range(16):
        x0, x1 = 32 + 2*d, 33 + 2*d
        a(f"v_sub_f32 v{x0}, v{x0}, v100")
        a(f"v_sub_f32 v{x1}, v{x1}, v100")
        a(f"v_cvt_pk_bf16_f32 v{x0}, v{x0}, v{x1}")
        a(f"v_and_b32 v{x1}, 0xffff0000, v{x0}")
        a(f"v_lshlrev_b32 v{x0}, 16, v{x0}")
        a(f"v_mul_f32 v{x0}, v{x0}, v101")
        a(f"v_mul_f32 v{x1}, v{x1}, v101")
        a(f"v_cvt_pk_bf16_f32 v{16+d}, v{x0}, v{x1}")
    for j in range(4):
        a(f"s_mov_b32 s23, {8*32768*j}")
        a(f"buffer_store_dwordx4 v[{16+4*j}:{19+4*j}], v8, s[12:15], s23 offen {(opts or {}).get('k1st','')}".rstrip())
    a("""
    v_cmp_gt_u32 vcc, 32, v0
    s_and_saveexec_b64 s[20:21], vcc
    s_cbranch_execz K1_NOCLR
    s_lshl_b32 s22, s2, 9
    s_and_b32 s23, s2, 7
    s_lshl_b32 s23, s23, 1
    v_lshrrev_b32 v12, 4, v0
    v_add_u32 v12, s23, v12             ; row
    v_cmp_lt_u32 vcc, 6, v12
    v_lshlrev_b32 v11, 4, v0
    s_nop 1
    v_cndmask_b32 v12, 0, -1, vcc
    v_cndmask_b32 v13, 0, -1, vcc
    v_cndmask_b32 v14, 0, -1, vcc
    v_cndmask_b32 v15, 0, -1, vcc
    buffer_store_dwordx4 v[12:15], v11, s[16:19], s22 offen
    """)
    if int((opts or {}).get("merge", 0)):
        a(f"""
        v_mov_b32 v10, 0
        s_lshl_b32 s23, s2, 2
        s_add_u32 s23, s23, 0x{EX_SZ:x}
        buffer_store_dword v10, v10, s[16:19], s23 offen
        """)
    a.label("K1_NOCLR")
    a("s_mov_b64 exec, s[20:21]")
    if P.on:
        a("s_waitcnt vmcnt(0)")
        a("v_lshrrev_b32 v2, 6, v0")
        a("s_nop 1")
        a("v_readfirstlane_b32 s3, v2")
    P.stamp(9, real=True)
    P.flush(6, 7, 36, 3, 70, 71)
    a.label("K1_END")
    a("s_endpgm")
    return 120
```

```python
from common import *
from stream import Stream

K2 = "ssm_gemm1_kernel"
SLOT = 21504
NSLOT = 6
SCR_W = NSLOT * SLOT
TABLE = SCR_W + 8 * 1792
K2_LDS = TABLE + 15 * 256

V_XO = 1
V_GA, V_SA0, V_SA1, V_D1 = 2, 3, 4, 5
Q0 = 2
GA2 = [6, 7, 8, 9]
V_D0, V_D2, V_ST, V_P16, V_SW, V_TB = 10, 11, 12, 13, 14, 15
LAM, TH, A1, CF, A8, A32 = 16, 18, 20, 24, 28, 32
V_D0B = 36
V_XO2 = 37
XR = 40
NXR = 6
WR = 88
NWR = 6
def SRE(b): return 112 + 8 * b
def SIM(b): return 128 + 8 * b
def PG(j): return 144 + 16 * j
def PU(j): return PG(j) + 8
T1 = 192
REV = [0]
def xr(n, tb): return XR + 8 * ((63 - n) % NXR if (REV[0] and n >= 32) else n % NXR) + 4 * tb
def wr(i): return WR + 4 * (i % NWR)

S_XN, S_G, S_U, S_D0, S_D1, S_D2, S_ACT, S_EXR, S_EXW, S_XB, S_P0, S_P1, S_P2 = range(8, 60, 4)
S_W, S_RB, S_CG, S_TW = 3, 4, 5, 6
S_X, S_O01, S_O2, S_M0, S_M1, S_M2, S_ST, S_SS, S_ER, S_EW, S_XBO, S_O96, S_CNT, S_T = range(76, 90)

L2E = "0x3fb8aa3b"
def f32(x):
    import struct
    return "0x%08x" % struct.unpack("<I", struct.pack("<f", x))[0]

def quad_mac(d, A, s):
    o = []
    for b in (0, 1):
        o.append(f"v_fma_f32 v{d+2*b}, v{A+2*b}, v{s+2*b}, v{d+2*b}")
        o.append(f"v_fma_f32 v{d+2*b+1}, v{A+2*b}, v{s+2*b+1}, v{d+2*b+1}")
    for b in (0, 1):
        o.append(f"v_fma_f32 v{d+2*b}, -v{A+2*b+1}, v{s+2*b+1}, v{d+2*b}")
        o.append(f"v_fma_f32 v{d+2*b+1}, v{A+2*b+1}, v{s+2*b}, v{d+2*b+1}")
    return o

def power(d, n, t):
    o = []
    for b in (0, 1):
        o.append(f"v_mul_f32 v{t+3*b}, {n}, v{LAM+b}")
        o.append(f"v_mul_f32 v{t+3*b+1}, {n}, v{TH+b}")
    for b in (0, 1):
        o.append(f"v_exp_f32 v{t+3*b}, v{t+3*b}")
        o.append(f"v_fract_f32 v{t+3*b+1}, v{t+3*b+1}")
    for b in (0, 1):
        o.append(f"v_cos_f32 v{t+3*b+2}, v{t+3*b+1}")
        o.append(f"v_sin_f32 v{t+3*b+1}, v{t+3*b+1}")
    for b in (0, 1):
        o.append(f"v_mul_f32 v{d+2*b}, v{t+3*b}, v{t+3*b+2}")
        o.append(f"v_mul_f32 v{d+2*b+1}, v{t+3*b}, v{t+3*b+1}")
    return o

def pack_store(O, d0, d1, soff_expr, flags):
    o = [f"v_cvt_pk_bf16_f32 v{O}, v{d0}, v{d0+1}",
         f"v_cvt_pk_bf16_f32 v{O+1}, v{d0+2}, v{d0+3}",
         f"v_cvt_pk_bf16_f32 v{O+2}, v{d1}, v{d1+1}",
         f"v_cvt_pk_bf16_f32 v{O+3}, v{d1+2}, v{d1+3}",
         soff_expr,
         f"v_permlane16_swap_b32 v{O}, v{O+2}",
         f"v_permlane16_swap_b32 v{O+1}, v{O+3}",
         f"buffer_store_dwordx4 {vr(O,4)}, v{V_ST}, s[{S_ACT}:{S_ACT+3}], s{S_T} offen {flags}".rstrip()]
    return o

def glu(j, flags):
    G = [PG(j) + r for r in range(8)]; U = [PU(j) + r for r in range(8)]
    o = []
    o += [f"v_mul_f32 v{g}, 0xbfb8aa3b, v{g}" for g in G]
    o += [f"v_exp_f32 v{g}, v{g}" for g in G]
    o += [f"v_add_f32 v{g}, 1.0, v{g}" for g in G]
    o += [f"v_rcp_f32 v{g}, v{g}" for g in G]
    o += [f"v_mul_f32 v{g}, v{g}, v{u}" for g, u in zip(G, U)]
    o += pack_store(PU(j), PG(j), PG(j) + 4, f"s_add_u32 s{S_T}, s{S_ST}, {j*65536}", flags)
    return o

def ln_code(a, opts, P, wdma, nw):
    B = 40
    def v(i): return f"v{B+i}"
    X = S_P0; DBG = S_P1
    WPOS = opts.get("lnw", "a")
    LP = int(opts.get("lnprof", 0))
    a(f"""
    s_mov_b32 s{X+2}, 0x400000
    s_mov_b32 s{X+3}, 0x00020000
    s_mov_b32 s{S_XB}, s{DBG}
    s_mov_b32 s{S_XB+1}, s{DBG+1}
    s_mov_b32 s{S_XB+2}, 256
    s_mov_b32 s{S_XB+3}, 0x00020000
    v_and_b32 {v(3)}, 7, v0                 ; r
    v_lshrrev_b32 {v(4)}, 3, v0             ; part
    s_lshl_b32 s7, s{S_W}, 5
    v_add_u32 {v(5)}, s7, {v(4)}
    s_lshr_b32 s7, s2, 2
    s_lshl_b32 s7, s7, 5
    s_and_b32 s{S_T}, s2, 1
    s_lshl_b32 s{S_T}, s{S_T}, 4
    s_add_u32 s7, s7, s{S_T}
    s_and_b32 s{S_T}, s2, 2
    s_lshl_b32 s{S_T}, s{S_T}, 1
    s_add_u32 s7, s7, s{S_T}
    v_lshrrev_b32 {v(7)}, 2, {v(3)}
    v_and_b32 {v(8)}, 3, {v(3)}
    v_lshl_add_u32 {v(7)}, {v(7)}, 3, {v(8)}
    v_add_u32 {v(7)}, s7, {v(7)}            ; row
    v_lshlrev_b32 {v(7)}, 11, {v(7)}
    v_lshl_add_u32 {v(7)}, {v(5)}, 4, {v(7)}
    """)
    for j in range(4):
        a(f"buffer_load_dwordx4 {vr(B+16+4*j,4)}, {v(7)}, s[{X}:{X+3}], 0 offen offset:{128*j}")
    pend = 0
    if WPOS == "a":
        wdma(); pend = nw
    a(f"""
    s_lshl_b32 s7, s2, 3
    v_add_u32 {v(6)}, s7, {v(3)}            ; store position
    v_lshlrev_b32 {v(8)}, 15, {v(5)}
    v_lshl_add_u32 {v(8)}, {v(6)}, 4, {v(8)}        ; store offset (kc*32768 + pos*16)
    v_mul_u32_u24 {v(9)}, 144, {v(3)}
    v_add_u32 {v(9)}, {SCR_W}, {v(9)}
    s_lshl_b32 s7, s{S_W}, 3
    v_add_u32 {v(10)}, s7, {v(4)}
    v_lshl_add_u32 {v(10)}, {v(10)}, 2, {v(9)}
    s_waitcnt vmcnt({pend})
    """)
    if LP: P.stamp(2)
    for d in range(16):
        a(f"v_lshlrev_b32 {v(32+2*d)}, 16, {v(16+d)}")
        a(f"v_and_b32 {v(33+2*d)}, 0xffff0000, {v(16+d)}")
    for q in range(4):
        a(f"v_add_f32 {v(64+q)}, {v(32+q)}, {v(36+q)}")
    for d in range(8, 32, 4):
        for q in range(4):
            a(f"v_add_f32 {v(64+q)}, {v(64+q)}, {v(32+d+q)}")
    a(f"v_add_f32 {v(64)}, {v(64)}, {v(65)}")
    a(f"v_add_f32 {v(66)}, {v(66)}, {v(67)}")
    a(f"v_add_f32 {v(64)}, {v(64)}, {v(66)}")
    a(f"ds_write_b32 {v(10)}, {v(64)}")
    a("s_waitcnt lgkmcnt(0)")
    a("s_barrier")
    def reduce32(off, dst):
        for q in range(8):
            a(f"ds_read_b128 {vr(B+68+4*q,4)}, {v(9)} offset:{off+16*q}")
        a("s_waitcnt lgkmcnt(0)")
        for n in (16, 8, 4, 2, 1):
            for q in range(n):
                a(f"v_add_f32 {v(68+q)}, {v(68+q)}, {v(68+n+q)}")
        a(f"v_mul_f32 {v(dst)}, 0x3a800000, {v(68)}")
    reduce32(0, 100)
    for d in range(32):
        a(f"v_sub_f32 {v(68+d)}, {v(32+d)}, {v(100)}")
    for q in range(4):
        a(f"v_mul_f32 {v(64+q)}, {v(68+q)}, {v(68+q)}")
    for d in range(4, 32, 4):
        for q in range(4):
            a(f"v_fmac_f32 {v(64+q)}, {v(68+d+q)}, {v(68+d+q)}")
    a(f"v_add_f32 {v(64)}, {v(64)}, {v(65)}")
    a(f"v_add_f32 {v(66)}, {v(66)}, {v(67)}")
    a(f"v_add_f32 {v(64)}, {v(64)}, {v(66)}")
    a(f"ds_write_b32 {v(10)}, {v(64)} offset:1152")
    a("s_waitcnt lgkmcnt(0)")
    a("s_barrier")
    reduce32(1152, 101)
    a(f"""
    v_cvt_pk_bf16_f32 {v(102)}, {v(100)}, {v(101)}
    v_lshlrev_b32 {v(100)}, 16, {v(102)}
    v_and_b32 {v(101)}, 0xffff0000, {v(102)}
    v_add_f32 {v(101)}, 0x3727c5ac, {v(101)}
    v_cvt_pk_bf16_f32 {v(101)}, {v(101)}, {v(101)}
    v_and_b32 {v(101)}, 0xffff0000, {v(101)}
    v_sqrt_f32 {v(101)}, {v(101)}
    s_nop 0
    v_cvt_pk_bf16_f32 {v(101)}, {v(101)}, {v(101)}
    v_and_b32 {v(101)}, 0xffff0000, {v(101)}
    v_rcp_f32 {v(101)}, {v(101)}
    s_nop 0
    """)
    for d in range(16):
        x0, x1 = v(32 + 2*d), v(33 + 2*d)
        a(f"v_sub_f32 {x0}, {x0}, {v(100)}")
        a(f"v_sub_f32 {x1}, {x1}, {v(100)}")
        a(f"v_cvt_pk_bf16_f32 {x0}, {x0}, {x1}")
        a(f"v_and_b32 {x1}, 0xffff0000, {x0}")
        a(f"v_lshlrev_b32 {x0}, 16, {x0}")
        a(f"v_mul_f32 {x0}, {x0}, {v(101)}")
        a(f"v_mul_f32 {x1}, {x1}, {v(101)}")
        a(f"v_cvt_pk_bf16_f32 {v(16+d)}, {x0}, {x1}")
    for j in range(4):
        a(f"s_mov_b32 s7, {8*32768*j}")
        a(f"buffer_store_dwordx4 {vr(B+16+4*j,4)}, {v(8)}, s[{S_XN}:{S_XN+3}], s7 offen sc1")
    a(f"""
    s_cmp_eq_u32 s{S_W}, 0
    s_cbranch_scc0 K2_NOCLR
    s_mov_b32 exec_hi, 0
    s_lshl_b32 s{S_T}, s2, 9
    s_and_b32 s7, s2, 7
    s_lshl_b32 s7, s7, 1
    v_lshrrev_b32 {v(12)}, 4, v0
    v_add_u32 {v(12)}, s7, {v(12)}          ; row
    v_cmp_lt_u32 vcc, 6, {v(12)}
    v_lshlrev_b32 {v(11)}, 4, v0
    s_nop 1
    v_cndmask_b32 {v(12)}, 0, -1, vcc
    v_cndmask_b32 {v(13)}, 0, -1, vcc
    v_cndmask_b32 {v(14)}, 0, -1, vcc
    v_cndmask_b32 {v(15)}, 0, -1, vcc
    buffer_store_dwordx4 {vr(B+12,4)}, {v(11)}, s[{S_EXR}:{S_EXR+3}], s{S_T} offen sc1
    s_mov_b64 exec, -1
    K2_NOCLR:
    s_waitcnt vmcnt(0)
    """)
    if LP: P.stamp(3)
    a(f"""
    s_barrier
    s_cmp_eq_u32 s{S_W}, 0
    s_cbranch_scc0 K2_NOFLAG
    s_mov_b64 exec, 1
    v_mov_b32 {v(11)}, s2
    v_mov_b32 {v(12)}, 1
    buffer_store_byte {v(12)}, {v(11)}, s[{S_XB}:{S_XB+3}], 0 offen sc1
    s_mov_b64 exec, -1
    K2_NOFLAG:
    """)
    if WPOS == "b":
        wdma()

def gen_k2(a, store_flags="", prof=False, opts=None):
    K3V = int((opts or {}).get("k3v", 1))
    XB16 = int((opts or {}).get("xb16", 0))
    opts = opts or {}
    flags = store_flags.replace("+", " ")
    RATE2 = float(opts.get("rate2", 1.5))
    RATE3 = float(opts.get("rate3", 3))
    NOEPI = int(opts.get("noepi", 0))
    POLLFIRST = int(opts.get("pollfirst", 1))
    NT1 = int(opts.get("nt1", 2))
    REV[0] = int(opts.get("rev", 0))
    kernel_begin(a, K2)
    P = Prof(a, prof, 1, list(range(90, 100)), 100)
    a("""
    s_cmp_ge_u32 s2, 256
    s_cbranch_scc1 K2_END
    """)
    P.stamp(0, real=True)
    P.stamp(1)
    a(f"""
    s_load_dwordx4 s[72:75], s[0:1], 80     ; w_gate, w_up
    s_load_dwordx2 s[70:71], s[0:1], 120    ; ws
    s_load_dwordx4 s[64:67], s[0:1], 24
    s_load_dwordx4 s[60:63], s[0:1], 8
    s_load_dwordx2 s[68:69], s[0:1], 56     ; log_dt
    s_load_dwordx2 s[82:83], s[0:1], 96     ; w_down
    s_load_dwordx4 s[84:87], s[0:1], 40
    """)
    LN = int(opts.get("ln", 0)); LP = int(opts.get("lnprof", 0))
    if int(opts.get("fold", 0)):
        a("s_load_dwordx2 s[56:57], s[0:1], 0       ; x")
    if LN:
        a(f"""
        s_load_dwordx2 s[{S_P0}:{S_P0+1}], s[0:1], 0       ; x
        s_load_dwordx2 s[{S_P1}:{S_P1+1}], s[0:1], 112     ; hand-off bytes (zero at launch)
        """)
    a(f"""
    v_lshrrev_b32 v240, 6, v0
    v_and_b32 v0, 63, v0                    ; lane
    v_readfirstlane_b32 s{S_W}, v240         ; wave
    s_and_b32 s7, s2, 7                     ; xcd
    s_lshr_b32 s{S_CG}, s2, 3
    s_and_b32 s{S_RB}, s{S_CG}, 7
    s_lshr_b32 s{S_CG}, s{S_CG}, 3
    s_lshl_b32 s7, s7, 2
    s_add_u32 s{S_CG}, s{S_CG}, s7
    s_lshl_b32 s{S_TW}, s{S_RB}, 12         ; 256*rb*16
    s_lshl_b32 s7, s{S_W}, 9                ; 32*w*16
    s_add_u32 s{S_TW}, s{S_TW}, s7          ; tw*16
    s_mov_b32 s{S_X}, s{S_TW}
    """)
    AL = int(opts.get("al", 0))
    if AL:
        a(f"""
        s_lshr_b32 s7, s{S_CG}, 2
        s_mul_i32 s7, s7, 896
        s_and_b32 s{S_O01}, s{S_CG}, 3
        s_mul_i32 s{S_O01}, s{S_O01}, 96
        s_add_u32 s{S_O01}, s{S_O01}, s7
        """)
    else:
        a(f"s_mul_i32 s{S_O01}, s{S_CG}, 224")
    a(f"""
    s_lshl_b32 s{S_O2}, s{S_CG}, 16
    s_lshl_b32 s{S_M0}, s{S_W}, 10
    s_add_u32 s{S_M1}, s{S_M0}, 8192
    s_add_u32 s{S_M2}, s{S_M0}, 12288
    s_cmp_lt_u32 s{S_W}, 4
    s_cselect_b32 s{S_M1}, s{S_M1}, 20480
    ; ---- DMA lane offsets.  GLU type: q = 64 i' + lane, rho = q / 6, ch = q % 6, k = swap23(rho)
    s_sub_u32 s7, s{S_W}, 6
    s_cmp_lt_u32 s{S_W}, 6
    s_cselect_b32 s7, s{S_W}, s7
    s_lshl_b32 s7, s7, 6                    ; 64 i' (u=0)
    s_lshl_b32 s{S_T}, s{S_W}, 6
    s_add_u32 s{S_T}, s{S_T}, 128           ; 64 i' (u=1)
    v_add_u32 v241, s7, v0
    v_add_u32 v242, s{S_T}, v0
    """)
    for (q, d) in ((241, V_D0), (242, V_D1)):
        a(f"""
        v_mul_u32_u24 v243, 10923, v{q}
        v_lshrrev_b32 v243, 16, v243              ; rho
        v_mul_u32_u24 v244, 6, v243
        v_sub_u32 v244, v{q}, v244                ; ch
        v_and_b32 v245, 0x33, v243
        v_and_b32 v246, 4, v243
        v_lshl_or_b32 v245, v246, 1, v245
        v_and_b32 v246, 8, v243
        v_lshrrev_b32 v246, 1, v246
        v_or_b32 v245, v245, v246                  ; k
        v_mul_u32_u24 v245, 7168, v245
        v_lshl_add_u32 v{d}, v244, 4, v245
        """)
    a(f"""
    s_and_b32 s7, s{S_W}, 3
    s_lshl_b32 s7, s7, 3
    v_lshrrev_b32 v243, 3, v0
    v_add_u32 v243, s7, v243                  ; row
    v_lshrrev_b32 v244, 1, v243
    v_xor_b32 v244, v244, v0
    v_and_b32 v244, 7, v244
    v_lshlrev_b32 v244, 4, v244
    v_lshl_add_u32 v{V_D2}, v243, 11, v244
    ; X: (l>>4)*32768 + (l&15)*16
    v_lshrrev_b32 v243, 4, v0                ; g
    v_and_b32 v244, 15, v0                   ; n
    v_lshlrev_b32 v245, 4, v244
    v_lshl_add_u32 v{V_XO}, v243, 15, v245
    s_waitcnt lgkmcnt(0)
    """)
    FOLD = int(opts.get("fold", 0))
    if FOLD:
        a(f"""
        v_lshrrev_b32 v245, 2, v244
        v_and_b32 v246, 3, v244
        v_lshl_add_u32 v245, v245, 3, v246
        v_lshlrev_b32 v245, 11, v245
        v_lshl_add_u32 v{V_XO}, v243, 4, v245
        v_add_u32 v{V_XO2}, 8192, v{V_XO}
        s_lshl_b32 s{S_TW}, s{S_TW}, 7
        s_mov_b32 s{S_X}, s{S_TW}
        """)
        srd(a, S_XN, 56, 57, 0x400000)
    else:
        srd(a, S_XN, 70, 71, XN_SZ, XN_OFF)
    a(f"""
    s_cmp_lt_u32 s{S_W}, 6
    s_cselect_b32 s{S_D0}, s72, s74
    s_cselect_b32 s{S_D0+1}, s73, s75
    s_mov_b32 s{S_D0+2}, 0x700000
    s_mov_b32 s{S_D0+3}, 0x00020000
    s_cmp_lt_u32 s{S_W}, 4
    s_mov_b32 s{S_D1}, s74
    s_mov_b32 s{S_D1+1}, s75
    s_cselect_b32 s{S_D1+2}, 0x700000, 0
    s_mov_b32 s{S_D1+3}, 0x00020000
    s_cselect_b32 s{S_D2}, s64, s66
    s_cselect_b32 s{S_D2+1}, s65, s67
    s_mov_b32 s{S_D2+2}, 0x200000
    s_mov_b32 s{S_D2+3}, 0x00020000
    """)
    a(f"s_mov_b32 s{S_CNT}, 0")
    st = Stream(a)
    def dma(s):
        slot = (s % NSLOT) * SLOT
        g = []
        if s < 16:
            g.append([f"s_add_u32 m0, s{S_M0}, {slot}", "s_nop 0", (f"buffer_load_dwordx4 v{V_D0}, s[{S_D0}:{S_D0+3}], s{S_O01} offen lds", ("D", s, 0))])
            g.append([f"s_add_u32 m0, s{S_M1}, {slot}", "s_nop 0", (f"buffer_load_dwordx4 v{V_D1}, s[{S_D1}:{S_D1+3}], s{S_O01} offen lds", ("D", s, 1)),
                      f"s_add_u32 s{S_O01}, s{S_O01}, 458752"])
            g.append([f"s_add_u32 m0, s{S_M2}, {slot}", "s_nop 0", (f"buffer_load_dwordx4 v{V_D2}, s[{S_D2}:{S_D2+3}], s{S_O2} offen lds", ("D", s, 2)),
                      f"s_add_u32 s{S_O2}, s{S_O2}, 128"])
        else:
            pre = [f"s_mov_b32 s{S_O01}, s{S_O96}"] if s == 16 else []
            if REV[0]:
                pre = [f"s_add_u32 s{S_O01}, s{S_O96}, {15*458752}"] if s == 16 else []
            g.append(pre + [f"s_add_u32 m0, s{S_M0}, {slot}", "s_nop 0", (f"buffer_load_dwordx4 v{V_D0B}, s[{S_G}:{S_G+3}], s{S_O01} offen lds", ("D", s, 0))])
            g.append([f"s_add_u32 m0, s{S_M0}, {slot+8192}", "s_nop 0", (f"buffer_load_dwordx4 v{V_D0B}, s[{S_U}:{S_U+3}], s{S_O01} offen lds", ("D", s, 1)),
                      f"s_{'sub' if REV[0] else 'add'}_u32 s{S_O01}, s{S_O01}, 458752"])
        if int(opts.get("dfix", 0)):
            g = [[x for x in grp if not (isinstance(x, str) and (x.startswith(f"s_add_u32 s{S_O01},") or x.startswith(f"s_add_u32 s{S_O2},")))] for grp in g]
        return g
    def dtags(s): return [("D", s, u) for u in range(3 if s < 16 else 2)]
    def xload(n):
        if FOLD:
            if n & 1: return []
            g = []
            for (va, tb) in ((V_XO, 0), (V_XO2, 1)):
                for h in (0, 1):
                    g.append((f"buffer_load_dwordx4 {vr(xr(n+h,tb),4)}, v{va}, s[{S_XN}:{S_XN+3}], s{S_X} offen offset:{64*h}", ("X", n+h, tb)))
            if n == 30: g.append(f"s_mov_b32 s{S_X}, s{S_TW}")
            else: g.append(f"s_add_u32 s{S_X}, s{S_X}, 128")
            if int(opts.get("xsplit", 0)): return [g[:2], g[2:]]
            return [g]
        g = [(f"buffer_load_dwordx4 {vr(xr(n,0),4)}, v{V_XO}, s[{S_XN}:{S_XN+3}], s{S_X} offen", ("X", n, 0)),
             (f"buffer_load_dwordx4 {vr(xr(n,1),4)}, v{V_XO}, s[{S_XN}:{S_XN+3}], s{S_X} offen offset:256", ("X", n, 1))]
        if REV[0] and 32 <= n < 38: return []
        if REV[0] and n == 31: g.append(f"s_add_u32 s{S_X}, s{S_TW}, {25*131072}")
        elif REV[0] and n >= 38: g.append(f"s_sub_u32 s{S_X}, s{S_X}, 131072")
        elif n == 31: g.append(f"s_mov_b32 s{S_X}, s{S_TW}")
        elif not int(opts.get("xfix", 0)): g.append(f"s_add_u32 s{S_X}, s{S_X}, 131072")
        return [g]
    def emit_group(g):
        for x in g:
            if isinstance(x, tuple): st.ins(x[0], x[1])
            elif x.endswith(":"): a.label(x[:-1])
            else: st.ins(x)
    DLA = int(opts.get("dla", 4))
    NPRO = int(opts.get("npro", 100))
    def raw_group(g):
        for x in g: a(x[0] if isinstance(x, tuple) else x)
    def param_srds():
        srd(a, S_P0, 60, 61, 2048)
        srd(a, S_P1, 62, 63, 2048)
        srd(a, S_P2, 68, 69, 2048)
    PL = T1
    def param_loads(tracked):
        a(f"""
        v_and_b32 v250, 15, v0
        v_lshlrev_b32 v250, 1, v250
        s_lshl_b32 s7, s{S_CG}, 6
        """)
        for i, sp in enumerate((S_P0, S_P1, S_P2)):
            for b in (0, 1):
                x = f"buffer_load_ushort v{PL+2*i+b}, v250, s[{sp}:{sp+3}], s7 offen offset:{32*b}"
                if tracked: st.ins(x, ("PL", i, b))
                else: a(x)
    if LN:
        NPRO = 100
        wgroups = dma(0) + dma(1) + dma(2) + dma(3) + dma(4) + dma(5)
        srd(a, S_G, 72, 73, 0x700000)
        srd(a, S_U, 74, 75, 0x700000)
        srd(a, S_EXR, 70, 71, EX_SZ, EX_OFF)
        a(f"""
        s_cmp_lt_u32 s{S_W}, 4
        s_cbranch_scc0 K2_PFW
        """)
        ln_code(a, opts, P, (lambda: [raw_group(g) for g in wgroups]), 18)
        param_srds()
        param_loads(False)
        a("s_branch K2_JOIN")
        a.label("K2_PFW")
        for g in wgroups: emit_group(g)
        param_srds()
        param_loads(True)
        PF = opts.get("pf", "bgu")
        a(f"""
        s_sub_u32 s7, s{S_W}, 4
        s_lshl_b32 s7, s7, 6
        s_lshl_b32 s{S_T}, s2, 8
        s_add_u32 s{S_T}, s{S_T}, s7
        v_add_u32 v41, s{S_T}, v0
        v_lshlrev_b32 v41, 7, v41               ; (wg*256 + t) * 128
        s_lshr_b32 s{S_T}, s2, 1
        s_lshl_b32 s{S_T}, s{S_T}, 8
        s_add_u32 s{S_T}, s{S_T}, s7
        v_add_u32 v42, s{S_T}, v0
        v_lshlrev_b32 v42, 7, v42               ; ((wg>>1)*256 + t) * 128
        s_and_b32 s7, s2, 1
        s_cmp_eq_u32 s7, 0
        s_cselect_b32 s{S_ACT}, s64, s66
        s_cselect_b32 s{S_ACT+1}, s65, s67
        s_mov_b32 s{S_ACT+2}, 0x200000
        s_mov_b32 s{S_ACT+3}, 0x00020000
        """)
        for c in PF:
            if c == "b": a(f"buffer_load_dword v43, v42, s[{S_ACT}:{S_ACT+3}], 0 offen")
            if c == "g": a(f"buffer_load_dword v44, v41, s[{S_G}:{S_G+3}], 0 offen")
            if c == "u": a(f"buffer_load_dword v45, v41, s[{S_U}:{S_U+3}], 0 offen")
        for _ in range(3): a("s_barrier")
        a.label("K2_JOIN")
        P.stamp(4 if LP else 2)
        a(f"""
        s_cmp_eq_u32 s{S_W}, 0
        s_cbranch_scc0 K2_GO
        """)
        a(f"""
        s_mov_b32 s{S_CNT}, 0
        v_lshlrev_b32 v41, 2, v0
        K2_POLL:
        buffer_load_dword v42, v41, s[{S_XB}:{S_XB+3}], 0 offen sc1
        s_add_u32 s{S_CNT}, s{S_CNT}, 1
        s_waitcnt vmcnt(0)
        v_cmp_ne_u32 vcc, 0x01010101, v42
        s_nop 1
        s_cmp_eq_u64 vcc, 0
        s_cbranch_scc1 K2_GO
        s_cmp_lt_u32 s{S_CNT}, 100000
        s_cbranch_scc1 K2_POLL
        K2_GO:
        s_barrier
        """)
        if LP: P.stamp(5)
        if LP: a(f"s_mov_b32 s{P.regs[8]}, s{S_CNT}")
        for n in range(6):
            for g in xload(n): emit_group(g)
        pro_rest = []
    else:
        order = dma(0) + xload(0) + xload(1) + dma(1) + xload(2) + xload(3) + dma(2) + xload(4) + xload(5) + dma(3)
        if NPRO == 100:
            order += dma(4) + dma(5)
        pro_rest = order[NPRO:]
        for grp in order[:NPRO]: emit_group(grp)
        P.stamp(2)
        if FOLD:
            PF = opts.get("pf", "xbgu")
            srd(a, S_G, 72, 73, 0x700000)
            srd(a, S_U, 74, 75, 0x700000)
            a(f"""
            s_and_b32 s7, s{S_W}, 3
            s_lshl_b32 s7, s7, 6
            s_lshl_b32 s{S_T}, s2, 8
            s_add_u32 s{S_T}, s{S_T}, s7
            v_add_u32 v241, s{S_T}, v0
            v_lshlrev_b32 v241, 7, v241               ; (wg*256 + t) * 128
            s_lshr_b32 s{S_T}, s2, 1
            s_lshl_b32 s{S_T}, s{S_T}, 8
            s_add_u32 s{S_T}, s{S_T}, s7
            v_add_u32 v242, s{S_T}, v0
            v_lshlrev_b32 v242, 7, v242               ; ((wg>>1)*256 + t) * 128
            s_and_b32 s7, s2, 1
            s_cmp_eq_u32 s7, 0
            s_cselect_b32 s{S_ACT}, s64, s66
            s_cselect_b32 s{S_ACT+1}, s65, s67
            s_mov_b32 s{S_ACT+2}, 0x200000
            s_mov_b32 s{S_ACT+3}, 0x00020000
            ; waves 0..3: first = x (waves 0, 1; 16 KB per workgroup), second = w_gate ; waves 4..7: first = B, second = w_up
            s_lshl_b32 s7, s2, 14
            s_lshl_b32 s{S_T}, s{S_W}, 13
            s_add_u32 s7, s7, s{S_T}
            v_lshlrev_b32 v240, 7, v0
            v_add_u32 v240, s7, v240
            s_cmp_lt_u32 s{S_W}, 2
            s_cselect_b32 s7, 0x400000, 0
            s_cmp_lt_u32 s{S_W}, 4
            s_cselect_b32 s{S_EXW}, s{S_XN}, s{S_ACT}
            s_cselect_b32 s{S_EXW+1}, s{S_XN+1}, s{S_ACT+1}
            s_cselect_b32 s{S_EXW+2}, s7, s{S_ACT+2}
            s_mov_b32 s{S_EXW+3}, 0x00020000
            s_cselect_b32 s{S_XB}, s72, s74
            s_cselect_b32 s{S_XB+1}, s73, s75
            s_mov_b32 s{S_XB+2}, 0x700000
            s_mov_b32 s{S_XB+3}, 0x00020000
            s_cselect_b64 vcc, -1, 0
            v_cndmask_b32 v240, v242, v240, vcc
            """)
            if "x" in PF: st.ins(f"buffer_load_dword v255, v240, s[{S_EXW}:{S_EXW+3}], 0 offen", ("PF", 8))
            if "g" in PF: st.ins(f"buffer_load_dword v255, v241, s[{S_XB}:{S_XB+3}], 0 offen", ("PF", 9))
    if not LN:
        srd(a, S_G, 72, 73, 0x700000)
        srd(a, S_U, 74, 75, 0x700000)
        srd(a, S_EXR, 70, 71, EX_SZ, EX_OFF)
    srd(a, S_ACT, 70, 71, ACT_SZ, ACT_OFF)
    srd(a, S_EXW, 70, 71, EX_SZ, EX_OFF)
    a(f"""
    s_cmp_eq_u32 s{S_W}, 7
    s_cselect_b32 s{S_EXW+2}, 0x{EX_SZ:x}, 0
    """)
    srd(a, S_XB, 70, 71, XB_SZ, XB_OFF)
    if not LN: param_srds()
    PF3 = int(opts.get("pf3", -1)); NPF3 = int(opts.get("npf3", 1)); PF3D = int(opts.get("pf3d", 50))
    PF2A = int(opts.get("pf2a", -1)); PF2B = int(opts.get("pf2b", -1)); PFR = int(opts.get("pf1rows", 256))
    O96 = f"""s_mul_i32 s{S_O96}, s{S_CG}, 224
    s_add_u32 s{S_O96}, s{S_O96}, 96"""
    if AL:
        O96 = f"""s_lshr_b32 s7, s{S_CG}, 2
        s_mul_i32 s7, s7, 896
        s_and_b32 s{S_O96}, s{S_CG}, 3
        s_lshl_b32 s{S_O96}, s{S_O96}, 7
        s_add_u32 s{S_O96}, s{S_O96}, s7
        s_add_u32 s{S_O96}, s{S_O96}, 384"""
    a(f"""
    s_lshl_b32 s7, s2, 2
    s_add_u32 s7, s7, s{S_W}
    s_mov_b32 s62, 0x700000
    s_cmp_lt_u32 s{S_W}, 4
    s_cselect_b32 s60, s82, s84
    s_cselect_b32 s61, s83, s85
    s_cselect_b32 s62, s62, 0x200000
    s_cselect_b32 s68, s7, s2
    s_lshl_b32 s68, s68, 13
    s_cmp_eq_u32 s{S_W}, 5
    s_cselect_b32 s60, s86, s60
    s_cselect_b32 s61, s87, s61
    s_cmp_lt_u32 s{S_W}, 6
    s_cselect_b32 s62, s62, 0
    s_mov_b32 s63, 0x00020000
    {O96}
    v_and_b32 v254, {64 // NPF3 - 1}, v0
    v_lshlrev_b32 v254, 7, v254
    ; warm-up of this launch's later weight rows: 4 rows x 14 lines of w_gate (even waves) / w_up (odd waves)
    s_and_b32 s7, s{S_W}, 1
    s_cmp_eq_u32 s7, 0
    s_cselect_b32 s64, s72, s74
    s_cselect_b32 s65, s73, s75
    s_mov_b32 s66, 0x700000
    s_mov_b32 s67, 0x00020000
    s_lshr_b32 s7, s2, 3
    s_lshl_b32 s7, s7, 2
    s_lshr_b32 s69, s{S_W}, 1
    s_add_u32 s69, s69, s7
    s_lshl_b32 s69, s69, 2
    s_add_u32 s69, s69, {PFR}
    s_mul_i32 s69, s69, 7168
    s_and_b32 s7, s2, 7
    s_mul_i32 s7, s7, 1792
    s_add_u32 s69, s69, s7
    v_and_b32 v253, 15, v0
    v_min_u32 v253, 13, v253
    v_lshlrev_b32 v253, 7, v253
    v_lshrrev_b32 v252, 4, v0
    v_mul_u32_u24 v252, 7168, v252
    v_add_u32 v253, v253, v252
    """)
    a(f"""
    v_lshrrev_b32 v246, 2, v0
    v_and_b32 v246, 3, v246                   ; r
    v_and_b32 v247, 3, v0                    ; c
    v_and_b32 v248, 1, v243
    v_lshl_add_u32 v248, v248, 2, v246
    v_lshrrev_b32 v249, 1, v243
    v_lshl_add_u32 v248, v249, 4, v248
    v_mul_u32_u24 v248, 96, v248
    v_lshl_add_u32 v{V_GA}, v247, 3, v248
    ; S address: 12288 + n*128 + ((g ^ (n>>1))*16)
    v_lshrrev_b32 v248, 1, v244
    v_xor_b32 v248, v248, v243
    v_lshlrev_b32 v248, 4, v248
    v_lshl_add_u32 v248, v244, 7, v248
    v_add_u32 v{V_SA0}, 12288, v248
    v_xor_b32 v{V_SA1}, 64, v{V_SA0}
    """)
    if not LN: param_loads(True)
    F1 = []
    def I(q, lst):
        for x in lst: q.append(("i", x))
    t = T1 + 8
    I(F1, [
        f"v_lshrrev_b32 v{t}, 4, v0",
        f"v_lshrrev_b32 v{t+1}, 2, v0",
        f"v_and_b32 v{t+1}, 3, v{t+1}",
        f"v_and_b32 v{t+2}, 3, v0",
        f"v_lshl_add_u32 v{t+3}, v{t}, 3, v{t+1}",
        f"v_lshlrev_b32 v{t+3}, 7, v{t+3}",
        f"v_lshl_add_u32 v{t+3}, v{t+2}, 3, v{t+3}",
        f"v_lshrrev_b32 v{t+4}, 1, v{t+1}",
        f"v_and_b32 v{t+5}, 1, v{t}",
        f"v_lshl_or_b32 v{t+4}, v{t+5}, 1, v{t+4}",
    ])
    for w in range(4):
        I(F1, [f"v_xor_b32 v{t+5}, {w}, v{t+4}", f"v_lshl_add_u32 v{GA2[w]}, v{t+5}, 5, v{t+3}"])
    I(F1, [
        f"s_lshl_b32 s7, s{S_W}, 3",
        f"v_lshrrev_b32 v{t+6}, 3, v0",
        f"v_add_u32 v{t+6}, s7, v{t+6}",
        f"v_mul_u32_u24 v{t+6}, 7168, v{t+6}",
        f"s_and_b32 s7, s{S_W}, 1",
        f"s_lshl_b32 s7, s7, 1",
        f"v_and_b32 v{t+7}, 1, v{t}",
        f"v_or_b32 v{t+7}, s7, v{t+7}",
        f"v_lshrrev_b32 v{t+8}, 1, v0",
        f"v_and_b32 v{t+8}, 3, v{t+8}",
        f"v_xor_b32 v{t+7}, v{t+7}, v{t+8}",
        f"v_lshl_add_u32 v{t+6}, v{t+7}, 5, v{t+6}",
        f"v_and_b32 v{t+8}, 1, v0",
        f"v_lshl_add_u32 v{V_D0B}, v{t+8}, 4, v{t+6}",
        f"v_and_b32 v{t+2}, 15, v0",
        f"v_lshrrev_b32 v{t+6}, 2, v{t+2}",
        f"v_lshlrev_b32 v{t+6}, 3, v{t+6}",
        f"v_lshl_add_u32 v{t+6}, v{t+5-5+0}, 0, v{t+6}" if False else f"v_and_b32 v{t+7}, 1, v{t}",
        f"v_lshl_add_u32 v{t+6}, v{t+7}, 2, v{t+6}",
        f"v_and_b32 v{t+7}, 3, v{t+2}",
        f"v_add_u32 v{t+6}, v{t+6}, v{t+7}",
        f"v_lshlrev_b32 v{t+6}, 4, v{t+6}",
        f"v_lshrrev_b32 v{t+7}, 1, v{t}",
        f"v_lshl_add_u32 v{V_ST}, v{t+7}, 15, v{t+6}",
        f"v_lshlrev_b32 v{V_P16}, 4, v{t+2}",
        f"s_mul_i32 s7, s{S_W}, 1792",
        f"s_add_u32 s7, s7, {SCR_W}",
        f"v_lshl_add_u32 v{V_SW}, v{t}, 8, v{V_P16}",
        f"v_add_u32 v{V_SW}, s7, v{V_SW}",
        f"s_lshl_b32 s7, s{S_W}, 8",
        f"s_add_u32 s7, s7, {TABLE}",
        f"v_add_u32 v{V_TB}, s7, v{V_P16}",
        *([f"s_mul_i32 s{S_ST}, s{S_CG}, {14*32768}"] if not AL else
          [f"s_lshr_b32 s{S_T}, s{S_CG}, 2", f"s_mul_i32 s{S_T}, s{S_T}, {56*32768}", f"s_and_b32 s{S_ST}, s{S_CG}, 3",
           f"s_mul_i32 s{S_ST}, s{S_ST}, {6*32768}", f"s_add_u32 s{S_ST}, s{S_ST}, s{S_T}"]),
        f"s_add_u32 s{S_ST}, s{S_ST}, s{S_TW}",
        f"s_lshl_b32 s{S_SS}, s{S_CG}, 17",
        f"s_add_u32 s{S_SS}, s{S_SS}, s{S_TW}",
        f"s_add_u32 s{S_SS}, s{S_SS}, {448*32768}",
        f"s_lshl_b32 s{S_ER}, s{S_CG}, 12",
        f"s_lshl_b32 s7, s{S_RB}, 8",
        f"s_add_u32 s{S_ER}, s{S_ER}, s7",
        f"s_add_u32 s{S_EW}, s{S_ER}, {7*256}",
        (f"s_mul_i32 s{S_XBO}, s2, 49152" if K3V == 2 else f"s_lshl_b32 s{S_XBO}, s2, {14 if XB16 else 15}"),
        (f"s_mul_i32 s7, s{S_W}, 6144" if K3V == 2 else f"s_lshl_b32 s7, s{S_W}, {11 if XB16 else 12}"),
        f"s_add_u32 s{S_XBO}, s{S_XBO}, s7",
        f"v_mov_b32 v{t+12}, 0", f"v_mov_b32 v{t+13}, 0", f"v_mov_b32 v{t+14}, 0", f"v_mov_b32 v{t+15}, 0",
        f"ds_write_b128 v{V_SW}, {vr(t+12,4)}",
        f"ds_write_b128 v{V_TB}, {vr(t+12,4)}",
        f"v_mov_b32 v{t+16}, -1", f"v_mov_b32 v{t+17}, -1", f"v_mov_b32 v{t+18}, -1", f"v_mov_b32 v{t+19}, -1",
        f"v_lshlrev_b32 v{t+20}, 4, v0",
    ])
    for k in range((2 if XB16 else 4) if not int(opts.get("noxb", 0)) else 0):
        I(F1, [f"buffer_store_dwordx4 {vr(t+16,4)}, v{t+20}, s[{S_XB}:{S_XB+3}], s{S_XBO} offen offset:{k*1024} {opts.get('pfst','')}".rstrip()])
    if K3V == 2:
        for k in range(2):
            I(F1, ([f"s_add_u32 s{S_XBO}, s{S_XBO}, 4096"] if k == 0 else []) + [f"buffer_store_dwordx4 {vr(t+16,4)}, v{t+20}, s[{S_XB}:{S_XB+3}], s{S_XBO} offen offset:{k*1024} {opts.get('pfst','')}".rstrip()])
    F1.append(("need", [("PL", i, b) for i in range(3) for b in (0, 1)]))
    u = T1 + 32
    for b in (0, 1):
        lre, lim, dt = PL + b, PL + 2 + b, PL + 4 + b
        q = u + 8 * b
        I(F1, [
            f"v_lshlrev_b32 v{lre}, 16, v{lre}",
            f"v_lshlrev_b32 v{lim}, 16, v{lim}",
            f"v_lshlrev_b32 v{dt}, 16, v{dt}",
            f"v_mul_f32 v{dt}, {L2E}, v{dt}",
            f"v_exp_f32 v{dt}, v{dt}",
            f"v_cvt_pk_bf16_f32 v{dt}, v{dt}, v{dt}",
            f"v_and_b32 v{dt}, 0xffff0000, v{dt}",
            f"v_mul_f32 v{q}, v{dt}, v{lre}",
            f"v_mul_f32 v{q+1}, v{dt}, v{lim}",
            f"v_mul_f32 v{LAM+b}, {L2E}, v{q}",
            f"v_mul_f32 v{TH+b}, 0x3e22f983, v{q+1}",
        ])
    I(F1, power(A1, "1.0", u + 16))
    for b in (0, 1):
        lre, lim = PL + b, PL + 2 + b
        ar, ai = A1 + 2 * b, A1 + 2 * b + 1
        q = u + 8 * b
        I(F1, [
            f"v_add_f32 v{q}, -1.0, v{ar}",
            f"v_mul_f32 v{q+1}, v{lre}, v{lre}",
            f"v_fmac_f32 v{q+1}, v{lim}, v{lim}",
            f"v_rcp_f32 v{q+1}, v{q+1}",
            f"v_mul_f32 v{q+2}, v{q}, v{lre}",
            f"v_fmac_f32 v{q+2}, v{ai}, v{lim}",
            f"v_mul_f32 v{q+3}, v{ai}, v{lre}",
            f"v_fma_f32 v{q+3}, -v{q}, v{lim}, v{q+3}",
            f"v_add_f32 v{q+1}, v{q+1}, v{q+1}",
            f"v_mul_f32 v{CF+2*b}, v{q+2}, v{q+1}",
            f"v_mul_f32 v{CF+2*b+1}, v{q+3}, v{q+1}",
        ])
    I(F1, power(A8, "0x41000000", u + 16))
    I(F1, power(A32, "0x42000000", u + 16))

    F2 = []
    R0, R1, R2 = PG(0), PG(1), PG(2)
    I(F2, glu(0, flags))
    F2.append(("atS",))
    cur = [(SRE(b), SIM(b)) for b in (0, 1)]
    for j in range(1, 8):
        d = R0 if (j & 1) else R0 + 4
        for b in (0, 1):
            F2.append(("i", f"v_fma_f32 v{d+2*b}, v{A1+2*b}, v{cur[b][0]}, v{SRE(b)+j}"))
            F2.append(("i", f"v_fma_f32 v{d+2*b+1}, v{A1+2*b}, v{cur[b][1]}, v{SIM(b)+j}"))
        for b in (0, 1):
            F2.append(("i", f"v_fma_f32 v{d+2*b}, -v{A1+2*b+1}, v{cur[b][1]}, v{d+2*b}"))
            F2.append(("i", f"v_fma_f32 v{d+2*b+1}, v{A1+2*b+1}, v{cur[b][0]}, v{d+2*b+1}"))
        cur = [(d + 2 * b, d + 2 * b + 1) for b in (0, 1)]
    I(F2, [f"ds_write_b128 v{V_SW}, {vr(R0,4)} offset:768"])
    for k in range(3):
        F2.append(("t", f"ds_read_b128 {vr(R0+4+4*k,4)}, v{V_SW} offset:{256*k}", ("SW", k)))
    F2.append(("gapn", 3))
    F2.append(("need", [("SW", 2)]))
    I(F2, quad_mac(R0 + 8, A8, R0 + 4))
    I(F2, quad_mac(R0 + 12, A8, R0 + 8))
    I(F2, quad_mac(R0, A8, R0 + 12))
    F2.append(("g", ["s_mov_b32 exec_lo, 0", "s_mov_b32 exec_hi, 0xffff0000",
                     (f"ds_write_b128 v{V_TB}, {vr(R0,4)} offset:{7*256}", "TW"), "s_mov_b64 exec, -1"]))
    F2.append(("mark", "TW"))
    F2.append(("at1",))
    I(F2, glu(1, flags))
    F2.append(("afterbar", "TW"))
    rows = [R1, R1 + 4, R1 + 8, R1 + 12, R0 + 4, R0 + 8, Q0]
    for k in range(7):
        F2.append(("t", f"ds_read_b128 {vr(rows[k],4)}, v{V_TB} offset:{256*k}", ("TR", k)))
    F2.append(("gapn", 2))
    for k in range(1, 7):
        F2.append(("need", [("TR", k - 1), ("TR", k)]))
        I(F2, quad_mac(rows[k], A32, rows[k-1]))
    I(F2, quad_mac(R0, A32, Q0))
    I(F2, [f"s_mov_b32 s7, 0xfffffffe"])
    I(F2, [f"v_min_u32 v{R0+r}, s7, v{R0+r}" for r in range(4)])
    F2.append(("g", ["s_mov_b32 exec_lo, 0", "s_mov_b32 exec_hi, 0xffff0000",
                     f"buffer_store_dwordx4 {vr(R0,4)}, v{V_P16}, s[{S_EXW}:{S_EXW+3}], s{S_EW} offen sc1", "s_mov_b64 exec, -1"]))
    if not LP: F2.append(("stamp", 4))
    I(F2, [f"v_lshrrev_b32 v{R1+12}, 4, v0", f"v_lshlrev_b32 v{R1+12}, 3, v{R1+12}", f"v_cvt_f32_u32 v{R1+13}, v{R1+12}"])
    I(F2, power(R1, f"v{R1+13}", R1 + 4))
    I(F2, quad_mac(R0 + 12, R1, Q0))
    I(F2, [f"s_lshl_b32 s7, s{S_W}, 5", f"v_add_u32 v{V_D0}, s7, v{R1+12}", f"v_cvt_f32_u32 v{V_D0}, v{V_D0}"])
    F2.append(("at", int(opts.get("pollat", 0))))
    prow = [R1, R1 + 4, R1 + 8, R1 + 12, R0, R0 + 4, R0 + 8]
    def poll_loads(tagged):
        o = []
        for k in range(7):
            s = f"buffer_load_dwordx4 {vr(prow[k],4)}, v{V_P16}, s[{S_EXR}:{S_EXR+3}], s{S_ER} offen offset:{256*k} sc1"
            o.append((s, ("PR", k)) if tagged else s)
        return o
    if POLLFIRST:
        for x in poll_loads(True): F2.append(("t", x[0], x[1]))
    I(F2, glu(2, flags))
    I(F2, power(R2, "0x43800000", R2 + 8))
    I(F2, power(R2 + 4, f"v{V_D0}", R2 + 8))
    if not POLLFIRST:
        for x in poll_loads(True): F2.append(("t", x[0], x[1]))
    F2.append(("gapn", int(opts.get("pollgap", 0))))
    F2.append(("need", [("PR", 6)]))
    def maxchain():
        m = V_D2
        regs = [r + i for r in prow for i in range(4)]
        o = [f"v_max3_u32 v{m}, v{regs[0]}, v{regs[1]}, v{regs[2]}"]
        for k in range(3, 27, 2):
            o.append(f"v_max3_u32 v{m}, v{m}, v{regs[k]}, v{regs[k+1]}")
        o.append(f"v_max_u32 v{m}, v{m}, v{regs[27]}")
        o.append(f"v_cmp_eq_u32 vcc, -1, v{m}")
        return o
    I(F2, maxchain())
    F2.append(("g", ["s_nop 3", "s_cmp_eq_u64 vcc, 0", "s_cbranch_scc0 K2_SLOW", "K2_BACK:"]))
    for k in range(1, 7):
        I(F2, quad_mac(prow[k], R2, prow[k-1]))
    I(F2, quad_mac(R0 + 12, R2 + 4, R0 + 8))
    H = [R0 + 12, R2 + 8]
    TT = R2 + 12
    for j in range(8):
        s_, d = H[j & 1], H[(j + 1) & 1]
        for b in (0, 1):
            F2.append(("i", f"v_fma_f32 v{d+2*b}, v{A1+2*b}, v{s_+2*b}, v{SRE(b)+j}"))
            F2.append(("i", f"v_fma_f32 v{d+2*b+1}, v{A1+2*b}, v{s_+2*b+1}, v{SIM(b)+j}"))
        for b in (0, 1):
            F2.append(("i", f"v_fma_f32 v{d+2*b}, -v{A1+2*b+1}, v{s_+2*b+1}, v{d+2*b}"))
            F2.append(("i", f"v_fma_f32 v{d+2*b+1}, v{A1+2*b+1}, v{s_+2*b}, v{d+2*b+1}"))
        for b in (0, 1):
            F2.append(("i", f"v_mul_f32 v{TT+2*b}, v{CF+2*b+1}, v{d+2*b+1}"))
            F2.append(("i", f"v_mul_f32 v{TT+2*b+1}, v{CF+2*b+1}, v{d+2*b}"))
        for b in (0, 1):
            F2.append(("i", f"v_fma_f32 v{SRE(b)+j}, v{CF+2*b}, v{d+2*b}, -v{TT+2*b}"))
            F2.append(("i", f"v_fma_f32 v{SIM(b)+j}, -v{CF+2*b}, v{d+2*b+1}, -v{TT+2*b+1}"))
    SEL = R1
    I(F2, [
        f"v_and_b32 v{R1+8}, 15, v0",
        f"v_lshrrev_b32 v{R1+9}, 2, v{R1+8}",
        f"v_lshrrev_b32 v{R1+10}, 4, v0",
        f"v_and_b32 v{R1+11}, 1, v0",
        f"v_lshlrev_b32 v{R1+11}, 4, v{R1+11}",
        f"v_mov_b32 v{R1+12}, 0x3f80",
        f"v_lshlrev_b32 v{R1+12}, v{R1+11}, v{R1+12}",
        f"v_cmp_eq_u32 vcc, v{R1+9}, v{R1+10}",
        f"v_mov_b32 v{SEL}, 0", f"v_mov_b32 v{SEL+1}, 0",
        f"v_cndmask_b32 v{R1+12}, 0, v{R1+12}, vcc",
        f"v_and_b32 v{R1+13}, 2, v0",
        f"v_cmp_eq_u32 vcc, 0, v{R1+13}",
        f"v_mov_b32 v{SEL+4}, 0", f"v_mov_b32 v{SEL+5}, 0",
        f"v_cndmask_b32 v{SEL+2}, 0, v{R1+12}, vcc",
        f"v_cndmask_b32 v{SEL+3}, v{R1+12}, 0, vcc",
    ])
    outs = [(SRE(0), 0), (SRE(1), 65536), (SIM(0), 4194304), (SIM(1), 4194304 + 65536)]
    for k, (X, off) in enumerate(outs):
        for q in range(4):
            F2.append(("i", f"v_cvt_pk_bf16_f32 v{X+q}, v{X+2*q}, v{X+2*q+1}"))
    for k, (X, off) in enumerate(outs):
        d1 = R1 + 8 + 4 * (k & 1)
        F2.append(("i", f"v_mfma_f32_16x16x32_bf16 {vr(X+4,4)}, {vr(X,4)}, {vr(SEL+2,4)}, 0"))
        F2.append(("i", f"v_mfma_f32_16x16x32_bf16 {vr(d1,4)}, {vr(X,4)}, {vr(SEL,4)}, 0"))
        if k >= 1:
            Xp, offp = outs[k-1]
            I(F2, pack_store(Xp, Xp + 4, R1 + 8 + 4 * ((k - 1) & 1), f"s_add_u32 s{S_T}, s{S_SS}, {offp}", flags))
        else:
            F2.append(("gapn", 3))
    F2.append(("gapn", 3))
    Xp, offp = outs[3]
    I(F2, pack_store(Xp, Xp + 4, R1 + 12, f"s_add_u32 s{S_T}, s{S_SS}, {offp}", flags))
    if NOEPI:
        F2 = [("label", "K2_BACK")]

    pairs = []
    def mm(d, A, B, first):
        return f"v_mfma_f32_16x16x32_bf16 {vr(d,4)}, {vr(A,4)}, {vr(B,4)}, {'0' if first else vr(d,4)}"
    def add_pair(n, kind, idx):
        s = n // 2; h = n & 1
        slot = (s % NSLOT) * SLOT
        first = (n % 32 == 0)
        if kind == "S":
            im, b = idx
            rd = [("ds_read_b128", (V_SA0, V_SA1)[h], slot, im * 4096 + b * 2048, 0, 4)]
            D = SIM(b) if im else SRE(b)
        elif kind == "W1":
            j, up = idx
            o = up * 6144 + h * 3072 + j * 32
            rd = [("ds_read_b64_tr_b16", V_GA, slot, o, 0, 2), ("ds_read_b64_tr_b16", V_GA, slot, o + 768, 2, 2)]
            D = PU(j) if up else PG(j)
        else:
            j, up = idx
            o = up * 8192 + (1 - h if REV[0] else h) * 4096
            rd = [("ds_read_b64_tr_b16", GA2[j-3], slot, o, 0, 2), ("ds_read_b64_tr_b16", GA2[j-3], slot, o + 512, 2, 2)]
            D = PU(j) if up else PG(j)
        pairs.append(dict(n=n, stage=s, kind=kind, rd=rd, D=D, first=first, idx=idx))
    def add_S(n):
        for im in (0, 1):
            for b in (0, 1): add_pair(n, "S", (im, b))
    for n in range(32 - NT1):
        add_S(n)
        for j in range(3):
            for up in (0, 1): add_pair(n, "W1", (j, up))
    for n in range(32 - NT1, 32):
        for up in (0, 1): add_pair(n, "W1", (0, up))
    F2START = len(pairs) + (1 if NT1 else 0)
    for n in range(32 - NT1, 32): add_S(n)
    SDONE = len(pairs) + 1
    for j in (1, 2):
        for n in range(32 - NT1, 32):
            for up in (0, 1): add_pair(n, "W1", (j, up))
    if NT1 == 0: F2START = SDONE = len(pairs) + 1
    P1END = len(pairs)
    NTAIL = int(opts.get("ntail", 4))
    for n in range(32, 64 - NTAIL):
        for j in range(3, 7):
            for up in (0, 1): add_pair(n, "W2", (j, up))
    tail0 = len(pairs)
    for j in range(3, 7):
        for n in range(64 - NTAIL, 64):
            for up in (0, 1): add_pair(n, "W2", (j, up))
    NP = len(pairs)
    F3 = []
    if AL:
        I(F3, [f"s_and_b32 s{S_O96}, s{S_CG}, 3", f"s_lshl_b32 s{S_O96}, s{S_O96}, 16", f"s_add_u32 s{S_O96}, s{S_O96}, {18*32768}",
               f"s_add_u32 s{S_ST}, s{S_ST}, s{S_O96}"])
    for j in range(3, 6):
        F3.append(("at", tail0 + (j - 2) * 2 * NTAIL + 1))
        I(F3, glu(j, flags))

    base = {}
    state = dict(bar=-1, marks={}, nbar=0)
    hq = []
    pend = []
    BAR2 = int(opts.get("bar2", 0))
    def barrier_for(stage):
        while state["bar"] < stage:
            s = state["bar"] + 1
            two = (BAR2 == 1 and s < 16) or BAR2 == 2 or (BAR2 == 3 and s >= 16)
            if two and (s & 1):
                state["bar"] = s
            else:
                st.need(*(dtags(s) + (dtags(s + 1) if two else []) + pend))
                pend.clear()
                st.ins("s_barrier")
                state["bar"] = s; state["nbar"] += 1
            if (s >= 2 or NPRO != 100) and s + 4 < 32:
                hq.extend(dma(s + 4))
    def read_ins(k):
        p = pairs[k]
        barrier_for(p["stage"])
        o = []
        for (op, areg, slot, off, ro, cnt) in p["rd"]:
            cur = base.get(areg, 0)
            rel = slot + off - cur
            if rel < 0 or rel > 65535 - 1024:
                delta = slot - cur
                o.append((f"v_add_u32 v{areg}, {delta & 0xffffffff}, v{areg}" if delta >= 0 else f"v_subrev_u32 v{areg}, {-delta}, v{areg}", None))
                base[areg] = slot
                rel = off
            if SKIP and k % SKIP == SKIP - 1: continue
            o.append((f"{op} {vr(wr(k)+ro,cnt)}, v{areg} offset:{rel}", ("W", k, ro)))
        return o
    SKIP = int(opts.get("skiprd", 0))
    def wtags(k): return [("W", k, r[4]) for r in pairs[k]["rd"]] if not (SKIP and k % SKIP == SKIP - 1) else []
    PROGAP = int(opts.get("progap", 2))
    fq = dict(q=F1, pos=0, credit=0.0, hold=0)
    def run_fillers(i, budget):
        used = 0
        if pro_rest and budget < 10**8:
            state["pg"] = state.get("pg", 0) + 1
            if state["pg"] >= PROGAP:
                state["pg"] = 0
                emit_group(pro_rest.pop(0)); used += 1
        while hq and not pro_rest and used < max(budget, 1) + 1:
            g = hq.pop(0); emit_group(g); used += 1
        q = fq["q"]
        while fq["pos"] < len(q) and used < budget:
            it = q[fq["pos"]]
            k = it[0]
            if k == "i": st.ins(it[1]); used += 1
            elif k == "t": st.ins(it[1], it[2]); used += 1
            elif k == "g": emit_group(it[1]); used += 2
            elif k == "need": st.need(*it[1])
            elif k == "mark": pend.append(it[1]); state["marks"][it[1]] = state["nbar"]
            elif k == "afterbar":
                if state["nbar"] <= state["marks"][it[1]]: return
            elif k == "at":
                if i < it[1]: return
            elif k == "atS":
                if i < SDONE: return
            elif k == "at1":
                if i < P1END + 1: return
            elif k == "gapn":
                if fq["hold"] < it[1]:
                    fq["hold"] += 1; return
                fq["hold"] = 0
            elif k == "label": a.label(it[1])
            elif k == "stamp": P.stamp(it[1])
            fq["pos"] += 1
    def flush_fillers():
        while hq or fq["pos"] < len(fq["q"]):
            before = (len(hq), fq["pos"], fq["hold"])
            run_fillers(10**9, 1000)
            if (len(hq), fq["pos"], fq["hold"]) == before:
                raise RuntimeError("filler stuck %r" % (fq["q"][fq["pos"]],))
            if fq["hold"]: st.ins("s_nop 3")
    for k in range(NWR - 1):
        for ins, tag in read_ins(k): st.ins(ins, tag)
    if not LP: P.stamp(3)
    acc_credit = 0.0
    last_use = {}
    for i, p in enumerate(pairs): last_use[p["n"]] = i
    xat = {}
    for m in range(NXR, 64): xat.setdefault(last_use[m - NXR + (1 if FOLD else 0)] + 1 if m + 1 < 64 or not FOLD else 0, []).append(m)
    for i in range(NP):
        p = pairs[i]
        if i == F2START:
            flush_fillers()
            fq.update(q=F2, pos=0, hold=0)
        if i == P1END and not LP:
            P.stamp(5)
        if i == 1 and LP:
            P.stamp(6)
        if PF3 >= tail0 and i == PF3:
            hq.append([f"v_lshlrev_b32 v145, 7, v0", ("buffer_load_dword v144, v145, s[60:63], s68 offen", ("PF", 4))])
        for q in range(NPF3):
            if 0 <= PF3 < tail0 and i == PF3 + q * PF3D:
                hq.append([(f"buffer_load_dword v255, v254, s[60:63], s68 offen offset:{q * (64 // NPF3) * 128 if q * (64 // NPF3) * 128 < 4096 else 0}", ("PF", 3))] if q * (64 // NPF3) * 128 < 4096 else
                          [f"s_add_u32 s{S_T}, s68, {q * (64 // NPF3) * 128}", (f"buffer_load_dword v255, v254, s[60:63], s{S_T} offen", ("PF", 3))])
        if i == PF2A:
            hq.append([("buffer_load_dword v255, v253, s[64:67], s69 offen", ("PF", 1))])
        if i == PF2B:
            hq.append([f"s_add_u32 s69, s69, {512*7168}", ("buffer_load_dword v255, v253, s[64:67], s69 offen", ("PF", 2))])
        if i == P1END - 1:
            st.need(*[t for t in (("PF", 1), ("PF", 2), ("PF", 3)) if t in st.tags])
        if i == tail0:
            if fq["pos"] < len(fq["q"]): print("K2: %d scan fillers left at tail" % (len(fq["q"]) - fq["pos"]))
            flush_fillers()
            fq.update(q=F3, pos=0, hold=0)
        rate = 1.0 if i < F2START else (RATE2 if i < tail0 else RATE3)
        n = p["n"]
        nx = 63 - n if (REV[0] and 32 <= n < 38) else n
        tg = wtags(i) + [("X", nx, 0), ("X", nx, 1)]
        if i % 2 == 0 and i + 1 < NP:
            tg += wtags(i + 1)
        st.need(*tg)
        rd = read_ins(i + NWR - 1) if i + NWR - 1 < NP else []
        g1 = []; g2 = []
        seen = 0
        for x in rd:
            if x[1] is None: (g1 if seen == 0 else g2).append(x)
            else:
                (g1 if seen == 0 else g2).append(x); seen += 1
        W, D = wr(i), p["D"]
        for tb in (0, 1):
            X = xr(n, tb - 0)
            if p["kind"] == "S": st.ins(mm(D + 4 * tb, X, W, p["first"]))
            else: st.ins(mm(D + 4 * tb, W, X, p["first"]))
            for ins, tag in (g1 if tb == 0 else g2): st.ins(ins, tag)
            if tb == 0:
                for m in xat.get(i, []): hq.extend(xload(m))
            acc_credit += rate
            bud = int(acc_credit); acc_credit -= bud
            run_fillers(i, bud)
    a("s_nop 7"); st.n += 8
    if not LP: P.stamp(6)
    flush_fillers()
    for x in glu(6, flags): st.ins(x)
    print("K2: nops inserted", st.nops, "slots", st.n)
    P.stamp(7)
    if P.on:
        if not LP: a(f"s_mov_b32 s{P.regs[8]}, s{S_CNT}")
        a("s_waitcnt vmcnt(0)")
    P.stamp(9, real=True)
    P.flush(70, 71, 60, S_W, 40, 41)
    if int((opts or {}).get("merge", 0)):
        a("s_waitcnt vmcnt(0)")
        a("s_barrier")
        a("s_cmp_lg_u32 s3, 4")
        a("s_cbranch_scc1 K2_NOPUB")
        srd(a, 8, 70, 71, 0x400, GB_OFF)
        a("""
        v_mov_b32 v1, 1
        v_mov_b32 v2, 0
        s_lshr_b32 s7, s2, 3
        s_and_b32 s7, s7, 7
        s_lshl_b32 s7, s7, 5
        s_and_b32 s12, s2, 7
        s_lshl_b32 s12, s12, 2
        s_add_u32 s7, s7, s12
        s_lshr_b32 s12, s2, 6
        s_add_u32 s7, s7, s12
        s_lshl_b32 s7, s7, 2
        buffer_store_dword v1, v2, s[8:11], s7 offen sc1
        """)
        a.label("K2_NOPUB")
        a("v_lshl_add_u32 v0, s3, 6, v0")
        a("s_branch K3_ENTRY")
    else:
        a("s_endpgm")
    a.label("K2_SLOW")
    a(f"s_mov_b32 s{S_CNT}, 0")
    a.label("K2_SLOWL")
    for x in poll_loads(False): a(x)
    a("s_waitcnt vmcnt(0)")
    for x in maxchain(): a(x)
    a(f"""
    s_add_u32 s{S_CNT}, s{S_CNT}, 1
    s_nop 3
    s_cmp_eq_u64 vcc, 0
    s_cbranch_scc1 K2_BACK
    s_cmp_lt_u32 s{S_CNT}, 100000
    s_cbranch_scc1 K2_SLOWL
    s_branch K2_BACK
    """)
    a.label("K2_END")
    a("s_endpgm")
    return 256
```

```python
from common import *

K3 = "ssm_gemm2_kernel"
SLOT = 32768
NSLOT = 5
K3_LDS = NSLOT * SLOT

V_VOFF = 1
G_AD = 2
C_AD = 10
V_OUT = 14
V_XB = 15
TR = 16
VR = 48
ACC = 112
TMP = 176
V_BX, V_BN, V_BD = 216, 217, 218
NV = 220
def tf(b): return TR + 4 * b
def vf(s, tb): return VR + 8 * s + 4 * tb
def acc(b, tb): return ACC + 4 * (2 * b + tb)

S_WD, S_CRE, S_CIM, S_ACT, S_X, S_XN, S_D, S_XB, S_FL, S_OUT = 8, 12, 16, 20, 24, 28, 32, 36, 40, 44
S_T0, S_D0, S_V, S_CUR, S_DEL, S_CNT, S_PS, S_PM = 64, 65, 66, 67, 68, 69, 70, 71
S_XBO, S_XBP, S_XO1, S_FP, S_OS = 72, 73, 74, 75, 76

NOT = False
WRAP = 0
PACE = 0
TFL = ''
def t_read(kind, b, st):
    if kind == "G":
        return [f"ds_read_b64_tr_b16 {vr(tf(b),2)}, v{G_AD+b} offset:{st*8192}",
                f"ds_read_b64_tr_b16 {vr(tf(b)+2,2)}, v{G_AD+b} offset:{st*8192+1024}"]
    return [f"ds_read_b128 {vr(tf(b),4)}, v{C_AD+st} offset:{(b ^ 4)*4096}"]

def body(a, kind, nxt, opt, loop=False):
    nov = opt.get("nov")
    per = {"G": 2, "C": 1, None: 0}
    extra_vm = 0
    base_q = list(opt["base_loads"]) if nxt is None else []
    for sg in range(2):
        nk = kind if sg == 0 else nxt
        last_stage = (sg == 1 and nxt is None)
        fill = {}
        def put(st, b, g, ins):
            fill.setdefault((st, b, g), []).append(ins)
        for st in range(4):
            n = sg * 4 + st
            pv = (n - 1) % 8
            if not nov and (nxt is not None or n == 0):
                put(st, 1, 1, f"buffer_load_dwordx4 {vr(vf(pv,0),4)}, v{V_VOFF}, s[{S_ACT}:{S_ACT+3}], s{S_V} offen {opt['vfl']}")
                put(st, 2, 1, f"buffer_load_dwordx4 {vr(vf(pv,1),4)}, v{V_VOFF}, s[{S_ACT}:{S_ACT+3}], s{S_V} offen offset:{opt['voff2']} {opt['vfl']}")
                if opt.get("wrap"):
                    put(st, 2, 2, f"s_add_u32 s78, s78, 131072")
                    put(st, 3, 1, f"s_and_b32 s78, s78, 0x{opt['wrap']*4*131072-1:x}")
                    put(st, 3, 2, f"s_add_u32 s{S_V}, s77, s78")
                else:
                    put(st, 2, 2, f"s_add_u32 s{S_V}, s{S_V}, 131072")
            elif nxt is None:
                for slot in ((1, 1), (2, 1), (3, 1), (4, 1), (5, 1), (6, 1)):
                    while base_q and not base_q[0].startswith("buffer"):
                        put(st, slot[0], slot[1], base_q.pop(0))
                    if base_q:
                        put(st, slot[0], slot[1], base_q.pop(0))
        if not last_stage:
            put(0, 0, 1, f"s_cmp_eq_u32 s{S_CUR}, {(NSLOT-1)*SLOT}")
            put(0, 0, 2, f"s_cselect_b32 s{S_DEL}, s81, s80")
            put(1, 4, 1, f"s_add_u32 s{S_CUR}, s{S_CUR}, s{S_DEL}")
            if kind == "G" and nk == "G":
                for r, pos in enumerate([(2,3,1), (2,4,1), (2,4,2), (2,5,1), (2,6,1), (2,7,1), (3,3,1), (3,4,1)]):
                    put(*pos, f"v_add_u32 v{G_AD+r}, s{S_DEL}, v{G_AD+r}")
            if kind == "G" and nk == "C":
                for r, pos in enumerate([(2,4,1), (2,4,2), (2,5,1), (2,6,1)]):
                    put(*pos, f"v_add_u32 v{C_AD+r}, s{S_CUR}, v{C_AD+r}")
            if kind == "C":
                for st in range(4):
                    put(st, 4, 1, f"v_add_u32 v{C_AD+st}, s{S_DEL}, v{C_AD+st}")
            if opt.get("pace"):
                for st in range(4): put(st, 0, 2, "s_barrier")
            else:
                put(3, 0, 2, "s_barrier")
        if loop and sg == 1:
            put(3, 5, 1, f"s_sub_u32 s{S_CNT}, s{S_CNT}, 1")
            put(3, 6, 1, f"s_cmp_lg_u32 s{S_CNT}, 0")
        for st in range(4):
            n = sg * 4 + st
            nxk = kind if st < 3 else nk
            nxst = st + 1 if st < 3 else 0
            for b in range(8):
                if b % 2 == 0:
                    pc, pn = per[kind], per[nxk]
                    lg = {0: 5 * pc, 2: 4 * pc + pn, 4: 2 * pc + 3 * pn, 6: 5 * pn}[b]
                    w = f"lgkmcnt({min(lg,15)})"
                    if b == 0 and not nov:
                        if nxt is not None or n == 0:
                            vm = 12
                        else:
                            vm = 2 * (7 - n) + extra_vm
                        w = f"vmcnt({min(vm,63)}) " + w
                    a("s_waitcnt " + w)
                if b == 0:
                    rd = t_read(kind, 7, st)
                elif nxk is not None:
                    rd = t_read(nxk, b - 1, nxst)
                else:
                    rd = []
                g1 = rd[:1] + fill.get((st, b, 1), []); g2 = rd[1:] + fill.get((st, b, 2), [])
                for ins in g1 + g2:
                    if ins.startswith("buffer_load_dwordx2"): extra_vm += 1
                A, C0, C1 = tf(b), acc(b, 0), acc(b, 1)
                if opt["nomfma"]:
                    g1 = [x for x in g1 if not x.startswith("ds_read")]; g2 = [x for x in g2 if not x.startswith("ds_read")]
                    a.emit(g1); a.emit(g2)
                    continue
                a(f"v_mfma_f32_16x16x32_bf16 {vr(C0,4)}, {vr(A,4)}, {vr(vf(n,0),4)}, {vr(C0,4)}")
                a.emit(g1)
                a(f"v_mfma_f32_16x16x32_bf16 {vr(C1,4)}, {vr(A,4)}, {vr(vf(n,1),4)}, {vr(C1,4)}")
                a.emit(g2)
    if nxt is None:
        assert not base_q, base_q

def tail8(a, kind, opt):
    E = [(0, b) for b in range(8)] + [(s_, b) for s_ in range(1, 8) for b in range(4, 8)] + [(s_, b) for s_ in range(1, 8) for b in range(4)]
    N = len(E)
    def rd_of(p):
        s_, b = E[p]
        e = tf(p % 8); xo = (s_ >> 2) * SLOT; st = s_ & 3
        if kind == "G":
            return [f"ds_read_b64_tr_b16 {vr(e,2)}, v{G_AD+b} offset:{st*8192+xo}",
                    f"ds_read_b64_tr_b16 {vr(e+2,2)}, v{G_AD+b} offset:{st*8192+1024+xo}"]
        return [f"ds_read_b128 {vr(e,4)}, v{C_AD+st} offset:{(b ^ 4)*4096+xo}"]
    fill = {}
    def put(p, h, ins): fill.setdefault((p, h), []).append(ins)
    def spread(lst, p0, p1):
        hs = [(p, h) for p in range(p0, p1) for h in (1, 2)]
        for i, ins in enumerate(lst):
            put(*hs[i * len(hs) // len(lst)], ins)
    put(1, 1, f"buffer_load_dwordx4 {vr(vf(7,0),4)}, v{V_VOFF}, s[{S_ACT}:{S_ACT+3}], s{S_V} offen {opt['vfl']}")
    put(2, 1, f"buffer_load_dwordx4 {vr(vf(7,1),4)}, v{V_VOFF}, s[{S_ACT}:{S_ACT+3}], s{S_V} offen offset:{opt['voff2']} {opt['vfl']}")
    put(12, 2, "s_barrier")
    sg = opt["sgap"]
    spread(opt["send"], 36 + sg, 36 + sg + opt["sspan"])
    if not opt["pb"]: spread(list(opt["base_loads"]), 3, 3 + opt["bspan"])
    pl = opt["ppos"]
    for i, ins in enumerate(opt["ploads"]):
        put(min(pl + i // 2, N - 1), 1 + i % 2, ins)
    vmq = [("V", s_) for s_ in range(7) for _ in range(2)]
    per = {"G": 2, "C": 1}[kind]
    seen = set()
    for p, (s_, b) in enumerate(E):
        if p % 2 == 0:
            lg = per * len([j for j in range(p + 2, p + 7) if j < N])
            w = f"lgkmcnt({min(lg,15)})"
            if s_ not in seen:
                seen.add(s_)
                last = max(x for x, t in enumerate(vmq) if t == ("V", s_))
                w = f"vmcnt({min(len(vmq)-1-last,63)}) " + w
            a("s_waitcnt " + w)
        rd = rd_of(p + 7) if p + 7 < N else []
        for h in (1, 2):
            C = acc(b, h - 1)
            a(f"v_mfma_f32_16x16x32_bf16 {vr(C,4)}, {vr(tf(p % 8),4)}, {vr(vf(s_,h-1),4)}, {vr(C,4)}")
            for ins in (rd[:1] if h == 1 else rd[1:]) + fill.get((p, h), []):
                if ins.startswith("buffer"): vmq.append(("V", 7) if f"{vr(vf(7,0),4)}," in ins or f"{vr(vf(7,1),4)}," in ins else ("O", 0))
                a(ins)

def prod_issue(a, kind, paced=False):
    srdn = {"G": S_WD, "R": S_CRE, "I": S_CIM}[kind]
    vb = 16 if kind == "G" else 24
    for j in range(8):
        if paced and PACE and j in (2, 4, 6):
            a("s_barrier")
        if NOT: continue
        if j == 0:
            a(f"s_mov_b32 m0, s{S_PM}")
            a("s_nop 0")
        if j == 4:
            a(f"s_add_u32 m0, s{S_PM}, 4096")
            a("s_nop 0")
        a(f"buffer_load_dwordx4 v{vb+j}, s[{srdn}:{srdn+3}], s{S_PS} offen offset:{(j&3)*1024} {TFL} lds")
    if WRAP:
        inc = 262144 if kind == 'G' else 256
        a(f"s_add_u32 s82, s82, {inc}")
        a(f"s_and_b32 s82, s82, 0x{WRAP*inc-1:x}")
        a(f"s_add_u32 s{S_PS}, s83, s82")
    else:
        a(f"s_add_u32 s{S_PS}, s{S_PS}, {262144 if kind == 'G' else 256}")
    a(f"s_add_u32 s{S_PM}, s{S_PM}, {SLOT}")
    a(f"s_cmp_ge_u32 s{S_PM}, {NSLOT*SLOT}")
    a(f"s_cselect_b32 s7, {NSLOT*SLOT}, 0")
    a(f"s_sub_u32 s{S_PM}, s{S_PM}, s7")

def prod_loop(a, kind, n):
    if n == 0: return
    l = a.newlabel("K3_PL")
    a(f"s_mov_b32 s{S_CNT}, {n}")
    a.label(l)
    a("s_waitcnt vmcnt(16)")
    a("s_barrier")
    prod_issue(a, kind, True)
    a(f"s_sub_u32 s{S_CNT}, s{S_CNT}, 1")
    a(f"s_cmp_lg_u32 s{S_CNT}, 0")
    a(f"s_cbranch_scc1 {l}")

def cons_loop(a, kind, n, opt):
    if n == 0: return
    l = a.newlabel("K3_CL")
    a(f"s_mov_b32 s{S_CNT}, {n}")
    a.label(l)
    body(a, kind, kind, opt, loop=True)
    a(f"s_cbranch_scc1 {l}")

def gen_k3(a, out_flags="", prof=False, opts=None):
    opts = opts or {}
    opt = {"nov": int(opts.get("nov", 0))}
    global NOT, WRAP, PACE, TFL
    TFL = opts.get("tfl", "").replace("+", " ")
    opt["vfl"] = opts.get("vfl", "").replace("+", " ")
    opt["nomfma"] = int(opts.get("nomfma", 0))
    opt["vlin"] = int(opts.get("vlin", 0))
    opt["voff2"] = 1024 if opt["vlin"] else 256
    PACE = int(opts.get("pace", 0))
    opt["pace"] = PACE
    WRAP = int(opts.get("wrap", 0))
    opt["wrap"] = WRAP
    NOT = bool(int(opts.get("not", 0)))
    XB16 = int(opts.get("xb16", 0))
    TAIL = int(opts.get("tail", 0))
    PB = int(opts.get("pb", 0)); opt["pb"] = PB
    LB = 3 * SLOT; LST = 272
    assert not TAIL or XB16
    opt["sgap"] = int(opts.get("sgap", 3)); opt["sspan"] = int(opts.get("sspan", 8)); opt["ppos"] = int(opts.get("ppos", 60)); opt["bspan"] = int(opts.get("bspan", 14))
    xsf = opts.get("xsf", "sc1").replace("+", " "); xlf = opts.get("xlf", "sc1").replace("+", " ")
    MERGE = int((opts or {}).get("merge", 0))
    if MERGE: a.label("K3_ENTRY")
    else: kernel_begin(a, K3)
    P = Prof(a, prof, 2, list(range(84, 100)), 100)
    a("""
    s_cmp_ge_u32 s2, 256
    s_cbranch_scc1 K3_END
    """)
    P.stamp(0, real=True)
    P.stamp(1)
    a(f"""
    s_load_dwordx2 s[48:49], s[0:1], 96     ; w_down
    s_load_dwordx4 s[52:55], s[0:1], 40
    s_load_dwordx2 s[56:57], s[0:1], 120    ; ws
    s_load_dwordx2 s[58:59], s[0:1], 0      ; x
    s_load_dwordx2 s[60:61], s[0:1], 64     ; Dskip
    s_load_dwordx2 s[62:63], s[0:1], 104    ; out
    v_lshrrev_b32 v16, 6, v0
    v_and_b32 v0, 63, v0
    v_readfirstlane_b32 s3, v16             ; wave
    s_and_b32 s7, s2, 7                     ; xcd
    s_lshr_b32 s77, s2, 3                   ; j
    s_and_b32 s6, s7, 1                     ; hf
    s_lshr_b32 s78, s7, 1
    s_and_b32 s78, s78, 1                   ; nh
    s_lshr_b32 s79, s7, 2                   ; mh
    s_and_b32 s4, s77, 7
    s_lshl_b32 s79, s79, 3
    s_add_u32 s4, s4, s79
    s_lshr_b32 s5, s77, 3
    s_lshl_b32 s78, s78, 2
    s_add_u32 s5, s5, s78
    s_lshl_b32 s{S_T0}, s4, 7               ; t0
    s_lshl_b32 s{S_D0}, s5, 7               ; d0
    s_mov_b32 s80, {SLOT}
    s_mov_b32 s81, {-(NSLOT-1)*SLOT}
    s_mov_b32 s{S_FP}, 0xfffffffe
    v_and_b32 v17, 15, v0                   ; n
    v_lshrrev_b32 v18, 4, v0                ; g
    s_cmp_lt_u32 s3, 4
    s_cbranch_scc0 K3_PROD
    """)
    a(f"""
    v_lshlrev_b32 v19, 4, v17
    v_lshl_add_u32 v{V_VOFF}, v18, 15, v19          ; g*32768 + n*16
    s_lshl_b32 s77, s3, 5
    s_add_u32 s77, s77, s{S_T0}                     ; tw = t0 + 32w
    s_mul_i32 s{S_V}, s6, {352*32768}
    s_lshl_b32 s7, s77, 4
    s_add_u32 s{S_V}, s{S_V}, s7
    s_waitcnt lgkmcnt(0)
    """)
    if opt["vlin"]:
        a(f"v_lshlrev_b32 v{V_VOFF}, 4, v0")
        a(f"s_mul_i32 s{S_V}, s6, {352*32768}")
        a("s_lshl_b32 s7, s77, 6")
        a(f"s_add_u32 s{S_V}, s{S_V}, s7")
    srd(a, S_ACT, 56, 57, ACT_SZ, ACT_OFF)
    def vpro(n):
        a(f"buffer_load_dwordx4 {vr(vf(n,0),4)}, v{V_VOFF}, s[{S_ACT}:{S_ACT+3}], s{S_V} offen")
        a(f"buffer_load_dwordx4 {vr(vf(n,1),4)}, v{V_VOFF}, s[{S_ACT}:{S_ACT+3}], s{S_V} offen offset:256")
        a(f"s_add_u32 s{S_V}, s{S_V}, 131072")
    if MERGE: a("s_barrier")
    for n in range(7): vpro(n)
    a(f"""
    v_lshlrev_b32 v20, 11, v17
    v_lshl_add_u32 v{V_BX}, v18, 3, v20             ; x: n*2048 + g*8
    v_lshrrev_b32 v21, 2, v17
    v_and_b32 v21, 1, v21
    v_lshlrev_b32 v21, 2, v21                       ; 4*((n>>2)&1)
    v_lshrrev_b32 v22, 3, v17
    v_add_u32 v21, v21, v22                         ; + (n>>3)
    v_and_b32 v22, 3, v17
    v_lshl_add_u32 v21, v21, 2, v22                 ; 16((n>>2)&1) + 4(n>>3) + (n&3)
    v_lshlrev_b32 v21, 4, v21
    v_lshrrev_b32 v22, 1, v18
    v_lshl_add_u32 v21, v22, 15, v21
    v_and_b32 v22, 1, v18
    v_lshl_add_u32 v{V_BN}, v22, 3, v21
    v_lshlrev_b32 v{V_BD}, 3, v18                   ; D: g*8
    s_lshl_b32 s78, s6, 6
    s_add_u32 s78, s78, s{S_D0}
    s_lshl_b32 s79, s77, 11
    s_lshl_b32 s7, s78, 1
    s_add_u32 s79, s79, s7
    s_add_u32 s{S_XO1}, s79, 32768
    s_lshl_b32 s82, s78, 12                         ; (dk/8)*32768
    s_lshl_b32 s7, s77, 4
    s_add_u32 s82, s82, s7
    s_lshl_b32 s83, s78, 1                          ; D soffset
    s_lshl_b32 s{S_OS}, s77, 12
    s_lshl_b32 s7, s78, 2
    s_add_u32 s{S_OS}, s{S_OS}, s7
    """)
    srd(a, S_X, 58, 59, 0x400000)
    srd(a, S_XN, 56, 57, XN_SZ, XN_OFF)
    srd(a, S_D, 60, 61, 2048)
    X0, N0, D0 = TMP, TMP + 16, TMP + 32
    bl = []
    for i in range(4):
        bl.append(f"buffer_load_dwordx2 {vr(X0+4*i,2)}, v{V_BX}, s[{S_X}:{S_X+3}], s79 offen offset:{32*i}")
        bl.append(f"buffer_load_dwordx2 {vr(X0+4*i+2,2)}, v{V_BX}, s[{S_X}:{S_X+3}], s{S_XO1} offen offset:{32*i}")
    for i in range(4):
        bl.append(f"buffer_load_dwordx2 {vr(N0+4*i,2)}, v{V_BN}, s[{S_XN}:{S_XN+3}], s82 offen")
        bl.append(f"buffer_load_dwordx2 {vr(N0+4*i+2,2)}, v{V_BN}, s[{S_XN}:{S_XN+3}], s82 offen offset:128")
        bl.append(f"buffer_load_dwordx2 {vr(D0+2*i,2)}, v{V_BD}, s[{S_D}:{S_D+3}], s83 offen offset:{32*i}")
        if i < 3: bl.append(f"s_add_u32 s82, s82, 65536")
    opt["base_loads"] = bl
    if TAIL:
        T = 220
        def swap(P, Q):
            return ([f"v_mov_b32 v{T+k}, v{P+k}" for k in range(4)] +
                    [f"v_mov_b32_dpp v{P+k}, v{Q+k} row_ror:8 row_mask:0xf bank_mask:0xc" for k in range(4)] +
                    [f"v_mov_b32_dpp v{Q+k}, v{T+k} row_ror:8 row_mask:0xf bank_mask:0x3" for k in range(4)])
        send = []
        for j in range(2):
            for i in (2*j, 2*j+1):
                p, q_ = acc(4+i, 0), acc(4+i, 1)
                send += [f"v_cvt_pk_bf16_f32 v{p}, v{p}, v{p+1}", f"v_cvt_pk_bf16_f32 v{p+1}, v{p+2}, v{p+3}",
                         f"v_cvt_pk_bf16_f32 v{p+2}, v{q_}, v{q_+1}", f"v_cvt_pk_bf16_f32 v{p+3}, v{q_+2}, v{q_+3}"]
                send += [f"v_min_u32 v{p+r}, s{S_FP}, v{p+r}" for r in range(4)]
            send += swap(acc(4+2*j, 0), acc(5+2*j, 0))
            for i in (2*j, 2*j+1):
                send.append(f"buffer_store_dwordx4 {vr(acc(4+i,0),4)}, v{V_XB}, s[{S_XB}:{S_XB+3}], s{S_XBO} offen offset:{i*1024} {xsf}")
        calc = [f"s_waitcnt vmcnt({4+4})"]
        for i in range(4):
            calc += [f"v_lshlrev_b32 v{T}, 16, v{D0+2*i}", f"v_and_b32 v{T+1}, 0xffff0000, v{D0+2*i}",
                     f"v_lshlrev_b32 v{T+2}, 16, v{D0+2*i+1}", f"v_and_b32 v{T+3}, 0xffff0000, v{D0+2*i+1}"]
            for tb in range(2):
                nn = N0 + 4*i + 2*tb; xx = X0 + 4*i + 2*tb; o = acc(i, tb)
                calc += [f"v_lshlrev_b32 v{T+4}, 16, v{nn}", f"v_and_b32 v{T+5}, 0xffff0000, v{nn}",
                         f"v_lshlrev_b32 v{T+6}, 16, v{nn+1}", f"v_and_b32 v{T+7}, 0xffff0000, v{nn+1}"]
                calc += [f"v_mul_f32 v{T+4+q}, v{T+4+q}, v{T+q}" for q in range(4)]
                calc += [f"v_cvt_pk_bf16_f32 v{T+4}, v{T+4}, v{T+5}", f"v_cvt_pk_bf16_f32 v{T+6}, v{T+6}, v{T+7}",
                         f"v_lshlrev_b32 v{nn}, 16, v{xx}", f"v_and_b32 v{nn+1}, 0xffff0000, v{xx}",
                         f"v_lshlrev_b32 v{xx}, 16, v{xx+1}", f"v_and_b32 v{xx+1}, 0xffff0000, v{xx+1}",
                         f"v_lshlrev_b32 v{T+5}, 16, v{T+4}", f"v_and_b32 v{T+4}, 0xffff0000, v{T+4}",
                         f"v_lshlrev_b32 v{T+7}, 16, v{T+6}", f"v_and_b32 v{T+6}, 0xffff0000, v{T+6}",
                         f"v_add_f32 v{nn}, v{nn}, v{T+5}", f"v_add_f32 v{nn+1}, v{nn+1}, v{T+4}",
                         f"v_add_f32 v{xx}, v{xx}, v{T+7}", f"v_add_f32 v{xx+1}, v{xx+1}, v{T+6}",
                         f"v_add_f32 v{o}, v{o}, v{nn}", f"v_add_f32 v{o+1}, v{o+1}, v{nn+1}",
                         f"v_add_f32 v{o+2}, v{o+2}, v{xx}", f"v_add_f32 v{o+3}, v{o+3}, v{xx+1}"]
        for j in range(2):
            for tb in range(2):
                calc += swap(acc(2*j, tb), acc(2*j+1, tb))
        if PB:
            calc = []
            for j in range(2):
                for tb in range(2):
                    calc += swap(acc(2*j, tb), acc(2*j+1, tb))
            calc.append("s_barrier")
            for i in range(4):
                for tb in range(2):
                    calc.append(f"ds_read_b128 {vr(TMP+4*(2*i+tb),4)}, v{V_BX} offset:{(16*tb + 8*(i&1))*LST + 128*(i>>1)}")
            for i in range(4):
                for tb in range(2):
                    k = 2*i + tb
                    calc.append(f"s_waitcnt lgkmcnt({7-k})")
                    calc += [f"v_add_f32 v{acc(i,tb)+r}, v{acc(i,tb)+r}, v{TMP+4*k+r}" for r in range(4)]
        LD = [acc(4+i, 1) for i in range(4)]
        pl = [f"buffer_load_dwordx4 {vr(LD[k],4)}, v{V_XB}, s[{S_XB}:{S_XB+3}], s{S_XBP} offen offset:{k*1024} {xlf}" for k in range(4)]
        opt["send"], opt["ploads"] = send, pl
    srd(a, S_XB, 56, 57, XB_SZ, XB_OFF)
    srd(a, S_OUT, 62, 63, 0x800000)
    a(f"""
    v_lshrrev_b32 v23, 2, v0
    v_and_b32 v23, 3, v23                   ; r
    v_and_b32 v24, 3, v0                    ; c
    v_lshl_add_u32 v25, v18, 3, v23         ; 8g + r
    v_lshlrev_b32 v25, 8, v25
    v_lshl_add_u32 v25, v24, 3, v25         ; + 8c
    v_and_b32 v26, 1, v18
    v_lshl_add_u32 v26, v26, 2, v23         ; f = r | (g&1)<<2
    s_lshl_b32 s7, s6, 2
    v_xor_b32 v26, s7, v26                  ; f ^ 4hf
    """)
    for b in range(8):
        a(f"v_xor_b32 v27, {b}, v26")
        a(f"v_lshl_add_u32 v{G_AD+b}, v27, 5, v25")
    a("v_xor_b32 v27, v18, v17")
    a("v_lshlrev_b32 v28, 8, v17")
    for st in range(4):
        a(f"v_xor_b32 v29, {4*st}, v27")
        a(f"v_lshl_add_u32 v{C_AD+st}, v29, 4, v28")
    a(f"""
    v_lshlrev_b32 v{V_OUT}, 12, v17
    v_lshl_add_u32 v{V_OUT}, v18, 4, v{V_OUT}        ; n*4096 + g*16
    v_lshlrev_b32 v{V_XB}, 4, v0
    s_lshl_b32 s7, s2, 2
    s_add_u32 s7, s7, s3                    ; wg*4 + w
    s_lshl_b32 s{S_XBO}, s7, {12 if XB16 else 13}
    s_xor_b32 s{S_XBP}, s{S_XBO}, {1 << (14 if XB16 else 15)}
    s_mov_b32 s40, 0x00003f80
    s_mov_b32 s41, 0x3f800000
    s_mov_b32 s{S_CUR}, 0
    """)
    if TAIL:
        a(f"""
        v_and_b32 v27, 7, v17
        v_lshlrev_b32 v27, 12, v27
        v_lshrrev_b32 v28, 3, v17
        v_lshl_add_u32 v27, v28, 6, v27
        v_lshl_add_u32 v{V_OUT}, v18, 4, v27        ; (n&7)*4096 + (n>>3)*64 + g*16
        """)
        if PB:
            a(f"""
            v_and_b32 v27, 7, v17
            s_lshl_b32 s7, s3, 5
            v_add_u32 v27, s7, v27                  ; 32w + (n&7)
            v_mul_u32_u24 v27, {LST}, v27
            v_lshl_add_u32 v27, v28, 6, v27
            v_lshl_add_u32 v27, v18, 4, v27
            v_add_u32 v{V_BX}, {LB}, v27
            """)
    for b in range(8):
        for tb in range(2):
            for r in range(4):
                a(f"v_mov_b32 v{acc(b,tb)+r}, 0")
    P.stamp(2)
    if WRAP:
        a(f"s_mov_b32 s77, s{S_V}")
        a("s_mov_b32 s78, 0")
    a("s_barrier")
    P.stamp(3)
    for b in range(7):
        a.emit(t_read("G", b, 0))
    a("s_cmp_eq_u32 s6, 0")
    a("s_cbranch_scc0 K3_H1")
    cons_loop(a, "G", 10, opt)
    if TAIL: tail8(a, "G", opt)
    else: body(a, "G", None, opt)
    a("s_branch K3_EPI")
    a.label("K3_H1")
    cons_loop(a, "G", 2, opt)
    body(a, "G", "C", opt)
    cons_loop(a, "C", 7, opt)
    if TAIL: tail8(a, "C", opt)
    else: body(a, "C", None, opt)
    if TAIL:
        a.label("K3_EPI")
        a("s_nop 15")
        P.stamp(4)
        a(f"s_add_u32 s77, s{S_OS}, 32768")
        a(f"s_add_u32 s78, s{S_OS}, 65536")
        a(f"s_add_u32 s79, s{S_OS}, 98304")
        a.emit(calc)
        P.stamp(5)
        lp = a.newlabel("K3_POLL"); ck = a.newlabel("K3_PCK"); ok = a.newlabel("K3_POK")
        a(f"s_mov_b32 s{S_CNT}, 0")
        a(f"s_branch {ck}")
        a.label(lp)
        a.emit(pl)
        a.label(ck)
        a("s_waitcnt vmcnt(0)")
        regs = [LD[k] + r for k in range(4) for r in range(4)]
        m = G_AD
        a(f"v_max3_u32 v{m}, v{regs[0]}, v{regs[1]}, v{regs[2]}")
        for k in range(3, 15, 2):
            a(f"v_max3_u32 v{m}, v{m}, v{regs[k]}, v{regs[k+1]}")
        a(f"v_max_u32 v{m}, v{m}, v{regs[15]}")
        a(f"""
        s_nop 0
        v_cmp_eq_u32 vcc, -1, v{m}
        s_add_u32 s{S_CNT}, s{S_CNT}, 1
        s_nop 1
        s_cbranch_vccz {ok}
        s_cmp_lt_u32 s{S_CNT}, 100000
        s_cbranch_scc1 {lp}
        """)
        a.label(ok)
        P.stamp(6)
        if P.on:
            a(f"s_mov_b32 s{P.regs[9]}, s{S_CNT}")
        U = 220
        def ostore(i):
            for tb in range(2):
                so = (S_OS, 77, 78, 79)[2 * tb + (i & 1)]
                a(f"buffer_store_dwordx4 {vr(acc(i,tb),4)}, v{V_OUT}, s[{S_OUT}:{S_OUT+3}], s{so} offen offset:{128*(i>>1)} {out_flags}")
        for i in range(4):
            L = LD[i]
            for k in range(4):
                a(f"v_lshlrev_b32 v{U+2*k}, 16, v{L+k}")
                a(f"v_and_b32 v{U+2*k+1}, 0xffff0000, v{L+k}")
            for k in range(4):
                o = acc(i, k >> 1) + 2 * (k & 1)
                a(f"v_add_f32 v{o}, v{o}, v{U+2*k}")
                a(f"v_add_f32 v{o+1}, v{o+1}, v{U+2*k+1}")
            ostore(i)
        P.stamp(7)
        if P.on:
            a("s_waitcnt vmcnt(0)")
        P.stamp(8)
        P.stamp(10, real=True)
        P.flush(56, 57, 48, 3, 9, 10)
        a("s_endpgm")
    else:
        old_epi(a, P, opt, XB16, xsf, xlf, X0, N0, D0, out_flags)
    a.label("K3_PROD")
    a(f"""
    s_sub_u32 s77, s3, 4                    ; pw
    v_and_b32 v19, 15, v0                   ; p
    v_lshrrev_b32 v20, 1, v19               ; window
    v_and_b32 v21, 1, v19                   ; half
    v_lshlrev_b32 v21, 4, v21
    v_lshl_add_u32 v21, v18, 11, v21
    v_xor_b32 v22, v20, v18
    v_xor_b32 v23, 4, v22
    v_lshl_add_u32 v22, v22, 5, v21
    v_lshl_add_u32 v23, v23, 5, v21
    """)
    for j in range(8):
        src = 22 if ((j >> 1) & 1) == 0 else 23
        a(f"v_add_u32 v{16+j+16}, {8192*j - 1024*(j&3)}, v{src}")
    a("v_xor_b32 v22, v19, v18")
    a("v_lshlrev_b32 v21, 11, v18")
    for j in range(8):
        a(f"v_xor_b32 v23, {4*(j&3)}, v22")
        a(f"v_lshl_add_u32 v23, v23, 4, v21")
        a(f"v_add_u32 v{24+j+16}, {8192*j - 1024*(j&3)}, v23")
    for j in range(16):
        a(f"v_mov_b32 v{16+j}, v{32+j}")
    a(f"""
    s_lshl_b32 s{S_PM}, s77, 13             ; pw*8192
    s_mul_i32 s{S_PS}, s6, 2816
    s_lshl_b32 s7, s77, 5
    s_add_u32 s{S_PS}, s{S_PS}, s7
    s_lshl_b32 s{S_PS}, s{S_PS}, 11
    s_lshl_b32 s7, s{S_D0}, 1
    s_add_u32 s{S_PS}, s{S_PS}, s7
    s_lshl_b32 s79, s77, 5
    s_add_u32 s79, s79, s{S_D0}
    s_lshl_b32 s79, s79, 11
    s_waitcnt lgkmcnt(0)
    """)
    srd(a, S_WD, 48, 49, 0x700000)
    srd(a, S_CRE, 52, 53, 0x200000)
    srd(a, S_CIM, 54, 55, 0x200000)
    P.stamp(11)
    if WRAP:
        a(f"s_mov_b32 s83, s{S_PS}")
        a("s_mov_b32 s82, 0")
    for _ in range(2):
        prod_issue(a, "G")
    if MERGE:
        a("s_cmp_lg_u32 s77, 0")
        a("s_cbranch_scc1 K3_NOPOLL")
        srd(a, S_ACT, 56, 57, 0x400, GB_OFF)
        a(f"""
        s_lshr_b32 s7, s4, 1
        s_lshl_b32 s7, s7, 7
        v_lshlrev_b32 v40, 2, v0
        v_add_u32 v40, s7, v40
        s_lshr_b32 s7, s2, 3
        s_and_b32 s7, s7, 7
        s_lshl_b32 s7, s7, 5
        s_xor_b32 s78, s2, 1
        s_and_b32 s78, s78, 7
        s_lshl_b32 s78, s78, 2
        s_add_u32 s7, s7, s78
        s_lshr_b32 s78, s2, 6
        s_add_u32 s7, s7, s78
        s_lshl_b32 s7, s7, 2
        v_mov_b32 v41, s7
        v_cmp_gt_u32 vcc, 32, v0
        s_mov_b32 s{S_CNT}, 0
        s_nop 1
        v_cndmask_b32 v40, v41, v40, vcc
        """)
        a.label("K3_GP")
        a(f"""
        buffer_load_dword v36, v40, s[{S_ACT}:{S_ACT+3}], 0 offen sc1
        s_waitcnt vmcnt(0)
        v_cmp_ne_u32 vcc, 1, v36
        s_add_u32 s{S_CNT}, s{S_CNT}, 1
        s_nop 3
        s_cmp_eq_u64 vcc, 0
        s_cbranch_scc1 K3_GOK
        s_cmp_lt_u32 s{S_CNT}, 50000
        s_cbranch_scc1 K3_GP
        """)
        a.label("K3_GOK")
        if int(opts.get("ginv", 1)):
            a("buffer_inv sc1")
            a("s_waitcnt vmcnt(0)")
        a.label("K3_NOPOLL")
        a("s_barrier")
    a("s_waitcnt vmcnt(8)")
    P.stamp(2)
    a("s_barrier")
    if PACE:
        prod_issue(a, "G", True)
        prod_issue(a, "G")
    else:
        for _ in range(2):
            prod_issue(a, "G")
    a("s_cmp_eq_u32 s6, 0")
    a("s_cbranch_scc0 K3_PH1")
    prod_loop(a, "G", 18)
    a("s_branch K3_PTAIL")
    a.label("K3_PH1")
    prod_loop(a, "G", 2)
    a(f"s_mov_b32 s{S_PS}, s79")
    if WRAP:
        a(f"s_mov_b32 s83, s79")
        a("s_mov_b32 s82, 0")
    prod_loop(a, "R", 8)
    a(f"s_mov_b32 s{S_PS}, s79")
    prod_loop(a, "I", 8)
    a.label("K3_PTAIL")
    if TAIL and int(opts.get("vtouch", 1)):
        a(f"""
        v_and_b32 v32, 15, v0
        v_lshrrev_b32 v33, 4, v0
        v_lshlrev_b32 v32, 4, v32
        v_lshl_add_u32 v32, v33, 15, v32
        s_mul_i32 s78, s6, {352*32768}
        s_lshl_b32 s7, s77, 5
        s_add_u32 s7, s7, s{S_T0}
        s_lshl_b32 s7, s7, 4
        s_add_u32 s78, s78, s7
        s_add_u32 s78, s78, {87*131072}
        """)
        srd(a, S_ACT, 56, 57, ACT_SZ, ACT_OFF)
        a(f"buffer_load_dwordx4 v[36:39], v32, s[{S_ACT}:{S_ACT+3}], s78 offen")
        a(f"buffer_load_dwordx4 v[40:43], v32, s[{S_ACT}:{S_ACT+3}], s78 offen offset:256")
    if TAIL and int(opts.get('vtouch', 1)) and PB:
        srd(a, S_X, 58, 59, 0x400000)
        srd(a, S_XN, 56, 57, XN_SZ, XN_OFF)
        srd(a, S_D, 60, 61, 2048)
        NR, XR_, DP, DF, RR, TT = 48, 64, 80, 84, 92, 124
        a(f"""
        s_lshl_b32 s78, s6, 6
        s_add_u32 s78, s78, s{S_D0}                     ; dk
        s_lshl_b32 s79, s77, 5
        s_add_u32 s79, s79, s{S_T0}                     ; tw
        v_and_b32 v130, 7, v0                            ; c
        v_lshrrev_b32 v131, 3, v0                        ; p8
        v_lshlrev_b32 v132, 15, v130
        v_lshl_add_u32 v132, v131, 4, v132                 ; xn: c*32768 + p8*16
        s_lshl_b32 s82, s78, 12
        s_lshl_b32 s7, s79, 4
        s_add_u32 s82, s82, s7
        """)
        for m in range(4):
            a(f"buffer_load_dwordx4 {vr(NR+4*m,4)}, v132, s[{S_XN}:{S_XN+3}], s82 offen offset:{128*m}")
        a(f"""
        v_lshrrev_b32 v133, 2, v131
        v_lshlrev_b32 v133, 3, v133
        v_and_b32 v134, 3, v131
        v_add_u32 v133, v133, v134
        v_lshlrev_b32 v134, 11, v133
        v_lshl_add_u32 v134, v130, 4, v134                 ; x: row*2048 + c*16
        s_lshl_b32 s82, s79, 11
        s_lshl_b32 s7, s78, 1
        s_add_u32 s82, s82, s7
        """)
        for m in range(4):
            a(f"s_add_u32 s83, s82, {(m&1)*32768 + (m>>1)*8192}")
            a(f"buffer_load_dwordx4 {vr(XR_+4*m,4)}, v134, s[{S_X}:{S_X+3}], s83 offen")
        a(f"""
        v_lshlrev_b32 v135, 4, v130
        buffer_load_dwordx4 {vr(DP,4)}, v135, s[{S_D}:{S_D+3}], s7 offen
        s_lshl_b32 s7, s77, 5
        v_add_u32 v133, s7, v133
        v_mul_u32_u24 v133, {LST}, v133
        v_lshl_add_u32 v133, v130, 5, v133
        v_add_u32 v133, {LB}, v133
        """)
    if TAIL and int(opts.get('vtouch', 1)) and not PB:
        srd(a, S_X, 58, 59, 0x400000)
        srd(a, S_XN, 56, 57, XN_SZ, XN_OFF)
        srd(a, S_D, 60, 61, 2048)
        a(f"""
        s_lshl_b32 s78, s6, 6
        s_add_u32 s78, s78, s{S_D0}                     ; dk
        s_lshl_b32 s79, s77, 5
        s_add_u32 s79, s79, s{S_T0}                     ; tw
        s_lshl_b32 s82, s79, 11
        s_lshl_b32 s7, s78, 1
        s_add_u32 s82, s82, s7
        v_and_b32 v33, 31, v0
        v_lshlrev_b32 v34, 11, v33
        buffer_load_dword v44, v34, s[{S_X}:{S_X+3}], s82 offen
        s_lshl_b32 s82, s78, 12
        s_lshl_b32 s83, s79, 4
        s_add_u32 s82, s82, s83
        v_lshrrev_b32 v34, 2, v33
        v_lshlrev_b32 v34, 15, v34
        v_and_b32 v35, 3, v33
        v_lshl_add_u32 v34, v35, 7, v34
        buffer_load_dword v45, v34, s[{S_XN}:{S_XN+3}], s82 offen
        v_mov_b32 v35, 0
        buffer_load_dword v46, v35, s[{S_D}:{S_D+3}], s7 offen
        """)
    ex = (11 if PB else 5) if TAIL and int(opts.get("vtouch", 1)) else 0
    for vm in (16 + ex, 8 + ex, ex):
        a(f"s_waitcnt vmcnt({vm})")
        a("s_barrier")
        if PACE and vm:
            for _ in range(3): a("s_barrier")
    a("s_waitcnt vmcnt(0)")
    if PB:
        for k in range(4):
            a(f"v_lshlrev_b32 v{DF+2*k}, 16, v{DP+k}")
            a(f"v_and_b32 v{DF+2*k+1}, 0xffff0000, v{DP+k}")
        for m in range(4):
            R = RR + 8*m
            for k in range(4):
                n_, x_ = NR + 4*m + k, XR_ + 4*m + k
                a(f"v_lshlrev_b32 v{TT}, 16, v{n_}")
                a(f"v_and_b32 v{TT+1}, 0xffff0000, v{n_}")
                a(f"v_mul_f32 v{TT}, v{TT}, v{DF+2*k}")
                a(f"v_mul_f32 v{TT+1}, v{TT+1}, v{DF+2*k+1}")
                a(f"v_lshlrev_b32 v{R+2*k}, 16, v{x_}")
                a(f"v_cvt_pk_bf16_f32 v{TT}, v{TT}, v{TT+1}")
                a(f"v_and_b32 v{R+2*k+1}, 0xffff0000, v{x_}")
                a(f"v_lshlrev_b32 v{TT+2}, 16, v{TT}")
                a(f"v_and_b32 v{TT+3}, 0xffff0000, v{TT}")
                a(f"v_add_f32 v{R+2*k}, v{R+2*k}, v{TT+2}")
                a(f"v_add_f32 v{R+2*k+1}, v{R+2*k+1}, v{TT+3}")
            off = (16*(m&1) + 4*(m>>1)) * LST
            a(f"ds_write_b128 v133, {vr(R,4)} offset:{off}")
            a(f"ds_write_b128 v133, {vr(R+4,4)} offset:{off+16}")
        a("s_waitcnt lgkmcnt(0)")
        a("s_barrier")
    P.stamp(4)
    P.stamp(10, real=True)
    P.flush(56, 57, 48, 3, 9, 10)
    a.label("K3_END")
    a("s_endpgm")
    return 228 if TAIL else NV


def old_epi(a, P, opt, XB16, xsf, xlf, X0, N0, D0, out_flags):
    a.label("K3_EPI")
    a("s_nop 15")
    P.stamp(4)
    if XB16:
        for i in range(4):
            p, q_ = acc(4+i, 0), acc(4+i, 1)
            a(f"v_cvt_pk_bf16_f32 v{p}, v{p}, v{p+1}")
            a(f"v_cvt_pk_bf16_f32 v{p+1}, v{p+2}, v{p+3}")
            a(f"v_cvt_pk_bf16_f32 v{p+2}, v{q_}, v{q_+1}")
            a(f"v_cvt_pk_bf16_f32 v{p+3}, v{q_+2}, v{q_+3}")
            for r in range(4):
                a(f"v_min_u32 v{p+r}, s{S_FP}, v{p+r}")
            a(f"buffer_store_dwordx4 {vr(p,4)}, v{V_XB}, s[{S_XB}:{S_XB+3}], s{S_XBO} offen offset:{i*1024} {xsf}")
    else:
        a(f"s_add_u32 s7, s{S_XBO}, 4096")
        for i in range(4):
            for tb in range(2):
                k = 2*i + tb
                for r in range(4):
                    a(f"v_min_u32 v{acc(4+i,tb)+r}, s{S_FP}, v{acc(4+i,tb)+r}")
                a(f"buffer_store_dwordx4 {vr(acc(4+i,tb),4)}, v{V_XB}, s[{S_XB}:{S_XB+3}], s{S_XBO if k < 4 else 7} offen offset:{(k&3)*1024} {xsf}")
    NL = 4 if XB16 else 8
    def ploads():
        if not XB16: a(f"s_add_u32 s7, s{S_XBP}, 4096")
        for k in range(NL):
            a(f"buffer_load_dwordx4 {vr(VR+4*k,4)}, v{V_XB}, s[{S_XB}:{S_XB+3}], s{S_XBP if k < 4 else 7} offen offset:{(k&3)*1024} {xlf}")
    a(f"s_waitcnt vmcnt({NL})")
    T = G_AD
    for i in range(4):
        a(f"v_lshlrev_b32 v{T}, 16, v{D0+2*i}")
        a(f"v_and_b32 v{T+1}, 0xffff0000, v{D0+2*i}")
        a(f"v_lshlrev_b32 v{T+2}, 16, v{D0+2*i+1}")
        a(f"v_and_b32 v{T+3}, 0xffff0000, v{D0+2*i+1}")
        for tb in range(2):
            nn = N0 + 4*i + 2*tb; xx = X0 + 4*i + 2*tb; o = acc(i, tb)
            a(f"v_lshlrev_b32 v{T+4}, 16, v{nn}")
            a(f"v_and_b32 v{T+5}, 0xffff0000, v{nn}")
            a(f"v_lshlrev_b32 v{T+6}, 16, v{nn+1}")
            a(f"v_and_b32 v{T+7}, 0xffff0000, v{nn+1}")
            for q in range(4):
                a(f"v_mul_f32 v{T+4+q}, v{T+4+q}, v{T+q}")
            a(f"v_cvt_pk_bf16_f32 v{T+4}, v{T+4}, v{T+5}")
            a(f"v_cvt_pk_bf16_f32 v{T+6}, v{T+6}, v{T+7}")
            a(f"v_lshlrev_b32 v{nn}, 16, v{xx}")
            a(f"v_and_b32 v{nn+1}, 0xffff0000, v{xx}")
            a(f"v_lshlrev_b32 v{xx}, 16, v{xx+1}")
            a(f"v_and_b32 v{xx+1}, 0xffff0000, v{xx+1}")
            a(f"v_lshlrev_b32 v{T+5}, 16, v{T+4}")
            a(f"v_and_b32 v{T+4}, 0xffff0000, v{T+4}")
            a(f"v_lshlrev_b32 v{T+7}, 16, v{T+6}")
            a(f"v_and_b32 v{T+6}, 0xffff0000, v{T+6}")
            a(f"v_add_f32 v{nn}, v{nn}, v{T+5}")
            a(f"v_add_f32 v{nn+1}, v{nn+1}, v{T+4}")
            a(f"v_add_f32 v{xx}, v{xx}, v{T+7}")
            a(f"v_add_f32 v{xx+1}, v{xx+1}, v{T+6}")
            a(f"v_add_f32 v{o}, v{o}, v{nn}")
            a(f"v_add_f32 v{o+1}, v{o+1}, v{nn+1}")
            a(f"v_add_f32 v{o+2}, v{o+2}, v{xx}")
            a(f"v_add_f32 v{o+3}, v{o+3}, v{xx+1}")
    P.stamp(5)
    lp = a.newlabel("K3_POLL"); ok = a.newlabel("K3_POK")
    a(f"s_mov_b32 s{S_CNT}, 0")
    a.label(lp)
    ploads()
    a("s_waitcnt vmcnt(0)")
    m = T
    a(f"v_max3_u32 v{m}, v{VR}, v{VR+1}, v{VR+2}")
    for k in range(3, 4*NL-1, 2):
        a(f"v_max3_u32 v{m}, v{m}, v{VR+k}, v{VR+k+1}")
    a(f"v_max_u32 v{m}, v{m}, v{VR+4*NL-1}")
    a(f"""
    v_cmp_eq_u32 vcc, -1, v{m}
    s_add_u32 s{S_CNT}, s{S_CNT}, 1
    s_cbranch_vccz {ok}
    s_cmp_lt_u32 s{S_CNT}, 100000
    s_cbranch_scc1 {lp}
    """)
    a.label(ok)
    P.stamp(6)
    if P.on:
        a(f"s_mov_b32 s{P.regs[9]}, s{S_CNT}")
    a(f"s_add_u32 s7, s{S_OS}, 65536")
    for i in range(4):
        for tb in range(2):
            k = 2*i + tb
            if XB16:
                for h in range(2):
                    o = acc(i, tb) + 2*h
                    a(f"v_dot2_f32_bf16 v{o}, v{VR+4*i+2*tb+h}, s40, v{o}")
                    a(f"v_dot2_f32_bf16 v{o+1}, v{VR+4*i+2*tb+h}, s41, v{o+1}")
                a("s_nop 3")
            else:
                for r in range(4):
                    a(f"v_add_f32 v{acc(i,tb)+r}, v{acc(i,tb)+r}, v{VR+4*k+r}")
            a(f"buffer_store_dwordx4 {vr(acc(i,tb),4)}, v{V_OUT}, s[{S_OUT}:{S_OUT+3}], s{S_OS if tb == 0 else 7} offen offset:{64*i} {out_flags}")
    P.stamp(7)
    if P.on:
        a("s_waitcnt vmcnt(0)")
    P.stamp(8)
    P.stamp(10, real=True)
    P.flush(56, 57, 48, 3, 9, 10)
    a("s_endpgm")
```

```python
import sys
from common import *
import k1, k3

def build(path, opts):
    a = Asm()
    hdr = open("cdna_kernels/" + NAME + ".s.ref").read().split("; Override launch geometry")[0]
    head = hdr
    global k3
    if int(opts.get("k3v", 1)) == 2:
        import k3b as k3
    only = opts.get("only", "123")
    prof = bool(int(opts.get("prof", 0)))
    descs = []
    MERGE = int(opts.get("merge", 0))
    if "2" in only:
        import k2
    if "1" in only:
        head += f"; @launch kernel={k1.K1} grid=(256,1,1) block=(256,1,1) lds={k1.K1_LDS}\n"
    if "2" in only:
        head += f"; @launch kernel={k2.K2} grid=(256,1,1) block=(512,1,1) lds={max(k2.K2_LDS, k3.K3_LDS) if MERGE else k2.K2_LDS}\n"
    if "3" in only and not MERGE:
        head += f"; @launch kernel={k3.K3} grid=(256,1,1) block=(512,1,1) lds={k3.K3_LDS}\n"
    a.raw(head.rstrip("\n"))
    a.raw('.amdgcn_target "amdgcn-amd-amdhsa--gfx950"')
    a.raw(".text")
    if "1" in only:
        descs.append(kernel_desc(k1.K1, k1.gen_k1(a, prof=prof, opts=opts)))
    if "2" in only:
        descs.append(kernel_desc(k2.K2, k2.gen_k2(a, store_flags=opts.get("k2st", ""), prof=prof, opts=opts)))
    if "3" in only:
        nv3 = k3.gen_k3(a, out_flags=opts.get("k3st", ""), prof=prof, opts=opts)
        if not MERGE: descs.append(kernel_desc(k3.K3, nv3))
    a.raw('.section .rodata,"a"')
    for d in descs:
        a.raw(d)
    open(path, "w").write(a.text())

if __name__ == "__main__":
    path = sys.argv[1] if len(sys.argv) > 1 else "cdna_kernels/" + NAME + ".s"
    opts = dict(kv.split("=") for kv in sys.argv[2:])
    build(path, opts)
    print("wrote", path)
```
